```python
import torch

def _softmax(x, axis=-1):
    return torch.softmax(x, dim=axis)
def _gelu(x):
    return torch.nn.functional.gelu(x, approximate="tanh")
def _silu(x):
    return torch.nn.functional.silu(x)
def _sigmoid(x):
    return torch.sigmoid(x)
def _layernorm(x, axis=-1, eps=1e-5):
    m = x.mean(dim=axis, keepdim=True)
    v = x.var(dim=axis, keepdim=True, unbiased=False)
    return (x - m) / torch.sqrt(v + eps)
def _scatter_add(tgt, idx, src, axis=0):
    return tgt.clone().index_add_(axis, idx, src)
def _segment_sum(src, seg, n):
    out = torch.zeros((n,) + src.shape[1:], dtype=src.dtype)
    return out.index_add_(0, seg, src)
def _pad(x, pw):
    flat = tuple(v for pair in reversed(pw) for v in pair)
    return torch.nn.functional.pad(x, flat)

kernel_name = 'standalone__sliding_block__prompt'

def setup_inputs():

    _w = (lambda a: (lambda t: t.to(torch.bfloat16) if t.is_floating_point() else t)(torch.as_tensor(a)))
    B, S, D = 1, 2048, 512
    return {
        "x": _w((lambda *s: torch.randn(*s, dtype=torch.bfloat16) * 0.4)(B, S, D)),
        "wqkv": _w((lambda *s: torch.randn(*s, dtype=torch.bfloat16) * 0.4)(D, 3 * D)),
        "wo": _w((lambda *s: torch.randn(*s, dtype=torch.bfloat16) * 0.05)(D, D)),
    }

def reference(x, wqkv, wo):
    B, S, D = x.shape
    H = 32; Dh = D // H; W = 256
    qkv = (lambda x, *d: x.permute(*d))((x @ wqkv).reshape(B, S, 3, H, Dh), 2, 0, 3, 1, 4)
    q, k, v = qkv[0], qkv[1], qkv[2]
    scores = torch.einsum("bhqd,bhkd->bhqk", q, k) * (Dh ** -0.5)
    idx = torch.arange(S)
    mask = (idx[:, None] - idx[None, :] >= 0) & (idx[:, None] - idx[None, :] < W)
    scores = torch.where(mask[None, None], scores, -1e9)
    p = _softmax(scores, axis=-1)
    o = torch.einsum("bhqk,bhkd->bhqd", p, v)
    return (lambda x, *d: x.permute(*d))(o, 0, 2, 1, 3).reshape(B, S, D) @ wo
```

```python
import sys

HEADER = """; Kernarg layout for this problem (48 bytes, ptrs only, base s[0:1]):
; @launch kernel=qkv_kernel grid=(256,1,1) block=(256,1,1) lds=98304
; @launch kernel=attn_kernel grid=(256,1,1) block=(512,1,1) lds=0
; @launch kernel=oproj_kernel grid=(256,1,1) block=(256,1,1) lds=32768
.amdgcn_target "amdgcn-amd-amdhsa--gfx950"
.text
"""

QB = 0
KB = 0x200000
VT = 0x400000
ONES = 0x600000
OB = 0x800000
WS_SIZE = 0xA00000

out = []
def e(s=""):
    out.append("    " + s if s and not s.endswith(":") else s)

def kernel_begin(name):
    out.append(f".globl {name}")
    out.append(".p2align 8")
    out.append(f".type {name},@function")
    out.append(f"{name}:")

def kd(name, vgpr, sgpr=102):
    return f""".amdhsa_kernel {name}
  .amdhsa_next_free_vgpr {vgpr}
  .amdhsa_next_free_sgpr {sgpr}
  .amdhsa_accum_offset {((vgpr+3)//4)*4}
  .amdhsa_group_segment_fixed_size 0
  .amdhsa_kernarg_size 48
  .amdhsa_user_sgpr_count 2
  .amdhsa_user_sgpr_kernarg_segment_ptr 1
  .amdhsa_system_sgpr_workgroup_id_x 1
.end_amdhsa_kernel
"""

def vr(a, n):
    return f"v[{a}:{a+n-1}]"

def srd(d, lo, hi, size):
    e(f"s_mov_b32 s{d}, s{lo}")
    e(f"s_and_b32 s{d+1}, s{hi}, 0xffff")
    e(f"s_mov_b32 s{d+2}, {hex(size)}")
    e(f"s_mov_b32 s{d+3}, 0x00020000")

def gen_k1():
    kernel_begin("qkv_kernel")
    e("s_cmp_ge_u32 s2, 256")
    e("s_cbranch_scc1 L_k1_end")
    e("s_load_dwordx4 s[4:7], s[0:1], 0")
    e("s_load_dwordx2 s[8:9], s[0:1], 40")
    e("s_and_b32 s10, s2, 7")
    e("s_lshr_b32 s11, s2, 3")
    e("s_and_b32 s12, s10, 1")
    e("s_lshl_b32 s12, s12, 3")
    e("s_and_b32 s13, s11, 7")
    e("s_add_u32 s12, s12, s13          ; nt")
    e("s_lshr_b32 s13, s10, 1")
    e("s_lshl_b32 s13, s13, 2")
    e("s_lshr_b32 s14, s11, 3")
    e("s_add_u32 s13, s13, s14          ; mt")
    e("v_lshrrev_b32 v1, 6, v0")
    e("v_and_b32 v2, 63, v0             ; lane")
    e("v_readfirstlane_b32 s14, v1      ; wave")
    e("v_and_b32 v3, 31, v2             ; l&31")
    e("v_lshrrev_b32 v4, 5, v2          ; h")
    e("s_lshl_b32 s15, s13, 7")
    e("s_lshl_b32 s28, s14, 5           ; 32*w")
    e("s_add_u32 s15, s15, s28          ; s0")
    e("v_add_u32 v5, s15, v3")
    e("v_lshlrev_b32 v5, 10, v5")
    e("v_lshl_add_u32 v5, v4, 4, v5")
    e("s_lshl_b32 s29, s12, 6           ; 64*nt")
    for j in range(3):
        e(f"v_add_u32 v9, {64*j}, v2")
        e("v_mul_u32_u24 v10, 0xaaab, v9")
        e("v_lshrrev_b32 v10, 19, v10       ; row")
        e("v_mul_u32_u24 v11, 12, v10")
        e("v_sub_u32 v11, v9, v11           ; r12")
        e("v_lshrrev_b32 v12, 2, v11        ; seg")
        e("v_and_b32 v11, 3, v11            ; q")
        e("v_mul_u32_u24 v10, 0xc00, v10    ; row*3072")
        e("v_lshl_add_u32 v10, v12, 10, v10")
        e("v_lshl_add_u32 v10, v11, 4, v10")
        e("v_add_u32 v10, s29, v10")
        if j:
            e(f"v_subrev_u32 v{6+j}, {1024*j}, v10")
        else:
            e(f"v_mov_b32 v6, v10")
    e("v_bfe_u32 v9, v2, 2, 2           ; r")
    e("v_lshl_add_u32 v9, v4, 3, v9     ; 8h+r")
    e("v_mul_u32_u24 v9, 192, v9")
    e("v_bfe_u32 v10, v2, 4, 1          ; g'")
    e("v_lshl_add_u32 v9, v10, 5, v9")
    e("v_and_b32 v10, 3, v2")
    e("v_lshl_add_u32 v13, v10, 3, v9")
    e("v_add_u32 v14, 0xc000, v13")
    e("s_waitcnt lgkmcnt(0)")
    srd(16, 4, 5, 0x200000)
    srd(20, 6, 7, 0x180000)
    srd(24, 8, 9, WS_SIZE)
    XF = 128
    for c in range(4):
        for kk in range(8*c, 8*c+8):
            e(f"buffer_load_dwordx4 {vr(XF+4*kk,4)}, v5, s[16:19], 0 offen offset:{32*kk}")
        for pp in range(2):
            e(f"s_add_u32 s30, s28, {128*c+16*pp}")
            e("s_mul_i32 s31, s30, 0xc00")
            e("s_mul_i32 s30, s30, 192")
            e("s_mov_b32 m0, s30")
            e("s_nop 0")
            for j in range(3):
                e(f"buffer_load_dwordx4 v{6+j}, s[20:23], s31 offen offset:{1024*j} lds")
    ACC = 64
    WF = 32
    def reads(kk):
        b = WF + 12*(kk & 1)
        base = "v13" if kk < 16 else "v14"
        k2 = kk & 15
        for j in range(3):
            for ee in range(2):
                e(f"ds_read_b64_tr_b16 {vr(b+4*j+2*ee,2)}, {base} offset:{k2*3072+ee*768+j*64}")
    e("s_waitcnt vmcnt(42)")
    e("s_barrier")
    reads(0)
    for kk in range(32):
        if kk+1 < 32:
            if (kk+1) % 8 == 0:
                e(f"s_waitcnt vmcnt({42-14*((kk+1)//8)})")
                e("s_barrier")
            reads(kk+1)
            e("s_waitcnt lgkmcnt(6)")
        else:
            e("s_waitcnt lgkmcnt(0)")
        b = WF + 12*(kk & 1)
        xf = vr(XF+4*kk, 4)
        for j in range(3):
            acc = vr(ACC+16*j, 16)
            cin = "0" if kk == 0 else acc
            wf = vr(b+4*j, 4)
            if j < 2:
                e(f"v_mfma_f32_32x32x16_bf16 {acc}, {wf}, {xf}, {cin}")
            else:
                e(f"v_mfma_f32_32x32x16_bf16 {acc}, {xf}, {wf}, {cin}")
    e("v_add_u32 v5, s15, v3")
    e("v_lshlrev_b32 v5, 5, v5")
    e("v_lshl_add_u32 v5, v4, 4, v5")
    e("s_lshl_b32 s30, s12, 17          ; 2nt*65536")
    e("s_add_u32 s31, s30, 0x10000")
    e(f"s_add_u32 s32, s30, {hex(KB)}")
    e(f"s_add_u32 s33, s31, {hex(KB)}")
    e("s_lshl_b32 s34, s12, 5")
    e("v_add_u32 v6, s34, v3")
    e("v_lshlrev_b32 v6, 11, v6")
    e("v_add_u32 v6, s15, v6")
    e("v_lshl_add_u32 v6, v4, 3, v6")
    e("v_lshlrev_b32 v6, 1, v6")
    e(f"s_mov_b32 s34, {hex(VT)}")
    e("s_nop 7")
    e("s_nop 7")
    P = 16
    for j in range(3):
        for r in range(8):
            e(f"v_cvt_pk_bf16_f32 v{P+8*j+r}, v{ACC+16*j+2*r}, v{ACC+16*j+2*r+1}")
    e(f"buffer_store_dwordx4 {vr(P,4)}, v5, s[24:27], s30 offen")
    e(f"buffer_store_dwordx4 {vr(P+4,4)}, v5, s[24:27], s31 offen")
    e(f"buffer_store_dwordx4 {vr(P+8,4)}, v5, s[24:27], s32 offen")
    e(f"buffer_store_dwordx4 {vr(P+12,4)}, v5, s[24:27], s33 offen")
    e(f"buffer_store_dwordx4 {vr(P+16,4)}, v6, s[24:27], s34 offen")
    e(f"buffer_store_dwordx4 {vr(P+20,4)}, v6, s[24:27], s34 offen offset:32")
    e("s_cmp_lg_u32 s12, 0")
    e("s_cbranch_scc1 L_k1_end")
    e("v_mov_b32 v8, 0x3f803f80")
    e("v_mov_b32 v9, 0x3f803f80")
    e("v_mov_b32 v10, 0x3f803f80")
    e("v_mov_b32 v11, 0x3f803f80")
    e("s_lshl_b32 s30, s15, 1")
    e(f"s_add_u32 s30, s30, {hex(ONES)}")
    e("v_lshlrev_b32 v7, 4, v2")
    e("v_cmp_gt_u32 vcc, 4, v2")
    e("s_and_saveexec_b64 s[36:37], vcc")
    e("buffer_store_dwordx4 v[8:11], v7, s[24:27], s30 offen")
    e("L_k1_end:")
    e("s_endpgm")
    out.append("")

def gen_k2():
    kernel_begin("attn_kernel")
    e("s_cmp_ge_u32 s2, 256")
    e("s_cbranch_scc1 L_k2_end")
    e("s_load_dwordx2 s[8:9], s[0:1], 40")
    e("s_and_b32 s10, s2, 7")
    e("s_lshr_b32 s11, s2, 3")
    e("s_lshl_b32 s12, s10, 2")
    e("s_and_b32 s13, s11, 3")
    e("s_add_u32 s12, s12, s13          ; head")
    e("s_lshr_b32 s13, s11, 2           ; j")
    e("v_lshrrev_b32 v1, 6, v0")
    e("v_and_b32 v2, 63, v0             ; lane")
    e("v_readfirstlane_b32 s14, v1      ; wave")
    e("v_and_b32 v3, 31, v2             ; l&31")
    e("v_lshrrev_b32 v4, 5, v2          ; h")
    e("s_lshl_b32 s13, s13, 3")
    e("s_add_u32 s13, s13, s14          ; b")
    e("v_lshlrev_b32 v5, 5, v3")
    e("v_lshl_add_u32 v5, v4, 4, v5")
    e("s_lshl_b32 s15, s12, 4")
    e("v_add_u32 v6, s15, v3            ; head*16+d")
    e("v_lshlrev_b32 v6, 12, v6         ; *2048*2")
    e(f"v_add_u32 v6, {hex(VT)}, v6")
    e(f"v_mov_b32 v7, {hex(ONES)}")
    e("v_cmp_gt_u32 vcc, 16, v3")
    e("s_lshl_b32 s15, s12, 16          ; head*65536")
    e("s_lshl_b32 s16, s13, 10          ; b*1024")
    e("v_cndmask_b32 v6, v7, v6, vcc")
    e("v_lshl_add_u32 v6, v4, 4, v6     ; + 8h*2")
    e("s_add_u32 s16, s16, s15")
    e(f"s_add_u32 s17, s16, {hex(OB)}    ; O soffset")
    e(f"s_add_u32 s15, s15, {hex(KB)}")
    for t in range(9):
        e(f"s_add_i32 s18, s13, {t-8}")
        e("s_max_i32 s18, s18, 0")
        e(f"s_lshl_b32 s{80+t}, s18, 6")
        e("s_lshl_b32 s18, s18, 10")
        e(f"s_add_u32 s{64+t}, s18, s15")
    e("s_waitcnt lgkmcnt(0)")
    srd(24, 8, 9, WS_SIZE)
    S = 16
    KF = 160
    VF = 160
    QF = 232
    OA = 236
    e(f"buffer_load_dwordx4 {vr(QF,4)}, v5, s[24:27], s16 offen")
    for t in range(9):
        e(f"buffer_load_dwordx4 {vr(KF+4*t,4)}, v5, s[24:27], s{64+t} offen")
    for f in range(9, 18):
        e(f"buffer_load_dwordx4 {vr(VF+4*f,4)}, v6, s[24:27], s{80+f//2} offen offset:{32*(f&1)}")
    e("v_lshlrev_b32 v8, 2, v4")
    e("v_sub_u32 v8, v3, v8")
    for i in range(16):
        ci = (i & 3) + 8*(i >> 2)
        e(f"v_cmp_le_i32 s[{32+2*i}:{33+2*i}], {ci}, v8")
    for t in range(9):
        e(f"s_waitcnt vmcnt({9+8-t})")
        e(f"v_mfma_f32_32x32x16_bf16 {vr(S+16*t,16)}, {vr(KF+4*t,4)}, {vr(QF,4)}, 0")
    for f in range(0, 9):
        e(f"buffer_load_dwordx4 {vr(VF+4*f,4)}, v6, s[24:27], s{80+f//2} offen offset:{32*(f&1)}")
    e("s_nop 7")
    e("s_nop 3")
    e("s_cmp_ge_u32 s13, 8")
    e("s_cbranch_scc1 L_k2_fix_done")
    e("v_mov_b32 v9, 0xff800000")
    for t in range(8):
        for i in range(16):
            e(f"v_mov_b32 v{S+16*t+i}, v9")
        if t < 7:
            e(f"s_cmp_ge_u32 s13, {7-t}")
            e("s_cbranch_scc1 L_k2_fix_done")
    e("L_k2_fix_done:")
    for i in range(16):
        e(f"v_cndmask_b32 v{S+128+i}, v{S+i}, v{S+128+i}, s[{32+2*i}:{33+2*i}]")
    vals = [S+16+i for i in range(128)]
    ch = [10, 11, 12, 13]
    for c in range(4):
        sub = vals[32*c:32*c+32]
        e(f"v_max3_f32 v{ch[c]}, v{sub[0]}, v{sub[1]}, v{sub[2]}")
    for step in range(14):
        for c in range(4):
            sub = vals[32*c:32*c+32]
            e(f"v_max3_f32 v{ch[c]}, v{sub[3+2*step]}, v{sub[4+2*step]}, v{ch[c]}")
    for c in range(4):
        sub = vals[32*c:32*c+32]
        e(f"v_max_f32 v{ch[c]}, v{sub[31]}, v{ch[c]}")
    e("v_max3_f32 v10, v10, v11, v12")
    e("v_max_f32 v10, v10, v13")
    e("v_mov_b32 v11, v10")
    e("s_nop 1")
    e("v_permlane32_swap_b32 v10, v11")
    e("s_mov_b32 s19, 0x3eb8aa3b        ; 0.25*log2(e)")
    e("v_max_f32 v10, v10, v11")
    e("v_mul_f32 v10, s19, v10          ; m*c")
    order = [5, 6, 7, 8, 4, 1, 2, 3]
    first = True
    waited = False
    for t in order:
        base = S+16*t
        for i in range(16):
            e(f"v_fma_f32 v{base+i}, v{base+i}, s19, -v10")
        for i in range(16):
            e(f"v_exp_f32 v{base+i}, v{base+i}")
        if t == 8:
            for i in range(16):
                e(f"v_cndmask_b32 v{S+i}, v{base+i}, 0, s[{32+2*i}:{33+2*i}]")
            for i in range(16):
                e(f"v_cndmask_b32 v{base+i}, 0, v{base+i}, s[{32+2*i}:{33+2*i}]")
            for r in range(8):
                e(f"v_cvt_pk_bf16_f32 v{S+r}, v{S+2*r}, v{S+2*r+1}")
        for r in range(8):
            e(f"v_cvt_pk_bf16_f32 v{base+r}, v{base+2*r}, v{base+2*r+1}")
        if t == 4:
            e("s_waitcnt vmcnt(0)")
            waited = True
        elif not waited:
            e("s_waitcnt vmcnt(9)")
        e("s_nop 1")
        for m in range(2):
            cin = "0" if first else vr(OA, 16)
            first = False
            e(f"v_mfma_f32_32x32x16_bf16 {vr(OA,16)}, {vr(VF+4*(2*t+m),4)}, {vr(base+4*m,4)}, {cin}")
        if t == 4:
            for m in range(2):
                e(f"v_mfma_f32_32x32x16_bf16 {vr(OA,16)}, {vr(VF+4*m,4)}, {vr(S+4*m,4)}, {vr(OA,16)}")
    e("s_nop 7")
    e("s_nop 7")
    e(f"v_rcp_f32 v10, v{OA+8}")
    e("s_nop 0")
    for i in range(8):
        e(f"v_mul_f32 v{OA+i}, v10, v{OA+i}")
    for r in range(4):
        e(f"v_cvt_pk_bf16_f32 v{12+r}, v{OA+2*r}, v{OA+2*r+1}")
    e(f"buffer_store_dwordx4 v[12:15], v5, s[24:27], s17 offen")
    e("L_k2_end:")
    e("s_endpgm")
    out.append("")

def gen_k3():
    kernel_begin("oproj_kernel")
    e("s_cmp_ge_u32 s2, 256")
    e("s_cbranch_scc1 L_k3_end")
    e("s_load_dwordx4 s[4:7], s[0:1], 16")
    e("s_load_dwordx2 s[8:9], s[0:1], 40")
    e("s_and_b32 s10, s2, 7")
    e("s_lshr_b32 s11, s2, 3")
    e("s_lshl_b32 s13, s10, 1")
    e("s_and_b32 s12, s11, 1")
    e("s_add_u32 s13, s13, s12          ; mt")
    e("s_lshr_b32 s12, s11, 1           ; nt")
    e("v_lshrrev_b32 v1, 6, v0")
    e("v_and_b32 v2, 63, v0             ; lane")
    e("v_readfirstlane_b32 s14, v1      ; wave")
    e("v_and_b32 v3, 31, v2             ; l&31")
    e("v_lshrrev_b32 v4, 5, v2          ; h")
    e("s_lshl_b32 s15, s13, 7")
    e("s_lshl_b32 s28, s14, 5           ; 32*w")
    e("s_add_u32 s15, s15, s28          ; s0")
    e("v_add_u32 v5, s15, v3")
    e("v_lshlrev_b32 v5, 5, v5")
    e("v_lshl_add_u32 v5, v4, 4, v5")
    e("s_lshl_b32 s29, s12, 6")
    e("v_lshrrev_b32 v6, 2, v2")
    e("v_lshlrev_b32 v6, 10, v6")
    e("v_and_b32 v9, 3, v2")
    e("v_lshl_add_u32 v6, v9, 4, v6")
    e("v_add_u32 v6, s29, v6")
    e("v_bfe_u32 v9, v2, 2, 2           ; r")
    e("v_lshl_add_u32 v9, v4, 2, v9     ; 4h+r")
    e("v_lshlrev_b32 v9, 6, v9")
    e("v_bfe_u32 v10, v2, 4, 1          ; g'")
    e("v_lshl_add_u32 v9, v10, 5, v9")
    e("v_and_b32 v10, 3, v2")
    e("v_lshl_add_u32 v13, v10, 3, v9")
    e("s_waitcnt lgkmcnt(0)")
    srd(16, 6, 7, 0x200000)
    srd(20, 4, 5, 0x80000)
    srd(24, 8, 9, WS_SIZE)
    XF = 128
    for c in range(4):
        for kk in range(8*c, 8*c+8):
            e(f"s_mov_b32 s30, {hex(OB+kk*65536)}")
            e(f"buffer_load_dwordx4 {vr(XF+4*kk,4)}, v5, s[24:27], s30 offen")
        for pp in range(2):
            e(f"s_add_u32 s30, s28, {128*c+16*pp}")
            e("s_lshl_b32 s31, s30, 10")
            e("s_lshl_b32 s30, s30, 6")
            e("s_mov_b32 m0, s30")
            e("s_nop 0")
            e(f"buffer_load_dwordx4 v6, s[20:23], s31 offen lds")
    ACC = 64
    WF = 32
    def reads(kk):
        b = WF + 4*(kk & 1)
        for ee in range(2):
            e(f"ds_read_b64_tr_b16 {vr(b+2*ee,2)}, v13 offset:{kk*1024+ee*512}")
    e("s_waitcnt vmcnt(30)")
    e("s_barrier")
    reads(0)
    for kk in range(32):
        if kk+1 < 32:
            if (kk+1) % 8 == 0:
                e(f"s_waitcnt vmcnt({30-10*((kk+1)//8)})")
                e("s_barrier")
            reads(kk+1)
            e("s_waitcnt lgkmcnt(2)")
        else:
            e("s_waitcnt lgkmcnt(0)")
        b = WF + 4*(kk & 1)
        acc = vr(ACC, 16)
        cin = "0" if kk == 0 else acc
        e(f"v_mfma_f32_32x32x16_bf16 {acc}, {vr(b,4)}, {vr(XF+4*kk,4)}, {cin}")
    e("v_add_u32 v5, s15, v3")
    e("v_lshlrev_b32 v5, 10, v5")
    e("v_lshl_add_u32 v5, v4, 3, v5")
    e("v_add_u32 v5, s29, v5")
    e("s_nop 7")
    e("s_nop 7")
    for r in range(8):
        e(f"v_cvt_pk_bf16_f32 v{16+r}, v{ACC+2*r}, v{ACC+2*r+1}")
    for g in range(4):
        e(f"buffer_store_dwordx2 {vr(16+2*g,2)}, v5, s[16:19], 0 offen offset:{16*g}")
    e("L_k3_end:")
    e("s_endpgm")
    out.append("")

gen_k1()
gen_k2()
gen_k3()
txt = HEADER + "\n".join(out) + "\n" + '.section .rodata,"a"\n'
for n, v in (("qkv_kernel", 256), ("attn_kernel", 256), ("oproj_kernel", 256)):
    txt += ".p2align 6\n" + kd(n, v)
dst = sys.argv[1] if len(sys.argv) > 1 else "standalone__sliding_block__prompt.s"
open(dst, "w").write(txt)
```

```python
import sys, os

K2_LDS = 32768 + 64
K1_SLOT = 32768
K1_NSLOT = 5
LA = int(os.environ.get('LA', '3'))
HEADER = f"""; Kernarg layout for this problem (48 bytes, ptrs only, base s[0:1]):
; @launch kernel=qkv_kernel grid=(256,1,1) block=(512,1,1) lds={K1_SLOT*K1_NSLOT}
; @launch kernel=attn_kernel grid=(256,1,1) block=(512,1,1) lds={K2_LDS}
; @launch kernel=oproj_kernel grid=(256,1,1) block=(512,1,1) lds=131072
.amdgcn_target "amdgcn-amd-amdhsa--gfx950"
.text
"""
QB = 0
KB = 0x200000
VB = 0x400000
OB = 0x800000
WS_SIZE = 0x1000000

out = []
def e(s=""):
    out.append("    " + s if s and not s.endswith(":") else s)

def kernel_begin(name):
    out.append(f".globl {name}")
    out.append(".p2align 8")
    out.append(f".type {name},@function")
    out.append(f"{name}:")

def kd(name, vgpr, sgpr=102):
    return f""".amdhsa_kernel {name}
  .amdhsa_next_free_vgpr {vgpr}
  .amdhsa_next_free_sgpr {sgpr}
  .amdhsa_accum_offset {((vgpr+3)//4)*4}
  .amdhsa_group_segment_fixed_size 0
  .amdhsa_kernarg_size 48
  .amdhsa_user_sgpr_count 2
  .amdhsa_user_sgpr_kernarg_segment_ptr 1
  .amdhsa_system_sgpr_workgroup_id_x 1
.end_amdhsa_kernel
"""

STAMP = int(os.environ.get("STAMP", "0"))
EXP = int(os.environ.get("EXP", "0"))
STAMP_BASE = 0xC00000
STAMP_S = 90
stamp_n = [0]
def stamp():
    if not STAMP: return
    i = stamp_n[0]; stamp_n[0] += 1
    assert i < 6
    e(f"{'s_memrealtime' if STAMP==2 else 's_memtime'} s[{STAMP_S+2*i}:{STAMP_S+2*i+1}]")
def stamp_flush(kid, wave_sgpr, nw):
    if not STAMP: return
    e("s_waitcnt vmcnt(0)")
    stamp()
    n = stamp_n[0]; stamp_n[0] = 0
    e("s_waitcnt lgkmcnt(0)")
    e(f"s_mul_i32 s3, s2, {nw}")
    e(f"s_add_u32 s3, s3, s{wave_sgpr}")
    e("s_lshl_b32 s3, s3, 6")
    e(f"s_add_u32 s3, s3, {hex(STAMP_BASE + kid*0x40000)}")
    e("s_mov_b64 exec, 1")
    e("v_mov_b32 v1, 0")
    for i in range(n):
        e(f"v_mov_b32 v2, s{STAMP_S+2*i}")
        e(f"buffer_store_dword v2, v1, s[24:27], s3 offen offset:{4*i}")
    e("s_mov_b64 exec, -1")

def vr(a, n):
    return f"v[{a}:{a+n-1}]"

def srd(d, lo, hi, size):
    e(f"s_mov_b32 s{d}, s{lo}")
    e(f"s_and_b32 s{d+1}, s{hi}, 0xffff")
    e(f"s_mov_b32 s{d+2}, {hex(size)}")
    e(f"s_mov_b32 s{d+3}, 0x00020000")

def gen_k1():
    kernel_begin("qkv_kernel")
    e("s_cmp_ge_u32 s2, 256")
    e("s_cbranch_scc1 L_k1_end")
    e("s_load_dwordx4 s[4:7], s[0:1], 0")
    e("s_load_dwordx2 s[8:9], s[0:1], 40")
    e("s_and_b32 s10, s2, 7")
    e("s_lshr_b32 s11, s2, 3")
    e("s_and_b32 s12, s10, 1")
    e("s_lshl_b32 s12, s12, 2")
    e("s_and_b32 s13, s11, 3")
    e("s_add_u32 s12, s12, s13          ; nt (0..7)")
    e("s_lshr_b32 s13, s10, 1")
    e("s_lshl_b32 s13, s13, 3")
    e("s_lshr_b32 s14, s11, 2")
    e("s_add_u32 s13, s13, s14          ; mt (0..31)")
    e("v_lshrrev_b32 v1, 6, v0")
    e("v_and_b32 v2, 63, v0             ; lane")
    e("v_readfirstlane_b32 s39, v1      ; wave")
    e("v_and_b32 v3, 31, v2             ; l&31")
    e("v_lshrrev_b32 v4, 5, v2          ; h")
    e("s_and_b32 s14, s39, 3            ; w")
    e("s_lshl_b32 s15, s13, 6")
    e("s_cmp_ge_u32 s39, 4")
    e("s_cbranch_scc1 L_k1_loader")
    e("s_lshr_b32 s28, s14, 1           ; a")
    e("s_and_b32 s29, s14, 1            ; b")
    e("v_bfe_u32 v9, v2, 2, 2           ; r")
    e("v_lshl_add_u32 v10, v4, 3, v9    ; 8h+r")
    e("v_mul_u32_u24 v10, 384, v10")
    e("v_lshrrev_b32 v9, 1, v9")
    e("v_xor_b32 v9, s29, v9")
    e("v_lshl_add_u32 v10, v9, 6, v10")
    e("v_bfe_u32 v9, v2, 4, 1           ; g'")
    e("v_lshl_add_u32 v10, v9, 5, v10")
    e("v_and_b32 v9, 3, v2")
    e("v_lshl_add_u32 v20, v9, 3, v10")
    e("v_add_u32 v20, 0x2000, v20")
    e("v_bfe_u32 v9, v3, 1, 3           ; f")
    e("v_lshlrev_b32 v10, 7, v3")
    e("s_lshl_b32 s30, s28, 12")
    e("v_add_u32 v10, s30, v10")
    for k2 in range(4):
        e(f"v_add_u32 v11, {2*k2}, v4")
        e("v_xor_b32 v11, v11, v9")
        e(f"v_lshl_add_u32 v{21+k2}, v11, 4, v10")
    e("s_waitcnt lgkmcnt(0)")
    srd(24, 8, 9, WS_SIZE)
    ACC = 64
    FR = 112
    AD = 26
    def setaddr(c):
        sl = (c % K1_NSLOT) * K1_SLOT
        for i in range(5):
            e(f"v_add_u32 v{AD+5*(c&1)+i}, {sl}, v{20+i}")
    def read_list(kk):
        b = FR + 16*(kk % 3)
        k2 = kk & 3
        ad = AD + 5*((kk//4) & 1)
        if EXP >= 2: return []
        L = [f"ds_read_b128 {vr(b,4)}, v{ad+1+k2}"]
        for j in range(3):
            for ee in range(2):
                L.append(f"ds_read_b64_tr_b16 {vr(b+4+4*j+2*ee,2)}, v{ad} offset:{k2*6144+ee*1536+j*128}")
        return L
    stamp()
    setaddr(0)
    e("s_barrier")
    stamp()
    for r in read_list(0): e(r)
    for r in read_list(1): e(r)
    for kk in range(32):
        nxt = []
        if kk+2 < 32:
            if (kk+2) % 4 == 0:
                c = (kk+2)//4
                setaddr(c)
                e("s_barrier")
                if c == 6: stamp()
            nxt = read_list(kk+2)
        e(f"s_waitcnt lgkmcnt({7 if kk+1 < 32 else 0})")
        b = FR + 16*(kk % 3)
        xf = vr(b, 4)
        for j in range(3):
            acc = vr(ACC+16*j, 16)
            cin = "0" if kk == 0 else acc
            wf = vr(b+4+4*j, 4)
            if EXP >= 2: pass
            elif j < 2:
                e(f"v_mfma_f32_32x32x16_bf16 {acc}, {wf}, {xf}, {cin}")
            else:
                e(f"v_mfma_f32_32x32x16_bf16 {acc}, {xf}, {wf}, {cin}")
            part = nxt[[0,3,5][j]:[3,5,7][j]]
            for r in part: e(r)
    stamp()
    e("v_lshlrev_b32 v5, 4, v2")
    e("s_lshl_b32 s30, s12, 1")
    e("s_add_u32 s30, s30, s29")
    e("s_lshl_b32 s30, s30, 17          ; head0*65536")
    e("s_lshl_b32 s31, s13, 1")
    e("s_add_u32 s31, s31, s28")
    e("s_lshl_b32 s31, s31, 10          ; tile*1024")
    e("s_add_u32 s30, s30, s31")
    e("s_add_u32 s31, s30, 0x10000")
    e(f"s_add_u32 s32, s30, {hex(KB)}")
    e(f"s_add_u32 s33, s31, {hex(KB)}")
    e("v_lshrrev_b32 v9, 4, v3")
    e("v_lshlrev_b32 v6, 16, v9")
    e("v_lshl_add_u32 v6, v4, 8, v6")
    e("v_and_b32 v9, 15, v3")
    e("v_lshl_add_u32 v6, v9, 4, v6")
    e(f"s_add_u32 s34, s30, {hex(VB)}")
    e("s_nop 7")
    P = 8
    for j in range(3):
        for r in range(8):
            e(f"v_cvt_pk_bf16_f32 v{P+8*j+r}, v{ACC+16*j+2*r}, v{ACC+16*j+2*r+1}")
    e(f"buffer_store_dwordx4 {vr(P,4)}, v5, s[24:27], s30 offen")
    e(f"buffer_store_dwordx4 {vr(P+4,4)}, v5, s[24:27], s31 offen")
    e(f"buffer_store_dwordx4 {vr(P+8,4)}, v5, s[24:27], s32 offen")
    e(f"buffer_store_dwordx4 {vr(P+12,4)}, v5, s[24:27], s33 offen")
    e(f"buffer_store_dwordx4 {vr(P+16,4)}, v6, s[24:27], s34 offen")
    e(f"buffer_store_dwordx4 {vr(P+20,4)}, v6, s[24:27], s34 offen offset:512")
    stamp_flush(0, 14, 4)
    e("s_endpgm")
    e("L_k1_loader:")
    e("s_lshl_b32 s28, s14, 4           ; 16w")
    e("s_add_u32 s30, s15, s28")
    e("v_lshrrev_b32 v9, 3, v2")
    e("v_add_u32 v9, s30, v9")
    e("v_lshlrev_b32 v9, 10, v9")
    e("v_and_b32 v10, 7, v2             ; pos")
    e("v_lshrrev_b32 v11, 4, v2")
    for a in range(2):
        e(f"v_add_u32 v12, {4*a}, v11")
        e("v_and_b32 v12, 7, v12")
        e("v_xor_b32 v12, v12, v10")
        e("v_lshl_add_u32 v12, v12, 4, v9")
        e(f"v_add_u32 v{16+a}, {8*a*1024 - a*1024}, v12")
    e("s_lshl_b32 s29, s12, 7           ; 128*nt")
    for j in range(3):
        e(f"v_add_u32 v9, {64*j}, v2")
        e("v_mul_u32_u24 v10, 0xaaab, v9")
        e("v_lshrrev_b32 v10, 20, v10       ; row")
        e("v_mul_u32_u24 v11, 24, v10")
        e("v_sub_u32 v11, v9, v11           ; pos")
        e("v_lshrrev_b32 v12, 3, v11        ; seg")
        e("v_and_b32 v11, 7, v11")
        e("v_bfe_u32 v13, v10, 1, 1")
        e("v_lshlrev_b32 v13, 2, v13")
        e("v_xor_b32 v11, v11, v13")
        e("v_mul_u32_u24 v10, 0xc00, v10    ; row*3072")
        e("v_lshl_add_u32 v10, v12, 10, v10")
        e("v_lshl_add_u32 v10, v11, 4, v10")
        e("v_add_u32 v10, s29, v10")
        if j:
            e(f"v_subrev_u32 v{6+j}, {1024*j}, v10")
        else:
            e(f"v_mov_b32 v6, v10")
    e("s_waitcnt lgkmcnt(0)")
    srd(16, 4, 5, 0x200000)
    srd(20, 6, 7, 0x180000)
    e("s_lshl_b32 s36, s14, 11          ; w*2048 (x lds)")
    e("s_mul_i32 s37, s14, 6144         ; w*16 rows*384")
    e("s_add_u32 s37, s37, 0x2000")
    e("s_mul_i32 s38, s14, 0xc000       ; w*16*3072 W global")
    def issue(c):
        if EXP == 1: return
        sl = (c % K1_NSLOT) * K1_SLOT
        e(f"s_add_u32 s30, s36, {sl}")
        e("s_mov_b32 m0, s30")
        e(f"s_mov_b32 s31, {c*128}")
        for a in range(2):
            e(f"buffer_load_dwordx4 v{16+a}, s[16:19], s31 offen offset:{1024*a} lds")
        for pp in range(2):
            e(f"s_add_u32 s30, s37, {sl + pp*3072}")
            e("s_mov_b32 m0, s30")
            e(f"s_add_u32 s31, s38, {(c*64+pp*8)*3072}")
            for j in range(3):
                e(f"buffer_load_dwordx4 v{6+j}, s[20:23], s31 offen offset:{1024*j} lds")
    for c in range(LA):
        issue(c)
    for c in range(8):
        nout = min(c+LA-1, 7) - c
        e(f"s_waitcnt vmcnt({8*nout})")
        e("s_barrier")
        if c+LA <= 7:
            issue(c+LA)
    e("L_k1_end:")
    e("s_endpgm")
    out.append("")

def gen_k2():
    kernel_begin("attn_kernel")
    e("s_cmp_ge_u32 s2, 256")
    e("s_cbranch_scc1 L_k2_end")
    e("s_load_dwordx2 s[8:9], s[0:1], 40")
    e("s_and_b32 s10, s2, 7")
    e("s_lshr_b32 s11, s2, 3")
    e("s_lshl_b32 s12, s10, 2")
    e("s_and_b32 s13, s11, 3")
    e("s_add_u32 s12, s12, s13          ; head")
    e("s_lshr_b32 s11, s11, 2           ; j")
    e("v_lshrrev_b32 v1, 6, v0")
    e("v_and_b32 v2, 63, v0             ; lane")
    e("v_readfirstlane_b32 s14, v1      ; wave")
    e("v_and_b32 v3, 31, v2             ; l&31")
    e("v_lshrrev_b32 v4, 5, v2          ; h")
    e("s_lshl_b32 s13, s11, 3")
    e("s_add_u32 s13, s13, s14          ; b")
    e("v_lshlrev_b32 v5, 4, v2          ; lane*16")
    e("s_lshl_b32 s15, s12, 16          ; head*65536")
    e("s_lshl_b32 s16, s13, 10          ; b*1024")
    e("s_add_u32 s16, s16, s15")
    e("s_lshl_b32 s17, s11, 3")
    e("s_lshl_b32 s18, s14, 1")
    e("s_add_u32 s17, s17, s18")
    e("s_sub_u32 s17, s17, 8")
    e("s_max_i32 s17, s17, 0")
    e("s_lshl_b32 s19, s17, 10")
    e("s_add_u32 s19, s19, s15")
    e(f"s_add_u32 s20, s19, {hex(KB)}")
    e(f"s_add_u32 s21, s19, {hex(VB)}")
    e("s_lshl_b32 s22, s14, 11")
    e("s_add_u32 s23, s22, 0x4000")
    e("s_waitcnt lgkmcnt(0)")
    srd(24, 8, 9, WS_SIZE)
    S = 16
    KF = 160
    VF = 196
    QF = 212
    OA = 216
    stamp()
    e(f"buffer_load_dwordx4 {vr(QF,4)}, v5, s[24:27], s16 offen")
    e("s_mov_b32 m0, s22")
    e("s_nop 0")
    e("buffer_load_dwordx4 v5, s[24:27], s20 offen lds")
    e("buffer_load_dwordx4 v5, s[24:27], s20 offen offset:1024 lds")
    e("s_mov_b32 m0, s23")
    e("s_nop 0")
    e("buffer_load_dwordx4 v5, s[24:27], s21 offen lds")
    e("buffer_load_dwordx4 v5, s[24:27], s21 offen offset:1024 lds")
    e("v_mov_b32 v8, 0x3f803f80")
    e("v_mov_b32 v9, 0x3f803f80")
    e("v_mov_b32 v10, 0x8000")
    e("ds_write_b64 v10, v[8:9]")
    e("ds_write_b64 v10, v[8:9] offset:8")
    e("s_lshl_b32 s18, s14, 10")
    e("v_add_u32 v6, s18, v5")
    e("v_lshlrev_b32 v7, 8, v4")
    e("v_lshl_add_u32 v7, v3, 4, v7")
    e("v_add_u32 v7, s18, v7")
    e("v_add_u32 v7, 0x4000, v7")
    e("v_cmp_gt_u32 vcc, 16, v3")
    e("v_mov_b32 v11, 0x200")
    e("s_nop 0")
    e("v_cndmask_b32 v7, v10, v7, vcc")
    e("v_cndmask_b32 v14, 0, v11, vcc   ; step")
    e(f"s_add_u32 s17, s16, {hex(OB)}    ; O soffset")
    e("v_lshlrev_b32 v8, 2, v4")
    e("v_sub_u32 v8, v3, v8")
    for i in range(16):
        ci = (i & 3) + 8*(i >> 2)
        e(f"v_cmp_le_i32 s[{32+2*i}:{33+2*i}], {ci}, v8")
    e("v_mov_b32 v15, 0x3eb8aa3b        ; 0.25*log2(e)")
    e("s_waitcnt vmcnt(0) lgkmcnt(0)")
    e("s_barrier")
    stamp()
    for t in range(9):
        e(f"ds_read_b128 {vr(KF+4*t,4)}, v6 offset:{1024*t}")
    for t in range(9):
        e(f"s_waitcnt lgkmcnt({8-t})")
        e(f"v_mfma_f32_32x32x16_bf16 {vr(S+16*t,16)}, {vr(KF+4*t,4)}, {vr(QF,4)}, 0")
    e("s_nop 7")
    e("s_nop 4")
    e("s_cmp_ge_u32 s13, 8")
    e("s_cbranch_scc1 L_k2_fix_done")
    e("v_mov_b32 v9, 0xff800000")
    for t in range(8):
        for i in range(16):
            e(f"v_mov_b32 v{S+16*t+i}, v9")
        if t < 7:
            e(f"s_cmp_ge_u32 s13, {7-t}")
            e("s_cbranch_scc1 L_k2_fix_done")
    e("L_k2_fix_done:")
    for i in range(16):
        e(f"v_cndmask_b32 v{S+128+i}, v{S+i}, v{S+128+i}, s[{32+2*i}:{33+2*i}]")
    vals = [S+16+i for i in range(128)]
    ch = [10, 11, 12, 13]
    for c in range(4):
        sub = vals[32*c:32*c+32]
        e(f"v_max3_f32 v{ch[c]}, v{sub[0]}, v{sub[1]}, v{sub[2]}")
    for step in range(14):
        for c in range(4):
            sub = vals[32*c:32*c+32]
            e(f"v_max3_f32 v{ch[c]}, v{sub[3+2*step]}, v{sub[4+2*step]}, v{ch[c]}")
    for c in range(4):
        sub = vals[32*c:32*c+32]
        e(f"v_max_f32 v{ch[c]}, v{sub[31]}, v{ch[c]}")
    e("v_max3_f32 v10, v10, v11, v12")
    e("v_max_f32 v10, v10, v13")
    e("v_mov_b32 v11, v10")
    e("s_nop 1")
    e("v_permlane32_swap_b32 v10, v11")
    e("v_max_f32 v10, v10, v11")
    e("v_mul_f32 v10, v15, v10          ; m*c")
    stamp()
    def softmax(t):
        base = S+16*t
        for i in range(16):
            e(f"v_fma_f32 v{base+i}, v{base+i}, v15, -v10")
        for i in range(16):
            e(f"v_exp_f32 v{base+i}, v{base+i}")
        if t == 8:
            for i in range(16):
                e(f"v_cndmask_b32 v{S+i}, v{base+i}, 0, s[{32+2*i}:{33+2*i}]")
            for i in range(16):
                e(f"v_cndmask_b32 v{base+i}, 0, v{base+i}, s[{32+2*i}:{33+2*i}]")
            for r in range(8):
                e(f"v_cvt_pk_bf16_f32 v{S+r}, v{S+2*r}, v{S+2*r+1}")
        for r in range(8):
            e(f"v_cvt_pk_bf16_f32 v{base+r}, v{base+2*r}, v{base+2*r+1}")
    def vread(t):
        b = VF + 8*(t & 1)
        for m in range(2):
            e(f"ds_read_b128 {vr(b+4*m,4)}, v7")
            e("v_add_u32 v7, v7, v14")
    vread(0)
    softmax(8)
    for t in range(9):
        if t+1 < 9:
            vread(t+1)
        if 1 <= t+1 <= 7:
            softmax(t+1)
        e(f"s_waitcnt lgkmcnt({2 if t+1 < 9 else 0})")
        b = VF + 8*(t & 1)
        base = S+16*t
        for m in range(2):
            cin = "0" if (t == 0 and m == 0) else vr(OA, 16)
            e(f"v_mfma_f32_32x32x16_bf16 {vr(OA,16)}, {vr(b+4*m,4)}, {vr(base+4*m,4)}, {cin}")
    stamp()
    e("s_nop 7")
    e("s_nop 7")
    e(f"v_rcp_f32 v10, v{OA+8}")
    e("s_nop 0")
    for i in range(8):
        e(f"v_mul_f32 v{OA+i}, v10, v{OA+i}")
    for r in range(4):
        e(f"v_cvt_pk_bf16_f32 v{16+r}, v{OA+2*r}, v{OA+2*r+1}")
    e(f"buffer_store_dwordx4 v[16:19], v5, s[24:27], s17 offen")
    stamp_flush(1, 14, 8)
    e("L_k2_end:")
    e("s_endpgm")
    out.append("")

def gen_k3():
    kernel_begin("oproj_kernel")
    e("s_cmp_ge_u32 s2, 256")
    e("s_cbranch_scc1 L_k3_end")
    e("s_load_dwordx4 s[4:7], s[0:1], 16")
    e("s_load_dwordx2 s[8:9], s[0:1], 40")
    e("s_and_b32 s10, s2, 7")
    e("s_lshr_b32 s11, s2, 3")
    e("s_lshl_b32 s13, s10, 2")
    e("s_and_b32 s12, s11, 3")
    e("s_add_u32 s13, s13, s12          ; mt (0..31)")
    e("s_lshr_b32 s12, s11, 2           ; nt (0..7)")
    e("v_lshrrev_b32 v1, 6, v0")
    e("v_and_b32 v2, 63, v0             ; lane")
    e("v_readfirstlane_b32 s39, v1      ; wave")
    e("v_and_b32 v3, 31, v2             ; l&31")
    e("v_lshrrev_b32 v4, 5, v2          ; h")
    e("s_and_b32 s14, s39, 3")
    e("v_lshlrev_b32 v5, 4, v2          ; lane*16")
    e("s_cmp_ge_u32 s39, 4")
    e("s_cbranch_scc1 L_k3_loader")
    e("s_lshr_b32 s28, s14, 1           ; a")
    e("s_and_b32 s29, s14, 1            ; b")
    e("s_lshl_b32 s30, s28, 10")
    e("v_add_u32 v12, s30, v5")
    e("v_bfe_u32 v9, v2, 2, 2           ; r")
    e("v_lshl_add_u32 v10, v4, 2, v9    ; 4h+r")
    e("v_lshlrev_b32 v10, 7, v10")
    e("v_lshrrev_b32 v9, 1, v9")
    e("v_xor_b32 v9, s29, v9")
    e("v_lshl_add_u32 v10, v9, 6, v10")
    e("v_bfe_u32 v9, v2, 4, 1           ; g'")
    e("v_lshl_add_u32 v10, v9, 5, v10")
    e("v_and_b32 v9, 3, v2")
    e("v_lshl_add_u32 v13, v9, 3, v10")
    e("v_add_u32 v13, 0x10000, v13")
    e("v_add_u32 v14, 0x8000, v13")
    e("v_add_u32 v15, 0x8000, v12")
    e("s_waitcnt lgkmcnt(0)")
    srd(16, 6, 7, 0x200000)
    srd(24, 8, 9, WS_SIZE)
    ACC = 64
    FR = 32
    def read_list(kk):
        b = FR + 8*(kk % 3)
        k2 = kk & 15
        L = [f"ds_read_b128 {vr(b,4)}, {'v12' if kk < 16 else 'v15'} offset:{k2*2048}"]
        for ee in range(2):
            L.append(f"ds_read_b64_tr_b16 {vr(b+4+2*ee,2)}, {'v13' if kk < 16 else 'v14'} offset:{k2*2048+ee*1024}")
        return L
    stamp()
    e("s_barrier")
    stamp()
    for r in read_list(0): e(r)
    for r in read_list(1): e(r)
    for kk in range(32):
        nxt = []
        if kk+2 < 32:
            if (kk+2) % 4 == 0:
                e("s_barrier")
                if kk+2 == 24: stamp()
            nxt = read_list(kk+2)
        e(f"s_waitcnt lgkmcnt({3 if kk+1 < 32 else 0})")
        b = FR + 8*(kk % 3)
        acc = vr(ACC, 16)
        cin = "0" if kk == 0 else acc
        e(f"v_mfma_f32_32x32x16_bf16 {acc}, {vr(b+4,4)}, {vr(b,4)}, {cin}")
        for r in nxt: e(r)
    stamp()
    e("s_lshl_b32 s30, s13, 1")
    e("s_add_u32 s30, s30, s28")
    e("s_lshl_b32 s30, s30, 5")
    e("v_add_u32 v5, s30, v3")
    e("v_lshlrev_b32 v5, 10, v5")
    e("v_lshl_add_u32 v5, v4, 3, v5")
    e("s_lshl_b32 s30, s12, 1")
    e("s_add_u32 s30, s30, s29")
    e("s_lshl_b32 s30, s30, 6")
    e("v_add_u32 v5, s30, v5")
    e("s_nop 7")
    e("s_nop 3")
    for r in range(8):
        e(f"v_cvt_pk_bf16_f32 v{16+r}, v{ACC+2*r}, v{ACC+2*r+1}")
    for g in range(4):
        e(f"buffer_store_dwordx2 {vr(16+2*g,2)}, v5, s[16:19], 0 offen offset:{16*g}")
    stamp_flush(2, 14, 4)
    e("s_endpgm")
    e("L_k3_loader:")
    e("v_lshrrev_b32 v9, 3, v2")
    e("v_and_b32 v10, 7, v2")
    e("v_bfe_u32 v11, v2, 4, 1")
    e("v_lshlrev_b32 v11, 2, v11")
    e("v_xor_b32 v10, v10, v11")
    e("v_lshlrev_b32 v9, 10, v9")
    e("v_lshl_add_u32 v9, v10, 4, v9")
    e("s_lshl_b32 s29, s12, 7")
    e("v_add_u32 v6, s29, v9")
    e(f"v_add_u32 v7, {8*1024-1024}, v6")
    e("s_waitcnt lgkmcnt(0)")
    srd(20, 4, 5, 0x80000)
    srd(24, 8, 9, WS_SIZE)
    e("s_lshl_b32 s36, s14, 11")
    e("s_lshl_b32 s37, s14, 16")
    e("s_lshl_b32 s30, s13, 11")
    e("s_add_u32 s37, s37, s30")
    e(f"s_add_u32 s37, s37, {hex(OB)}")
    e("s_lshl_b32 s38, s14, 14          ; W global w*16*1024")
    def issue(c):
        e(f"s_add_u32 s30, s36, {c*8192}")
        e("s_mov_b32 m0, s30")
        e(f"s_add_u32 s31, s37, {c*4*65536}")
        e("buffer_load_dwordx4 v5, s[24:27], s31 offen lds")
        e("buffer_load_dwordx4 v5, s[24:27], s31 offen offset:1024 lds")
        e(f"s_add_u32 s30, s36, {65536 + c*8192}")
        e("s_mov_b32 m0, s30")
        e(f"s_add_u32 s31, s38, {c*65536}")
        e("buffer_load_dwordx4 v6, s[20:23], s31 offen lds")
        e("buffer_load_dwordx4 v7, s[20:23], s31 offen offset:1024 lds")
    LA3 = 4
    for c in range(LA3):
        issue(c)
    for c in range(8):
        nout = min(c+LA3-1, 7) - c
        e(f"s_waitcnt vmcnt({4*nout})")
        e("s_barrier")
        if c+LA3 <= 7:
            issue(c+LA3)
    e("L_k3_end:")
    e("s_endpgm")
    out.append("")

gen_k1()
gen_k2()
gen_k3()
txt = HEADER + "\n".join(out) + "\n" + '.section .rodata,"a"\n'
for n, v in (("qkv_kernel", 160), ("attn_kernel", 232), ("oproj_kernel", 80)):
    txt += ".p2align 6\n" + kd(n, v)
dst = sys.argv[1] if len(sys.argv) > 1 else "standalone__sliding_block__prompt.s"
open(dst, "w").write(txt)
```

```python
import sys, os

K2_LDS = 32768 + 64
K1_SLOT = 32768
K1_NSLOT = 5
PF3 = int(os.environ.get('PF3', '0'))
PF1 = int(os.environ.get('PF1', '0'))
MAP2 = int(os.environ.get('MAP2', '0'))
LA = int(os.environ.get('LA', '3'))
HEADER = f"""; Kernarg layout for this problem (48 bytes, ptrs only, base s[0:1]):
; @launch kernel=qkv_kernel grid=(256,1,1) block=(512,1,1) lds={K1_SLOT*K1_NSLOT}
; @launch kernel=attn_kernel grid=(256,1,1) block=(512,1,1) lds={K2_LDS}
; @launch kernel=oproj_kernel grid=(256,1,1) block=(512,1,1) lds=131072
.amdgcn_target "amdgcn-amd-amdhsa--gfx950"
.text
"""
QB = 0
KB = 0x200000
VB = 0x400000
OB = 0x800000
WS_SIZE = 0x1000000

out = []
def e(s=""):
    out.append("    " + s if s and not s.endswith(":") else s)

def kernel_begin(name):
    out.append(f".globl {name}")
    out.append(".p2align 8")
    out.append(f".type {name},@function")
    out.append(f"{name}:")

def kd(name, vgpr, sgpr=102):
    return f""".amdhsa_kernel {name}
  .amdhsa_next_free_vgpr {vgpr}
  .amdhsa_next_free_sgpr {sgpr}
  .amdhsa_accum_offset {((vgpr+3)//4)*4}
  .amdhsa_group_segment_fixed_size 0
  .amdhsa_kernarg_size 48
  .amdhsa_user_sgpr_count 2
  .amdhsa_user_sgpr_kernarg_segment_ptr 1
  .amdhsa_system_sgpr_workgroup_id_x 1
.end_amdhsa_kernel
"""

STAMP = int(os.environ.get("STAMP", "0"))
EXP = int(os.environ.get("EXP", "0"))
STAMP_BASE = 0xC00000
STAMP_S = 90
stamp_n = [0]
def stamp():
    if not STAMP: return
    i = stamp_n[0]; stamp_n[0] += 1
    assert i < 6
    e(f"{'s_memrealtime' if STAMP==2 else 's_memtime'} s[{STAMP_S+2*i}:{STAMP_S+2*i+1}]")
def stamp_flush(kid, wave_sgpr, nw):
    if not STAMP: return
    e("s_waitcnt vmcnt(0)")
    stamp()
    n = stamp_n[0]; stamp_n[0] = 0
    e("s_waitcnt lgkmcnt(0)")
    e(f"s_mul_i32 s3, s2, {nw}")
    e(f"s_add_u32 s3, s3, s{wave_sgpr}")
    e("s_lshl_b32 s3, s3, 6")
    e(f"s_add_u32 s3, s3, {hex(STAMP_BASE + kid*0x40000)}")
    e("s_mov_b64 exec, 1")
    e("v_mov_b32 v1, 0")
    for i in range(n):
        e(f"v_mov_b32 v2, s{STAMP_S+2*i}")
        e(f"buffer_store_dword v2, v1, s[24:27], s3 offen offset:{4*i}")
    e("s_mov_b64 exec, -1")

def vr(a, n):
    return f"v[{a}:{a+n-1}]"

def srd(d, lo, hi, size):
    e(f"s_mov_b32 s{d}, s{lo}")
    e(f"s_and_b32 s{d+1}, s{hi}, 0xffff")
    e(f"s_mov_b32 s{d+2}, {hex(size)}")
    e(f"s_mov_b32 s{d+3}, 0x00020000")

def gen_k1():
    kernel_begin("qkv_kernel")
    e("s_cmp_ge_u32 s2, 256")
    e("s_cbranch_scc1 L_k1_end")
    e("s_load_dwordx4 s[4:7], s[0:1], 0")
    e("s_load_dwordx2 s[8:9], s[0:1], 40")
    e("s_and_b32 s10, s2, 7")
    e("s_lshr_b32 s11, s2, 3")
    e("s_and_b32 s12, s10, 1")
    e("s_lshl_b32 s12, s12, 2")
    e("s_and_b32 s13, s11, 3")
    e("s_add_u32 s12, s12, s13          ; nt (0..7)")
    e("s_lshr_b32 s13, s10, 1")
    e("s_lshl_b32 s13, s13, 3")
    e("s_lshr_b32 s14, s11, 2")
    e("s_add_u32 s13, s13, s14          ; mt (0..31)")
    e("v_lshrrev_b32 v1, 6, v0")
    e("v_and_b32 v2, 63, v0             ; lane")
    e("v_readfirstlane_b32 s39, v1      ; wave")
    e("v_and_b32 v3, 31, v2             ; l&31")
    e("v_lshrrev_b32 v4, 5, v2          ; h")
    e("s_and_b32 s14, s39, 3            ; w")
    e("s_lshl_b32 s15, s13, 6")
    e("s_cmp_ge_u32 s39, 4")
    e("s_cbranch_scc1 L_k1_loader")
    e("s_lshr_b32 s28, s14, 1           ; a")
    e("s_and_b32 s29, s14, 1            ; b")
    e("v_bfe_u32 v9, v2, 2, 2           ; r")
    e("v_lshl_add_u32 v10, v4, 3, v9    ; 8h+r")
    e("v_mul_u32_u24 v10, 384, v10")
    e("v_lshrrev_b32 v9, 1, v9")
    e("v_xor_b32 v9, s29, v9")
    e("v_lshl_add_u32 v10, v9, 6, v10")
    e("v_bfe_u32 v9, v2, 4, 1           ; g'")
    e("v_lshl_add_u32 v10, v9, 5, v10")
    e("v_and_b32 v9, 3, v2")
    e("v_lshl_add_u32 v20, v9, 3, v10")
    e("v_add_u32 v20, 0x2000, v20")
    e("v_bfe_u32 v9, v3, 1, 3           ; f")
    e("v_lshlrev_b32 v10, 7, v3")
    e("s_lshl_b32 s30, s28, 12")
    e("v_add_u32 v10, s30, v10")
    for k2 in range(4):
        e(f"v_add_u32 v11, {2*k2}, v4")
        e("v_xor_b32 v11, v11, v9")
        e(f"v_lshl_add_u32 v{21+k2}, v11, 4, v10")
    e("s_waitcnt lgkmcnt(0)")
    srd(24, 8, 9, WS_SIZE)
    if PF1:
        srd(16, 4, 5, 0x200000)
        srd(20, 6, 7, 0x180000)
        e("s_lshl_b32 s40, s11, 2")
        e("s_add_u32 s40, s40, s14          ; wid 0..127")
        e("s_lshr_b32 s41, s10, 1")
        e("s_lshl_b32 s41, s41, 19")
        e("s_lshl_b32 s42, s40, 12")
        e("s_add_u32 s41, s41, s42")
        e("v_lshlrev_b32 v40, 6, v2")
        e("buffer_load_dword v41, v40, s[16:19], s41 offen")
        e("v_lshrrev_b32 v40, 4, v2")
        e("v_mul_u32_u24 v40, 0xc00, v40")
        e("v_and_b32 v42, 7, v2")
        e("v_lshl_add_u32 v40, v42, 6, v40")
        e("v_bfe_u32 v42, v2, 3, 1")
        e("v_lshl_add_u32 v43, v42, 10, v40")
        e("s_mul_i32 s41, s40, 0x3000")
        e("s_and_b32 s42, s10, 1")
        e("s_lshl_b32 s42, s42, 9")
        e("s_add_u32 s41, s41, s42")
        e("buffer_load_dword v44, v43, s[20:23], s41 offen")
        e("buffer_load_dword v45, v40, s[20:23], s41 offen offset:2048")
    ACC = 64
    FR = 112
    AD = 26
    def setaddr(c):
        sl = (c % K1_NSLOT) * K1_SLOT
        for i in range(5):
            e(f"v_add_u32 v{AD+5*(c&1)+i}, {sl}, v{20+i}")
    def read_list(kk):
        b = FR + 16*(kk % 3)
        k2 = kk & 3
        ad = AD + 5*((kk//4) & 1)
        if EXP >= 2: return []
        L = [f"ds_read_b128 {vr(b,4)}, v{ad+1+k2}"]
        for j in range(3):
            for ee in range(2):
                L.append(f"ds_read_b64_tr_b16 {vr(b+4+4*j+2*ee,2)}, v{ad} offset:{k2*6144+ee*1536+j*128}")
        return L
    stamp()
    setaddr(0)
    e("s_barrier")
    stamp()
    for r in read_list(0): e(r)
    for r in read_list(1): e(r)
    for kk in range(32):
        nxt = []
        if kk+2 < 32:
            if (kk+2) % 4 == 0:
                c = (kk+2)//4
                setaddr(c)
                e("s_barrier")
                if c == 6: stamp()
            nxt = read_list(kk+2)
        e(f"s_waitcnt lgkmcnt({7 if kk+1 < 32 else 0})")
        b = FR + 16*(kk % 3)
        xf = vr(b, 4)
        for j in range(3):
            acc = vr(ACC+16*j, 16)
            cin = "0" if kk == 0 else acc
            wf = vr(b+4+4*j, 4)
            if EXP >= 2: pass
            elif j < 2:
                e(f"v_mfma_f32_32x32x16_bf16 {acc}, {wf}, {xf}, {cin}")
            else:
                e(f"v_mfma_f32_32x32x16_bf16 {acc}, {xf}, {wf}, {cin}")
            part = nxt[[0,3,5][j]:[3,5,7][j]]
            for r in part: e(r)
    stamp()
    e("v_lshlrev_b32 v5, 4, v2")
    e("s_lshl_b32 s30, s12, 1")
    e("s_add_u32 s30, s30, s29")
    e("s_lshl_b32 s30, s30, 17          ; head0*65536")
    e("s_lshl_b32 s31, s13, 1")
    e("s_add_u32 s31, s31, s28")
    e("s_lshl_b32 s31, s31, 10          ; tile*1024")
    e("s_add_u32 s30, s30, s31")
    e("s_add_u32 s31, s30, 0x10000")
    e(f"s_add_u32 s32, s30, {hex(KB)}")
    e(f"s_add_u32 s33, s31, {hex(KB)}")
    e("v_lshrrev_b32 v9, 4, v3")
    e("v_lshlrev_b32 v6, 16, v9")
    e("v_lshl_add_u32 v6, v4, 8, v6")
    e("v_and_b32 v9, 15, v3")
    e("v_lshl_add_u32 v6, v9, 4, v6")
    e(f"s_add_u32 s34, s30, {hex(VB)}")
    e("s_nop 7")
    P = 8
    for j in range(3):
        for r in range(8):
            e(f"v_cvt_pk_bf16_f32 v{P+8*j+r}, v{ACC+16*j+2*r}, v{ACC+16*j+2*r+1}")
    e(f"buffer_store_dwordx4 {vr(P,4)}, v5, s[24:27], s30 offen")
    e(f"buffer_store_dwordx4 {vr(P+4,4)}, v5, s[24:27], s31 offen")
    e(f"buffer_store_dwordx4 {vr(P+8,4)}, v5, s[24:27], s32 offen")
    e(f"buffer_store_dwordx4 {vr(P+12,4)}, v5, s[24:27], s33 offen")
    e(f"buffer_store_dwordx4 {vr(P+16,4)}, v6, s[24:27], s34 offen")
    e(f"buffer_store_dwordx4 {vr(P+20,4)}, v6, s[24:27], s34 offen offset:512")
    stamp_flush(0, 14, 4)
    e("s_endpgm")
    e("L_k1_loader:")
    e("s_lshl_b32 s28, s14, 4           ; 16w")
    e("s_add_u32 s30, s15, s28")
    e("v_lshrrev_b32 v9, 3, v2")
    e("v_add_u32 v9, s30, v9")
    e("v_lshlrev_b32 v9, 10, v9")
    e("v_and_b32 v10, 7, v2             ; pos")
    e("v_lshrrev_b32 v11, 4, v2")
    for a in range(2):
        e(f"v_add_u32 v12, {4*a}, v11")
        e("v_and_b32 v12, 7, v12")
        e("v_xor_b32 v12, v12, v10")
        e("v_lshl_add_u32 v12, v12, 4, v9")
        e(f"v_add_u32 v{16+a}, {8*a*1024 - a*1024}, v12")
    e("s_lshl_b32 s29, s12, 7           ; 128*nt")
    for j in range(3):
        e(f"v_add_u32 v9, {64*j}, v2")
        e("v_mul_u32_u24 v10, 0xaaab, v9")
        e("v_lshrrev_b32 v10, 20, v10       ; row")
        e("v_mul_u32_u24 v11, 24, v10")
        e("v_sub_u32 v11, v9, v11           ; pos")
        e("v_lshrrev_b32 v12, 3, v11        ; seg")
        e("v_and_b32 v11, 7, v11")
        e("v_bfe_u32 v13, v10, 1, 1")
        e("v_lshlrev_b32 v13, 2, v13")
        e("v_xor_b32 v11, v11, v13")
        e("v_mul_u32_u24 v10, 0xc00, v10    ; row*3072")
        e("v_lshl_add_u32 v10, v12, 10, v10")
        e("v_lshl_add_u32 v10, v11, 4, v10")
        e("v_add_u32 v10, s29, v10")
        if j:
            e(f"v_subrev_u32 v{6+j}, {1024*j}, v10")
        else:
            e(f"v_mov_b32 v6, v10")
    e("s_waitcnt lgkmcnt(0)")
    srd(16, 4, 5, 0x200000)
    srd(20, 6, 7, 0x180000)
    e("s_lshl_b32 s36, s14, 11          ; w*2048 (x lds)")
    e("s_mul_i32 s37, s14, 6144         ; w*16 rows*384")
    e("s_add_u32 s37, s37, 0x2000")
    e("s_mul_i32 s38, s14, 0xc000       ; w*16*3072 W global")
    def issue(c):
        if EXP == 1: return
        sl = (c % K1_NSLOT) * K1_SLOT
        e(f"s_add_u32 s30, s36, {sl}")
        e("s_mov_b32 m0, s30")
        e(f"s_mov_b32 s31, {c*128}")
        for a in range(2):
            e(f"buffer_load_dwordx4 v{16+a}, s[16:19], s31 offen offset:{1024*a} lds")
        for pp in range(2):
            e(f"s_add_u32 s30, s37, {sl + pp*3072}")
            e("s_mov_b32 m0, s30")
            e(f"s_add_u32 s31, s38, {(c*64+pp*8)*3072}")
            for j in range(3):
                e(f"buffer_load_dwordx4 v{6+j}, s[20:23], s31 offen offset:{1024*j} lds")
    for c in range(LA):
        issue(c)
    for c in range(8):
        nout = min(c+LA-1, 7) - c
        e(f"s_waitcnt vmcnt({8*nout})")
        e("s_barrier")
        if c+LA <= 7:
            issue(c+LA)
    e("L_k1_end:")
    e("s_endpgm")
    out.append("")

def gen_k2():
    kernel_begin("attn_kernel")
    e("s_cmp_ge_u32 s2, 256")
    e("s_cbranch_scc1 L_k2_end")
    e("s_load_dwordx2 s[8:9], s[0:1], 40")
    e("s_load_dwordx2 s[4:5], s[0:1], 16")
    e("s_and_b32 s10, s2, 7")
    e("s_lshr_b32 s11, s2, 3")
    e("s_mov_b32 s64, s11")
    if MAP2:
        e("s_and_b32 s12, s10, 1")
        e("s_lshl_b32 s12, s12, 4")
        e("s_and_b32 s13, s11, 15")
        e("s_add_u32 s12, s12, s13          ; head")
        e("s_lshr_b32 s11, s11, 4")
        e("s_and_b32 s13, s10, 6")
        e("s_add_u32 s11, s11, s13          ; j")
    else:
        e("s_lshl_b32 s12, s10, 2")
        e("s_and_b32 s13, s11, 3")
        e("s_add_u32 s12, s12, s13          ; head")
        e("s_lshr_b32 s11, s11, 2           ; j")
    e("v_lshrrev_b32 v1, 6, v0")
    e("v_and_b32 v2, 63, v0             ; lane")
    e("v_readfirstlane_b32 s14, v1      ; wave")
    e("v_and_b32 v3, 31, v2             ; l&31")
    e("v_lshrrev_b32 v4, 5, v2          ; h")
    e("s_lshl_b32 s13, s11, 3")
    e("s_add_u32 s13, s13, s14          ; b")
    e("v_lshlrev_b32 v5, 4, v2          ; lane*16")
    e("s_lshl_b32 s15, s12, 16          ; head*65536")
    e("s_lshl_b32 s16, s13, 10          ; b*1024")
    e("s_add_u32 s16, s16, s15")
    e("s_lshl_b32 s17, s11, 3")
    e("s_lshl_b32 s18, s14, 1")
    e("s_add_u32 s17, s17, s18")
    e("s_sub_u32 s17, s17, 8")
    e("s_max_i32 s17, s17, 0")
    e("s_lshl_b32 s19, s17, 10")
    e("s_add_u32 s19, s19, s15")
    e(f"s_add_u32 s20, s19, {hex(KB)}")
    e(f"s_add_u32 s21, s19, {hex(VB)}")
    e("s_lshl_b32 s22, s14, 11")
    e("s_add_u32 s23, s22, 0x4000")
    e("s_waitcnt lgkmcnt(0)")
    srd(24, 8, 9, WS_SIZE)
    S = 16
    KF = 160
    VF = 196
    QF = 212
    OA = 216
    stamp()
    e(f"buffer_load_dwordx4 {vr(QF,4)}, v5, s[24:27], s16 offen")
    e("s_mov_b32 m0, s22")
    e("s_nop 0")
    e("buffer_load_dwordx4 v5, s[24:27], s20 offen lds")
    e("buffer_load_dwordx4 v5, s[24:27], s20 offen offset:1024 lds")
    e("s_mov_b32 m0, s23")
    e("s_nop 0")
    e("buffer_load_dwordx4 v5, s[24:27], s21 offen lds")
    e("buffer_load_dwordx4 v5, s[24:27], s21 offen offset:1024 lds")
    e("v_mov_b32 v8, 0x3f803f80")
    e("v_mov_b32 v9, 0x3f803f80")
    e("v_mov_b32 v10, 0x8000")
    e("ds_write_b64 v10, v[8:9]")
    e("ds_write_b64 v10, v[8:9] offset:8")
    e("s_lshl_b32 s18, s14, 10")
    e("v_add_u32 v6, s18, v5")
    e("v_lshlrev_b32 v7, 8, v4")
    e("v_lshl_add_u32 v7, v3, 4, v7")
    e("v_add_u32 v7, s18, v7")
    e("v_add_u32 v7, 0x4000, v7")
    e("v_cmp_gt_u32 vcc, 16, v3")
    e("v_mov_b32 v11, 0x200")
    e("s_nop 0")
    e("v_cndmask_b32 v7, v10, v7, vcc")
    e("v_cndmask_b32 v14, 0, v11, vcc   ; step")
    e(f"s_add_u32 s17, s16, {hex(OB)}    ; O soffset")
    e("v_lshlrev_b32 v8, 2, v4")
    e("v_sub_u32 v8, v3, v8")
    for i in range(16):
        ci = (i & 3) + 8*(i >> 2)
        e(f"v_cmp_le_i32 s[{32+2*i}:{33+2*i}], {ci}, v8")
    e("v_mov_b32 v15, 0x3eb8aa3b        ; 0.25*log2(e)")
    if PF3:
        srd(28, 4, 5, 0x80000)
        e("s_lshl_b32 s64, s64, 3")
        e("s_add_u32 s64, s64, s14")
        e("s_lshl_b32 s64, s64, 11")
        e("v_lshlrev_b32 v253, 5, v2")
    e(f"s_waitcnt vmcnt(0) lgkmcnt(0)")
    e("s_barrier")
    stamp()
    if PF3:
        e("buffer_load_dword v252, v253, s[28:31], s64 offen")
    for t in range(9):
        e(f"ds_read_b128 {vr(KF+4*t,4)}, v6 offset:{1024*t}")
    for t in range(9):
        e(f"s_waitcnt lgkmcnt({8-t})")
        e(f"v_mfma_f32_32x32x16_bf16 {vr(S+16*t,16)}, {vr(KF+4*t,4)}, {vr(QF,4)}, 0")
    e("s_nop 7")
    e("s_nop 4")
    e("s_cmp_ge_u32 s13, 8")
    e("s_cbranch_scc1 L_k2_fix_done")
    e("v_mov_b32 v9, 0xff800000")
    for t in range(8):
        for i in range(16):
            e(f"v_mov_b32 v{S+16*t+i}, v9")
        if t < 7:
            e(f"s_cmp_ge_u32 s13, {7-t}")
            e("s_cbranch_scc1 L_k2_fix_done")
    e("L_k2_fix_done:")
    for i in range(16):
        e(f"v_cndmask_b32 v{S+128+i}, v{S+i}, v{S+128+i}, s[{32+2*i}:{33+2*i}]")
    vals = [S+16+i for i in range(128)]
    ch = [10, 11, 12, 13]
    for c in range(4):
        sub = vals[32*c:32*c+32]
        e(f"v_max3_f32 v{ch[c]}, v{sub[0]}, v{sub[1]}, v{sub[2]}")
    for step in range(14):
        for c in range(4):
            sub = vals[32*c:32*c+32]
            e(f"v_max3_f32 v{ch[c]}, v{sub[3+2*step]}, v{sub[4+2*step]}, v{ch[c]}")
    for c in range(4):
        sub = vals[32*c:32*c+32]
        e(f"v_max_f32 v{ch[c]}, v{sub[31]}, v{ch[c]}")
    e("v_max3_f32 v10, v10, v11, v12")
    e("v_max_f32 v10, v10, v13")
    e("v_mov_b32 v11, v10")
    e("s_nop 1")
    e("v_permlane32_swap_b32 v10, v11")
    e("v_max_f32 v10, v10, v11")
    e("v_mul_f32 v10, v15, v10          ; m*c")
    stamp()
    def softmax(t):
        base = S+16*t
        for i in range(16):
            e(f"v_fma_f32 v{base+i}, v{base+i}, v15, -v10")
        for i in range(16):
            e(f"v_exp_f32 v{base+i}, v{base+i}")
        if t == 8:
            for i in range(16):
                e(f"v_cndmask_b32 v{S+i}, v{base+i}, 0, s[{32+2*i}:{33+2*i}]")
            for i in range(16):
                e(f"v_cndmask_b32 v{base+i}, 0, v{base+i}, s[{32+2*i}:{33+2*i}]")
            for r in range(8):
                e(f"v_cvt_pk_bf16_f32 v{S+r}, v{S+2*r}, v{S+2*r+1}")
        for r in range(8):
            e(f"v_cvt_pk_bf16_f32 v{base+r}, v{base+2*r}, v{base+2*r+1}")
    def vread(t):
        b = VF + 8*(t & 1)
        for m in range(2):
            e(f"ds_read_b128 {vr(b+4*m,4)}, v7")
            e("v_add_u32 v7, v7, v14")
    vread(0)
    softmax(8)
    for t in range(9):
        if t+1 < 9:
            vread(t+1)
        if 1 <= t+1 <= 7:
            softmax(t+1)
        e(f"s_waitcnt lgkmcnt({2 if t+1 < 9 else 0})")
        b = VF + 8*(t & 1)
        base = S+16*t
        for m in range(2):
            cin = "0" if (t == 0 and m == 0) else vr(OA, 16)
            e(f"v_mfma_f32_32x32x16_bf16 {vr(OA,16)}, {vr(b+4*m,4)}, {vr(base+4*m,4)}, {cin}")
    stamp()
    e("s_nop 7")
    e("s_nop 7")
    e(f"v_rcp_f32 v10, v{OA+8}")
    e("s_nop 0")
    for i in range(8):
        e(f"v_mul_f32 v{OA+i}, v10, v{OA+i}")
    for r in range(4):
        e(f"v_cvt_pk_bf16_f32 v{16+r}, v{OA+2*r}, v{OA+2*r+1}")
    e(f"buffer_store_dwordx4 v[16:19], v5, s[24:27], s17 offen")
    stamp_flush(1, 14, 8)
    e("L_k2_end:")
    e("s_endpgm")
    out.append("")

def gen_k3():
    kernel_begin("oproj_kernel")
    e("s_cmp_ge_u32 s2, 256")
    e("s_cbranch_scc1 L_k3_end")
    e("s_load_dwordx4 s[4:7], s[0:1], 16")
    e("s_load_dwordx2 s[8:9], s[0:1], 40")
    e("s_and_b32 s10, s2, 7")
    e("s_lshr_b32 s11, s2, 3")
    if MAP2:
        e("s_lshr_b32 s13, s10, 1")
        e("s_lshl_b32 s13, s13, 3")
        e("s_and_b32 s12, s11, 7")
        e("s_add_u32 s13, s13, s12          ; mt (0..31)")
        e("s_lshr_b32 s12, s11, 3")
        e("s_and_b32 s11, s10, 1")
        e("s_lshl_b32 s11, s11, 2")
        e("s_add_u32 s12, s12, s11          ; nt (0..7)")
    else:
        e("s_lshl_b32 s13, s10, 2")
        e("s_and_b32 s12, s11, 3")
        e("s_add_u32 s13, s13, s12          ; mt (0..31)")
        e("s_lshr_b32 s12, s11, 2           ; nt (0..7)")
    e("v_lshrrev_b32 v1, 6, v0")
    e("v_and_b32 v2, 63, v0             ; lane")
    e("v_readfirstlane_b32 s39, v1      ; wave")
    e("v_and_b32 v3, 31, v2             ; l&31")
    e("v_lshrrev_b32 v4, 5, v2          ; h")
    e("s_and_b32 s14, s39, 3")
    e("v_lshlrev_b32 v5, 4, v2          ; lane*16")
    e("s_cmp_ge_u32 s39, 4")
    e("s_cbranch_scc1 L_k3_loader")
    e("s_lshr_b32 s28, s14, 1           ; a")
    e("s_and_b32 s29, s14, 1            ; b")
    e("s_lshl_b32 s30, s28, 10")
    e("v_add_u32 v12, s30, v5")
    e("v_bfe_u32 v9, v2, 2, 2           ; r")
    e("v_lshl_add_u32 v10, v4, 2, v9    ; 4h+r")
    e("v_lshlrev_b32 v10, 7, v10")
    e("v_lshrrev_b32 v9, 1, v9")
    e("v_xor_b32 v9, s29, v9")
    e("v_lshl_add_u32 v10, v9, 6, v10")
    e("v_bfe_u32 v9, v2, 4, 1           ; g'")
    e("v_lshl_add_u32 v10, v9, 5, v10")
    e("v_and_b32 v9, 3, v2")
    e("v_lshl_add_u32 v13, v9, 3, v10")
    e("v_add_u32 v13, 0x10000, v13")
    e("v_add_u32 v14, 0x8000, v13")
    e("v_add_u32 v15, 0x8000, v12")
    e("s_waitcnt lgkmcnt(0)")
    srd(16, 6, 7, 0x200000)
    srd(24, 8, 9, WS_SIZE)
    ACC = 64
    FR = 32
    def read_list(kk):
        b = FR + 8*(kk % 3)
        k2 = kk & 15
        L = [f"ds_read_b128 {vr(b,4)}, {'v12' if kk < 16 else 'v15'} offset:{k2*2048}"]
        for ee in range(2):
            L.append(f"ds_read_b64_tr_b16 {vr(b+4+2*ee,2)}, {'v13' if kk < 16 else 'v14'} offset:{k2*2048+ee*1024}")
        return L
    stamp()
    e("s_barrier")
    stamp()
    for r in read_list(0): e(r)
    for r in read_list(1): e(r)
    for kk in range(32):
        nxt = []
        if kk+2 < 32:
            if (kk+2) % 4 == 0:
                e("s_barrier")
                if kk+2 == 24: stamp()
            nxt = read_list(kk+2)
        e(f"s_waitcnt lgkmcnt({3 if kk+1 < 32 else 0})")
        b = FR + 8*(kk % 3)
        acc = vr(ACC, 16)
        cin = "0" if kk == 0 else acc
        e(f"v_mfma_f32_32x32x16_bf16 {acc}, {vr(b+4,4)}, {vr(b,4)}, {cin}")
        for r in nxt: e(r)
    stamp()
    e("s_lshl_b32 s30, s13, 1")
    e("s_add_u32 s30, s30, s28")
    e("s_lshl_b32 s30, s30, 5")
    e("v_add_u32 v5, s30, v3")
    e("v_lshlrev_b32 v5, 10, v5")
    e("v_lshl_add_u32 v5, v4, 3, v5")
    e("s_lshl_b32 s30, s12, 1")
    e("s_add_u32 s30, s30, s29")
    e("s_lshl_b32 s30, s30, 6")
    e("v_add_u32 v5, s30, v5")
    e("s_nop 7")
    e("s_nop 3")
    for r in range(8):
        e(f"v_cvt_pk_bf16_f32 v{16+r}, v{ACC+2*r}, v{ACC+2*r+1}")
    for g in range(4):
        e(f"buffer_store_dwordx2 {vr(16+2*g,2)}, v5, s[16:19], 0 offen offset:{16*g}")
    stamp_flush(2, 14, 4)
    e("s_endpgm")
    e("L_k3_loader:")
    e("v_lshrrev_b32 v9, 3, v2")
    e("v_and_b32 v10, 7, v2")
    e("v_bfe_u32 v11, v2, 4, 1")
    e("v_lshlrev_b32 v11, 2, v11")
    e("v_xor_b32 v10, v10, v11")
    e("v_lshlrev_b32 v9, 10, v9")
    e("v_lshl_add_u32 v9, v10, 4, v9")
    e("s_lshl_b32 s29, s12, 7")
    e("v_add_u32 v6, s29, v9")
    e(f"v_add_u32 v7, {8*1024-1024}, v6")
    e("s_waitcnt lgkmcnt(0)")
    srd(20, 4, 5, 0x80000)
    srd(24, 8, 9, WS_SIZE)
    e("s_lshl_b32 s36, s14, 11")
    e("s_lshl_b32 s37, s14, 16")
    e("s_lshl_b32 s30, s13, 11")
    e("s_add_u32 s37, s37, s30")
    e(f"s_add_u32 s37, s37, {hex(OB)}")
    e("s_lshl_b32 s38, s14, 14          ; W global w*16*1024")
    def issue(c):
        e(f"s_add_u32 s30, s36, {c*8192}")
        e("s_mov_b32 m0, s30")
        e(f"s_add_u32 s31, s37, {c*4*65536}")
        e("buffer_load_dwordx4 v5, s[24:27], s31 offen lds")
        e("buffer_load_dwordx4 v5, s[24:27], s31 offen offset:1024 lds")
        e(f"s_add_u32 s30, s36, {65536 + c*8192}")
        e("s_mov_b32 m0, s30")
        e(f"s_add_u32 s31, s38, {c*65536}")
        e("buffer_load_dwordx4 v6, s[20:23], s31 offen lds")
        e("buffer_load_dwordx4 v7, s[20:23], s31 offen offset:1024 lds")
    LA3 = 4
    for c in range(LA3):
        issue(c)
    for c in range(8):
        nout = min(c+LA3-1, 7) - c
        e(f"s_waitcnt vmcnt({4*nout})")
        e("s_barrier")
        if c+LA3 <= 7:
            issue(c+LA3)
    e("L_k3_end:")
    e("s_endpgm")
    out.append("")

gen_k1()
gen_k2()
gen_k3()
txt = HEADER + "\n".join(out) + "\n" + '.section .rodata,"a"\n'
for n, v in (("qkv_kernel", 160), ("attn_kernel", 256), ("oproj_kernel", 80)):
    txt += ".p2align 6\n" + kd(n, v)
dst = sys.argv[1] if len(sys.argv) > 1 else "standalone__sliding_block__prompt.s"
open(dst, "w").write(txt)
```

```python
import sys, os

K2_LDS = 32768 + 64
K1_SLOT = 32768
K1_NSLOT = 5
PF3 = int(os.environ.get('PF3', '0'))
PF1 = int(os.environ.get('PF1', '0'))
MAP2 = int(os.environ.get('MAP2', '0'))
LA = int(os.environ.get('LA', '3'))
HEADER = f"""; Kernarg layout for this problem (48 bytes, ptrs only, base s[0:1]):
; @launch kernel=qkv_kernel grid=(256,1,1) block=(512,1,1) lds={K1_SLOT*K1_NSLOT}
; @launch kernel=attn_kernel grid=(256,1,1) block=(512,1,1) lds={K2_LDS}
; @launch kernel=oproj_kernel grid=(256,1,1) block=(512,1,1) lds=131072
.amdgcn_target "amdgcn-amd-amdhsa--gfx950"
.text
"""
QB = 0
KB = 0x200000
VB = 0x400000
OB = 0x800000
WS_SIZE = 0x1000000

out = []
def e(s=""):
    out.append("    " + s if s and not s.endswith(":") else s)

DBG = int(os.environ.get("DBG", "0"))
def kernel_begin(name):
    out.append(f".globl {name}")
    out.append(".p2align 8")
    out.append(f".type {name},@function")
    out.append(f"{name}:")
    if DBG:
        e("s_memrealtime s[96:97]")
        e("s_load_dwordx2 s[98:99], s[0:1], 32")
def dbg_end(kid):
    if not DBG: return
    e("s_waitcnt vmcnt(0)")
    e("s_memrealtime s[100:101]")
    e("s_waitcnt lgkmcnt(0)")
    e(f"s_sub_u32 s98, s98, {512*kid}")
    e("s_subb_u32 s99, s99, 0")
    e("s_mov_b32 s92, s98")
    e("s_and_b32 s93, s99, 0xffff")
    e("s_mov_b32 s94, 256")
    e("s_mov_b32 s95, 0x20000")
    e("s_mov_b64 exec, 1")
    e("v_mov_b32 v1, 0")
    e("s_not_b32 s96, s96")
    e("v_mov_b32 v2, s96")
    e("v_mov_b32 v3, s100")
    e(f"buffer_atomic_umax v2, v1, s[92:95], 0 offen offset:{8*kid}")
    e(f"buffer_atomic_umax v3, v1, s[92:95], 0 offen offset:{8*kid+4}")
    e("s_mov_b64 exec, -1")

def kd(name, vgpr, sgpr=102):
    return f""".amdhsa_kernel {name}
  .amdhsa_next_free_vgpr {vgpr}
  .amdhsa_next_free_sgpr {sgpr}
  .amdhsa_accum_offset {((vgpr+3)//4)*4}
  .amdhsa_group_segment_fixed_size 0
  .amdhsa_kernarg_size 48
  .amdhsa_user_sgpr_count 2
  .amdhsa_user_sgpr_kernarg_segment_ptr 1
  .amdhsa_system_sgpr_workgroup_id_x 1
.end_amdhsa_kernel
"""

STAMP = int(os.environ.get("STAMP", "0"))
EXP = int(os.environ.get("EXP", "0"))
STAMP_BASE = 0xC00000
STAMP_S = 90
stamp_n = [0]
def stamp():
    if not STAMP: return
    i = stamp_n[0]; stamp_n[0] += 1
    assert i < 6
    e(f"{'s_memrealtime' if STAMP==2 else 's_memtime'} s[{STAMP_S+2*i}:{STAMP_S+2*i+1}]")
def stamp_flush(kid, wave_sgpr, nw):
    if not STAMP: return
    e("s_waitcnt vmcnt(0)")
    stamp()
    n = stamp_n[0]; stamp_n[0] = 0
    e("s_waitcnt lgkmcnt(0)")
    e(f"s_mul_i32 s3, s2, {nw}")
    e(f"s_add_u32 s3, s3, s{wave_sgpr}")
    e("s_lshl_b32 s3, s3, 6")
    e(f"s_add_u32 s3, s3, {hex(STAMP_BASE + kid*0x40000)}")
    e("s_mov_b64 exec, 1")
    e("v_mov_b32 v1, 0")
    for i in range(n):
        e(f"v_mov_b32 v2, s{STAMP_S+2*i}")
        e(f"buffer_store_dword v2, v1, s[24:27], s3 offen offset:{4*i}")
    e("s_mov_b64 exec, -1")

def vr(a, n):
    return f"v[{a}:{a+n-1}]"

def srd(d, lo, hi, size):
    e(f"s_mov_b32 s{d}, s{lo}")
    e(f"s_and_b32 s{d+1}, s{hi}, 0xffff")
    e(f"s_mov_b32 s{d+2}, {hex(size)}")
    e(f"s_mov_b32 s{d+3}, 0x00020000")

def gen_k1():
    kernel_begin("qkv_kernel")
    e("s_cmp_ge_u32 s2, 256")
    e("s_cbranch_scc1 L_k1_end")
    e("s_load_dwordx4 s[4:7], s[0:1], 0")
    e("s_load_dwordx2 s[8:9], s[0:1], 40")
    e("s_and_b32 s10, s2, 7")
    e("s_lshr_b32 s11, s2, 3")
    e("s_and_b32 s12, s10, 1")
    e("s_lshl_b32 s12, s12, 2")
    e("s_and_b32 s13, s11, 3")
    e("s_add_u32 s12, s12, s13          ; nt (0..7)")
    e("s_lshr_b32 s13, s10, 1")
    e("s_lshl_b32 s13, s13, 3")
    e("s_lshr_b32 s14, s11, 2")
    e("s_add_u32 s13, s13, s14          ; mt (0..31)")
    e("v_lshrrev_b32 v1, 6, v0")
    e("v_and_b32 v2, 63, v0             ; lane")
    e("v_readfirstlane_b32 s39, v1      ; wave")
    e("v_and_b32 v3, 31, v2             ; l&31")
    e("v_lshrrev_b32 v4, 5, v2          ; h")
    e("s_and_b32 s14, s39, 3            ; w")
    e("s_lshl_b32 s15, s13, 6")
    e("s_cmp_ge_u32 s39, 4")
    e("s_cbranch_scc1 L_k1_loader")
    e("s_lshr_b32 s28, s14, 1           ; a")
    e("s_and_b32 s29, s14, 1            ; b")
    e("v_bfe_u32 v9, v2, 2, 2           ; r")
    e("v_lshl_add_u32 v10, v4, 3, v9    ; 8h+r")
    e("v_mul_u32_u24 v10, 384, v10")
    e("v_lshrrev_b32 v9, 1, v9")
    e("v_xor_b32 v9, s29, v9")
    e("v_lshl_add_u32 v10, v9, 6, v10")
    e("v_bfe_u32 v9, v2, 4, 1           ; g'")
    e("v_lshl_add_u32 v10, v9, 5, v10")
    e("v_and_b32 v9, 3, v2")
    e("v_lshl_add_u32 v20, v9, 3, v10")
    e("v_add_u32 v20, 0x2000, v20")
    e("v_bfe_u32 v9, v3, 1, 3           ; f")
    e("v_lshlrev_b32 v10, 7, v3")
    e("s_lshl_b32 s30, s28, 12")
    e("v_add_u32 v10, s30, v10")
    for k2 in range(4):
        e(f"v_add_u32 v11, {2*k2}, v4")
        e("v_xor_b32 v11, v11, v9")
        e(f"v_lshl_add_u32 v{21+k2}, v11, 4, v10")
    e("s_waitcnt lgkmcnt(0)")
    srd(24, 8, 9, WS_SIZE)
    if PF1:
        srd(16, 4, 5, 0x200000)
        srd(20, 6, 7, 0x180000)
        e("s_lshl_b32 s40, s11, 2")
        e("s_add_u32 s40, s40, s14          ; wid 0..127")
        e("s_lshr_b32 s41, s10, 1")
        e("s_lshl_b32 s41, s41, 19")
        e("s_lshl_b32 s42, s40, 12")
        e("s_add_u32 s41, s41, s42")
        e("v_lshlrev_b32 v40, 6, v2")
        e("buffer_load_dword v41, v40, s[16:19], s41 offen")
        e("v_lshrrev_b32 v40, 4, v2")
        e("v_mul_u32_u24 v40, 0xc00, v40")
        e("v_and_b32 v42, 7, v2")
        e("v_lshl_add_u32 v40, v42, 6, v40")
        e("v_bfe_u32 v42, v2, 3, 1")
        e("v_lshl_add_u32 v43, v42, 10, v40")
        e("s_mul_i32 s41, s40, 0x3000")
        e("s_and_b32 s42, s10, 1")
        e("s_lshl_b32 s42, s42, 9")
        e("s_add_u32 s41, s41, s42")
        e("buffer_load_dword v44, v43, s[20:23], s41 offen")
        e("buffer_load_dword v45, v40, s[20:23], s41 offen offset:2048")
    ACC = 64
    FR = 112
    AD = 26
    def setaddr(c):
        sl = (c % K1_NSLOT) * K1_SLOT
        for i in range(5):
            e(f"v_add_u32 v{AD+5*(c&1)+i}, {sl}, v{20+i}")
    def read_list(kk):
        b = FR + 16*(kk % 3)
        k2 = kk & 3
        ad = AD + 5*((kk//4) & 1)
        if EXP >= 2: return []
        L = [f"ds_read_b128 {vr(b,4)}, v{ad+1+k2}"]
        for j in range(3):
            for ee in range(2):
                L.append(f"ds_read_b64_tr_b16 {vr(b+4+4*j+2*ee,2)}, v{ad} offset:{k2*6144+ee*1536+j*128}")
        return L
    stamp()
    setaddr(0)
    e("s_barrier")
    stamp()
    for r in read_list(0): e(r)
    for r in read_list(1): e(r)
    for kk in range(32):
        nxt = []
        if kk+2 < 32:
            if (kk+2) % 4 == 0:
                c = (kk+2)//4
                setaddr(c)
                e("s_barrier")
                if c == 6: stamp()
            nxt = read_list(kk+2)
        e(f"s_waitcnt lgkmcnt({7 if kk+1 < 32 else 0})")
        b = FR + 16*(kk % 3)
        xf = vr(b, 4)
        for j in range(3):
            acc = vr(ACC+16*j, 16)
            cin = "0" if kk == 0 else acc
            wf = vr(b+4+4*j, 4)
            if EXP >= 2: pass
            elif j < 2:
                e(f"v_mfma_f32_32x32x16_bf16 {acc}, {wf}, {xf}, {cin}")
            else:
                e(f"v_mfma_f32_32x32x16_bf16 {acc}, {xf}, {wf}, {cin}")
            part = nxt[[0,3,5][j]:[3,5,7][j]]
            for r in part: e(r)
    stamp()
    e("v_lshlrev_b32 v5, 4, v2")
    e("s_lshl_b32 s30, s12, 1")
    e("s_add_u32 s30, s30, s29")
    e("s_lshl_b32 s30, s30, 17          ; head0*65536")
    e("s_lshl_b32 s31, s13, 1")
    e("s_add_u32 s31, s31, s28")
    e("s_lshl_b32 s31, s31, 10          ; tile*1024")
    e("s_add_u32 s30, s30, s31")
    e("s_add_u32 s31, s30, 0x10000")
    e(f"s_add_u32 s32, s30, {hex(KB)}")
    e(f"s_add_u32 s33, s31, {hex(KB)}")
    e("v_lshrrev_b32 v9, 4, v3")
    e("v_lshlrev_b32 v6, 16, v9")
    e("v_lshl_add_u32 v6, v4, 8, v6")
    e("v_and_b32 v9, 15, v3")
    e("v_lshl_add_u32 v6, v9, 4, v6")
    e(f"s_add_u32 s34, s30, {hex(VB)}")
    e("s_nop 7")
    P = 8
    for j in range(3):
        for r in range(8):
            e(f"v_cvt_pk_bf16_f32 v{P+8*j+r}, v{ACC+16*j+2*r}, v{ACC+16*j+2*r+1}")
    e(f"buffer_store_dwordx4 {vr(P,4)}, v5, s[24:27], s30 offen")
    e(f"buffer_store_dwordx4 {vr(P+4,4)}, v5, s[24:27], s31 offen")
    e(f"buffer_store_dwordx4 {vr(P+8,4)}, v5, s[24:27], s32 offen")
    e(f"buffer_store_dwordx4 {vr(P+12,4)}, v5, s[24:27], s33 offen")
    e(f"buffer_store_dwordx4 {vr(P+16,4)}, v6, s[24:27], s34 offen")
    e(f"buffer_store_dwordx4 {vr(P+20,4)}, v6, s[24:27], s34 offen offset:512")
    stamp_flush(0, 14, 4)
    dbg_end(0)
    e("s_endpgm")
    e("L_k1_loader:")
    e("s_lshl_b32 s28, s14, 4           ; 16w")
    e("s_add_u32 s30, s15, s28")
    e("v_lshrrev_b32 v9, 3, v2")
    e("v_add_u32 v9, s30, v9")
    e("v_lshlrev_b32 v9, 10, v9")
    e("v_and_b32 v10, 7, v2             ; pos")
    e("v_lshrrev_b32 v11, 4, v2")
    for a in range(2):
        e(f"v_add_u32 v12, {4*a}, v11")
        e("v_and_b32 v12, 7, v12")
        e("v_xor_b32 v12, v12, v10")
        e("v_lshl_add_u32 v12, v12, 4, v9")
        e(f"v_add_u32 v{16+a}, {8*a*1024 - a*1024}, v12")
    e("s_lshl_b32 s29, s12, 7           ; 128*nt")
    for j in range(3):
        e(f"v_add_u32 v9, {64*j}, v2")
        e("v_mul_u32_u24 v10, 0xaaab, v9")
        e("v_lshrrev_b32 v10, 20, v10       ; row")
        e("v_mul_u32_u24 v11, 24, v10")
        e("v_sub_u32 v11, v9, v11           ; pos")
        e("v_lshrrev_b32 v12, 3, v11        ; seg")
        e("v_and_b32 v11, 7, v11")
        e("v_bfe_u32 v13, v10, 1, 1")
        e("v_lshlrev_b32 v13, 2, v13")
        e("v_xor_b32 v11, v11, v13")
        e("v_mul_u32_u24 v10, 0xc00, v10    ; row*3072")
        e("v_lshl_add_u32 v10, v12, 10, v10")
        e("v_lshl_add_u32 v10, v11, 4, v10")
        e("v_add_u32 v10, s29, v10")
        if j:
            e(f"v_subrev_u32 v{6+j}, {1024*j}, v10")
        else:
            e(f"v_mov_b32 v6, v10")
    e("s_waitcnt lgkmcnt(0)")
    srd(16, 4, 5, 0x200000)
    srd(20, 6, 7, 0x180000)
    e("s_lshl_b32 s36, s14, 11          ; w*2048 (x lds)")
    e("s_mul_i32 s37, s14, 6144         ; w*16 rows*384")
    e("s_add_u32 s37, s37, 0x2000")
    e("s_mul_i32 s38, s14, 0xc000       ; w*16*3072 W global")
    def issue(c):
        if EXP == 1: return
        sl = (c % K1_NSLOT) * K1_SLOT
        e(f"s_add_u32 s30, s36, {sl}")
        e("s_mov_b32 m0, s30")
        e(f"s_mov_b32 s31, {c*128}")
        for a in range(2):
            e(f"buffer_load_dwordx4 v{16+a}, s[16:19], s31 offen offset:{1024*a} lds")
        for pp in range(2):
            e(f"s_add_u32 s30, s37, {sl + pp*3072}")
            e("s_mov_b32 m0, s30")
            e(f"s_add_u32 s31, s38, {(c*64+pp*8)*3072}")
            for j in range(3):
                e(f"buffer_load_dwordx4 v{6+j}, s[20:23], s31 offen offset:{1024*j} lds")
    for c in range(LA):
        issue(c)
    for c in range(8):
        nout = min(c+LA-1, 7) - c
        e(f"s_waitcnt vmcnt({8*nout})")
        e("s_barrier")
        if c+LA <= 7:
            issue(c+LA)
    e("L_k1_end:")
    e("s_endpgm")
    out.append("")

def gen_k2():
    kernel_begin("attn_kernel")
    e("s_cmp_ge_u32 s2, 256")
    e("s_cbranch_scc1 L_k2_end")
    e("s_load_dwordx2 s[8:9], s[0:1], 40")
    e("s_load_dwordx2 s[4:5], s[0:1], 16")
    e("s_and_b32 s10, s2, 7")
    e("s_lshr_b32 s11, s2, 3")
    e("s_mov_b32 s64, s11")
    if MAP2:
        e("s_and_b32 s12, s10, 1")
        e("s_lshl_b32 s12, s12, 4")
        e("s_and_b32 s13, s11, 15")
        e("s_add_u32 s12, s12, s13          ; head")
        e("s_lshr_b32 s11, s11, 4")
        e("s_and_b32 s13, s10, 6")
        e("s_add_u32 s11, s11, s13          ; j")
    else:
        e("s_lshl_b32 s12, s10, 2")
        e("s_and_b32 s13, s11, 3")
        e("s_add_u32 s12, s12, s13          ; head")
        e("s_lshr_b32 s11, s11, 2           ; j")
    e("v_lshrrev_b32 v1, 6, v0")
    e("v_and_b32 v2, 63, v0             ; lane")
    e("v_readfirstlane_b32 s14, v1      ; wave")
    e("v_and_b32 v3, 31, v2             ; l&31")
    e("v_lshrrev_b32 v4, 5, v2          ; h")
    e("s_lshl_b32 s13, s11, 3")
    e("s_add_u32 s13, s13, s14          ; b")
    e("v_lshlrev_b32 v5, 4, v2          ; lane*16")
    e("s_lshl_b32 s15, s12, 16          ; head*65536")
    e("s_lshl_b32 s16, s13, 10          ; b*1024")
    e("s_add_u32 s16, s16, s15")
    e("s_lshl_b32 s17, s11, 3")
    e("s_lshl_b32 s18, s14, 1")
    e("s_add_u32 s17, s17, s18")
    e("s_sub_u32 s17, s17, 8")
    e("s_max_i32 s17, s17, 0")
    e("s_lshl_b32 s19, s17, 10")
    e("s_add_u32 s19, s19, s15")
    e(f"s_add_u32 s20, s19, {hex(KB)}")
    e(f"s_add_u32 s21, s19, {hex(VB)}")
    e("s_lshl_b32 s22, s14, 11")
    e("s_add_u32 s23, s22, 0x4000")
    e("s_waitcnt lgkmcnt(0)")
    srd(24, 8, 9, WS_SIZE)
    S = 16
    KF = 160
    VF = 196
    QF = 212
    OA = 216
    stamp()
    e(f"buffer_load_dwordx4 {vr(QF,4)}, v5, s[24:27], s16 offen")
    e("s_mov_b32 m0, s22")
    e("s_nop 0")
    e("buffer_load_dwordx4 v5, s[24:27], s20 offen lds")
    e("buffer_load_dwordx4 v5, s[24:27], s20 offen offset:1024 lds")
    e("s_mov_b32 m0, s23")
    e("s_nop 0")
    e("buffer_load_dwordx4 v5, s[24:27], s21 offen lds")
    e("buffer_load_dwordx4 v5, s[24:27], s21 offen offset:1024 lds")
    e("v_mov_b32 v8, 0x3f803f80")
    e("v_mov_b32 v9, 0x3f803f80")
    e("v_mov_b32 v10, 0x8000")
    e("ds_write_b64 v10, v[8:9]")
    e("ds_write_b64 v10, v[8:9] offset:8")
    e("s_lshl_b32 s18, s14, 10")
    e("v_add_u32 v6, s18, v5")
    e("v_lshlrev_b32 v7, 8, v4")
    e("v_lshl_add_u32 v7, v3, 4, v7")
    e("v_add_u32 v7, s18, v7")
    e("v_add_u32 v7, 0x4000, v7")
    e("v_cmp_gt_u32 vcc, 16, v3")
    e("v_mov_b32 v11, 0x200")
    e("s_nop 0")
    e("v_cndmask_b32 v7, v10, v7, vcc")
    e("v_cndmask_b32 v14, 0, v11, vcc   ; step")
    e(f"s_add_u32 s17, s16, {hex(OB)}    ; O soffset")
    e("v_lshlrev_b32 v8, 2, v4")
    e("v_sub_u32 v8, v3, v8")
    for i in range(16):
        ci = (i & 3) + 8*(i >> 2)
        e(f"v_cmp_le_i32 s[{32+2*i}:{33+2*i}], {ci}, v8")
    e("v_mov_b32 v15, 0x3eb8aa3b        ; 0.25*log2(e)")
    if PF3:
        srd(28, 4, 5, 0x80000)
        e("s_lshl_b32 s64, s64, 3")
        e("s_add_u32 s64, s64, s14")
        e("s_lshl_b32 s64, s64, 11")
        e("v_lshlrev_b32 v253, 5, v2")
    e(f"s_waitcnt vmcnt(0) lgkmcnt(0)")
    e("s_barrier")
    stamp()
    if PF3:
        e("buffer_load_dword v252, v253, s[28:31], s64 offen")
    for t in range(9):
        e(f"ds_read_b128 {vr(KF+4*t,4)}, v6 offset:{1024*t}")
    for t in range(9):
        e(f"s_waitcnt lgkmcnt({8-t})")
        e(f"v_mfma_f32_32x32x16_bf16 {vr(S+16*t,16)}, {vr(KF+4*t,4)}, {vr(QF,4)}, 0")
    e("s_nop 7")
    e("s_nop 4")
    e("s_cmp_ge_u32 s13, 8")
    e("s_cbranch_scc1 L_k2_fix_done")
    e("v_mov_b32 v9, 0xff800000")
    for t in range(8):
        for i in range(16):
            e(f"v_mov_b32 v{S+16*t+i}, v9")
        if t < 7:
            e(f"s_cmp_ge_u32 s13, {7-t}")
            e("s_cbranch_scc1 L_k2_fix_done")
    e("L_k2_fix_done:")
    for i in range(16):
        e(f"v_cndmask_b32 v{S+128+i}, v{S+i}, v{S+128+i}, s[{32+2*i}:{33+2*i}]")
    vals = [S+16+i for i in range(128)]
    ch = [10, 11, 12, 13]
    for c in range(4):
        sub = vals[32*c:32*c+32]
        e(f"v_max3_f32 v{ch[c]}, v{sub[0]}, v{sub[1]}, v{sub[2]}")
    for step in range(14):
        for c in range(4):
            sub = vals[32*c:32*c+32]
            e(f"v_max3_f32 v{ch[c]}, v{sub[3+2*step]}, v{sub[4+2*step]}, v{ch[c]}")
    for c in range(4):
        sub = vals[32*c:32*c+32]
        e(f"v_max_f32 v{ch[c]}, v{sub[31]}, v{ch[c]}")
    e("v_max3_f32 v10, v10, v11, v12")
    e("v_max_f32 v10, v10, v13")
    e("v_mov_b32 v11, v10")
    e("s_nop 1")
    e("v_permlane32_swap_b32 v10, v11")
    e("v_max_f32 v10, v10, v11")
    e("v_mul_f32 v10, v15, v10          ; m*c")
    stamp()
    def softmax(t):
        base = S+16*t
        for i in range(16):
            e(f"v_fma_f32 v{base+i}, v{base+i}, v15, -v10")
        for i in range(16):
            e(f"v_exp_f32 v{base+i}, v{base+i}")
        if t == 8:
            for i in range(16):
                e(f"v_cndmask_b32 v{S+i}, v{base+i}, 0, s[{32+2*i}:{33+2*i}]")
            for i in range(16):
                e(f"v_cndmask_b32 v{base+i}, 0, v{base+i}, s[{32+2*i}:{33+2*i}]")
            for r in range(8):
                e(f"v_cvt_pk_bf16_f32 v{S+r}, v{S+2*r}, v{S+2*r+1}")
        for r in range(8):
            e(f"v_cvt_pk_bf16_f32 v{base+r}, v{base+2*r}, v{base+2*r+1}")
    def vread(t):
        b = VF + 8*(t & 1)
        for m in range(2):
            e(f"ds_read_b128 {vr(b+4*m,4)}, v7")
            e("v_add_u32 v7, v7, v14")
    vread(0)
    softmax(8)
    for t in range(9):
        if t+1 < 9:
            vread(t+1)
        if 1 <= t+1 <= 7:
            softmax(t+1)
        e(f"s_waitcnt lgkmcnt({2 if t+1 < 9 else 0})")
        b = VF + 8*(t & 1)
        base = S+16*t
        for m in range(2):
            cin = "0" if (t == 0 and m == 0) else vr(OA, 16)
            e(f"v_mfma_f32_32x32x16_bf16 {vr(OA,16)}, {vr(b+4*m,4)}, {vr(base+4*m,4)}, {cin}")
    stamp()
    e("s_nop 7")
    e("s_nop 7")
    e(f"v_rcp_f32 v10, v{OA+8}")
    e("s_nop 0")
    for i in range(8):
        e(f"v_mul_f32 v{OA+i}, v10, v{OA+i}")
    for r in range(4):
        e(f"v_cvt_pk_bf16_f32 v{16+r}, v{OA+2*r}, v{OA+2*r+1}")
    e(f"buffer_store_dwordx4 v[16:19], v5, s[24:27], s17 offen")
    stamp_flush(1, 14, 8)
    dbg_end(1)
    e("L_k2_end:")
    e("s_endpgm")
    out.append("")

def gen_k3():
    kernel_begin("oproj_kernel")
    e("s_cmp_ge_u32 s2, 256")
    e("s_cbranch_scc1 L_k3_end")
    e("s_load_dwordx4 s[4:7], s[0:1], 16")
    e("s_load_dwordx2 s[8:9], s[0:1], 40")
    e("s_and_b32 s10, s2, 7")
    e("s_lshr_b32 s11, s2, 3")
    if MAP2:
        e("s_lshr_b32 s13, s10, 1")
        e("s_lshl_b32 s13, s13, 3")
        e("s_and_b32 s12, s11, 7")
        e("s_add_u32 s13, s13, s12          ; mt (0..31)")
        e("s_lshr_b32 s12, s11, 3")
        e("s_and_b32 s11, s10, 1")
        e("s_lshl_b32 s11, s11, 2")
        e("s_add_u32 s12, s12, s11          ; nt (0..7)")
    else:
        e("s_lshl_b32 s13, s10, 2")
        e("s_and_b32 s12, s11, 3")
        e("s_add_u32 s13, s13, s12          ; mt (0..31)")
        e("s_lshr_b32 s12, s11, 2           ; nt (0..7)")
    e("v_lshrrev_b32 v1, 6, v0")
    e("v_and_b32 v2, 63, v0             ; lane")
    e("v_readfirstlane_b32 s39, v1      ; wave")
    e("v_and_b32 v3, 31, v2             ; l&31")
    e("v_lshrrev_b32 v4, 5, v2          ; h")
    e("s_and_b32 s14, s39, 3")
    e("v_lshlrev_b32 v5, 4, v2          ; lane*16")
    e("s_cmp_ge_u32 s39, 4")
    e("s_cbranch_scc1 L_k3_loader")
    e("s_lshr_b32 s28, s14, 1           ; a")
    e("s_and_b32 s29, s14, 1            ; b")
    e("s_lshl_b32 s30, s28, 10")
    e("v_add_u32 v12, s30, v5")
    e("v_bfe_u32 v9, v2, 2, 2           ; r")
    e("v_lshl_add_u32 v10, v4, 2, v9    ; 4h+r")
    e("v_lshlrev_b32 v10, 7, v10")
    e("v_lshrrev_b32 v9, 1, v9")
    e("v_xor_b32 v9, s29, v9")
    e("v_lshl_add_u32 v10, v9, 6, v10")
    e("v_bfe_u32 v9, v2, 4, 1           ; g'")
    e("v_lshl_add_u32 v10, v9, 5, v10")
    e("v_and_b32 v9, 3, v2")
    e("v_lshl_add_u32 v13, v9, 3, v10")
    e("v_add_u32 v13, 0x10000, v13")
    e("v_add_u32 v14, 0x8000, v13")
    e("v_add_u32 v15, 0x8000, v12")
    e("s_waitcnt lgkmcnt(0)")
    srd(16, 6, 7, 0x200000)
    srd(24, 8, 9, WS_SIZE)
    ACC = 64
    FR = 32
    def read_list(kk):
        b = FR + 8*(kk % 3)
        k2 = kk & 15
        L = [f"ds_read_b128 {vr(b,4)}, {'v12' if kk < 16 else 'v15'} offset:{k2*2048}"]
        for ee in range(2):
            L.append(f"ds_read_b64_tr_b16 {vr(b+4+2*ee,2)}, {'v13' if kk < 16 else 'v14'} offset:{k2*2048+ee*1024}")
        return L
    stamp()
    e("s_barrier")
    stamp()
    for r in read_list(0): e(r)
    for r in read_list(1): e(r)
    for kk in range(32):
        nxt = []
        if kk+2 < 32:
            if (kk+2) % 4 == 0:
                e("s_barrier")
                if kk+2 == 24: stamp()
            nxt = read_list(kk+2)
        e(f"s_waitcnt lgkmcnt({3 if kk+1 < 32 else 0})")
        b = FR + 8*(kk % 3)
        acc = vr(ACC, 16)
        cin = "0" if kk == 0 else acc
        e(f"v_mfma_f32_32x32x16_bf16 {acc}, {vr(b+4,4)}, {vr(b,4)}, {cin}")
        for r in nxt: e(r)
    stamp()
    e("s_lshl_b32 s30, s13, 1")
    e("s_add_u32 s30, s30, s28")
    e("s_lshl_b32 s30, s30, 5")
    e("v_add_u32 v5, s30, v3")
    e("v_lshlrev_b32 v5, 10, v5")
    e("v_lshl_add_u32 v5, v4, 3, v5")
    e("s_lshl_b32 s30, s12, 1")
    e("s_add_u32 s30, s30, s29")
    e("s_lshl_b32 s30, s30, 6")
    e("v_add_u32 v5, s30, v5")
    e("s_nop 7")
    e("s_nop 3")
    for r in range(8):
        e(f"v_cvt_pk_bf16_f32 v{16+r}, v{ACC+2*r}, v{ACC+2*r+1}")
    for g in range(4):
        e(f"buffer_store_dwordx2 {vr(16+2*g,2)}, v5, s[16:19], 0 offen offset:{16*g}")
    stamp_flush(2, 14, 4)
    dbg_end(2)
    e("s_endpgm")
    e("L_k3_loader:")
    e("v_lshrrev_b32 v9, 3, v2")
    e("v_and_b32 v10, 7, v2")
    e("v_bfe_u32 v11, v2, 4, 1")
    e("v_lshlrev_b32 v11, 2, v11")
    e("v_xor_b32 v10, v10, v11")
    e("v_lshlrev_b32 v9, 10, v9")
    e("v_lshl_add_u32 v9, v10, 4, v9")
    e("s_lshl_b32 s29, s12, 7")
    e("v_add_u32 v6, s29, v9")
    e(f"v_add_u32 v7, {8*1024-1024}, v6")
    e("s_waitcnt lgkmcnt(0)")
    srd(20, 4, 5, 0x80000)
    srd(24, 8, 9, WS_SIZE)
    e("s_lshl_b32 s36, s14, 11")
    e("s_lshl_b32 s37, s14, 16")
    e("s_lshl_b32 s30, s13, 11")
    e("s_add_u32 s37, s37, s30")
    e(f"s_add_u32 s37, s37, {hex(OB)}")
    e("s_lshl_b32 s38, s14, 14          ; W global w*16*1024")
    def issue(c):
        e(f"s_add_u32 s30, s36, {c*8192}")
        e("s_mov_b32 m0, s30")
        e(f"s_add_u32 s31, s37, {c*4*65536}")
        e("buffer_load_dwordx4 v5, s[24:27], s31 offen lds")
        e("buffer_load_dwordx4 v5, s[24:27], s31 offen offset:1024 lds")
        e(f"s_add_u32 s30, s36, {65536 + c*8192}")
        e("s_mov_b32 m0, s30")
        e(f"s_add_u32 s31, s38, {c*65536}")
        e("buffer_load_dwordx4 v6, s[20:23], s31 offen lds")
        e("buffer_load_dwordx4 v7, s[20:23], s31 offen offset:1024 lds")
    LA3 = 4
    for c in range(LA3):
        issue(c)
    for c in range(8):
        nout = min(c+LA3-1, 7) - c
        e(f"s_waitcnt vmcnt({4*nout})")
        e("s_barrier")
        if c+LA3 <= 7:
            issue(c+LA3)
    e("L_k3_end:")
    e("s_endpgm")
    out.append("")

gen_k1()
gen_k2()
gen_k3()
txt = HEADER + "\n".join(out) + "\n" + '.section .rodata,"a"\n'
for n, v in (("qkv_kernel", 160), ("attn_kernel", 256), ("oproj_kernel", 80)):
    txt += ".p2align 6\n" + kd(n, v)
dst = sys.argv[1] if len(sys.argv) > 1 else "standalone__sliding_block__prompt.s"
open(dst, "w").write(txt)
```

```python
import sys, os

K2_LDS = 32768 + 64
K1_SLOT = 32768
K1_NSLOT = 5
PF3 = int(os.environ.get('PF3', '0'))
PF1 = int(os.environ.get('PF1', '0'))
MAP2 = int(os.environ.get('MAP2', '0'))
LA = int(os.environ.get('LA', '3'))
HEADER = f"""; Kernarg layout for this problem (48 bytes, ptrs only, base s[0:1]):
; @launch kernel=qkv_kernel grid=(256,1,1) block=(512,1,1) lds={K1_SLOT*K1_NSLOT}
; @launch kernel=attn_kernel grid=(256,1,1) block=(512,1,1) lds={K2_LDS}
; @launch kernel=oproj_kernel grid=(256,1,1) block=(512,1,1) lds=131072
.amdgcn_target "amdgcn-amd-amdhsa--gfx950"
.text
"""
QB = 0
KB = 0x200000
VB = 0x400000
OB = 0x800000
WS_SIZE = 0x1000000

out = []
def e(s=""):
    out.append("    " + s if s and not s.endswith(":") else s)

DBG = int(os.environ.get("DBG", "0"))
def kernel_begin(name):
    out.append(f".globl {name}")
    out.append(".p2align 8")
    out.append(f".type {name},@function")
    out.append(f"{name}:")
    if DBG:
        e("s_memrealtime s[96:97]")
        e("s_load_dwordx2 s[98:99], s[0:1], 32")
def dbg_end(kid):
    if not DBG: return
    e("s_waitcnt vmcnt(0)")
    e("s_memrealtime s[100:101]")
    e("s_waitcnt lgkmcnt(0)")
    e("s_cmp_lg_u32 s14, 0")
    e(f"s_cbranch_scc1 L_dbg_done{kid}")
    e("s_mov_b32 s92, 0")
    e("s_cmp_eq_u32 s2, 0")
    e(f"s_cbranch_scc1 L_dbg_go{kid}")
    e("s_mov_b32 s92, 8")
    e("s_cmp_lg_u32 s2, 200")
    e(f"s_cbranch_scc1 L_dbg_done{kid}")
    e(f"L_dbg_go{kid}:")
    e(f"s_add_u32 s92, s92, {0xE00000 + kid*16}")
    e("s_mov_b64 exec, 1")
    e("v_mov_b32 v1, 0")
    e("v_mov_b32 v2, s96")
    e("v_mov_b32 v3, s100")
    e(f"buffer_store_dwordx2 v[2:3], v1, s[24:27], s92 offen")
    if kid == 2:
        e("s_cmp_lg_u32 s2, 0")
        e(f"s_cbranch_scc1 L_dbg_done{kid}")
        e("s_mov_b64 exec, 0xffff")
        e("v_lshlrev_b32 v1, 2, v0")
        e("s_mov_b32 s92, 0xE00000")
        e("s_waitcnt vmcnt(0)")
        e("buffer_load_dword v2, v1, s[24:27], s92 offen sc0 sc1")
        e("s_mov_b32 s92, s98")
        e("s_and_b32 s93, s99, 0xffff")
        e("s_mov_b32 s94, 256")
        e("s_mov_b32 s95, 0x20000")
        e("s_waitcnt vmcnt(0)")
        e("buffer_store_dword v2, v1, s[92:95], 0 offen")
    e(f"L_dbg_done{kid}:")
    e("s_mov_b64 exec, -1")

def kd(name, vgpr, sgpr=102):
    return f""".amdhsa_kernel {name}
  .amdhsa_next_free_vgpr {vgpr}
  .amdhsa_next_free_sgpr {sgpr}
  .amdhsa_accum_offset {((vgpr+3)//4)*4}
  .amdhsa_group_segment_fixed_size 0
  .amdhsa_kernarg_size 48
  .amdhsa_user_sgpr_count 2
  .amdhsa_user_sgpr_kernarg_segment_ptr 1
  .amdhsa_system_sgpr_workgroup_id_x 1
.end_amdhsa_kernel
"""

STAMP = int(os.environ.get("STAMP", "0"))
EXP = int(os.environ.get("EXP", "0"))
STAMP_BASE = 0xC00000
STAMP_S = 90
stamp_n = [0]
def stamp():
    if not STAMP: return
    i = stamp_n[0]; stamp_n[0] += 1
    assert i < 6
    e(f"{'s_memrealtime' if STAMP==2 else 's_memtime'} s[{STAMP_S+2*i}:{STAMP_S+2*i+1}]")
def stamp_flush(kid, wave_sgpr, nw):
    if not STAMP: return
    e("s_waitcnt vmcnt(0)")
    stamp()
    n = stamp_n[0]; stamp_n[0] = 0
    e("s_waitcnt lgkmcnt(0)")
    e(f"s_mul_i32 s3, s2, {nw}")
    e(f"s_add_u32 s3, s3, s{wave_sgpr}")
    e("s_lshl_b32 s3, s3, 6")
    e(f"s_add_u32 s3, s3, {hex(STAMP_BASE + kid*0x40000)}")
    e("s_mov_b64 exec, 1")
    e("v_mov_b32 v1, 0")
    for i in range(n):
        e(f"v_mov_b32 v2, s{STAMP_S+2*i}")
        e(f"buffer_store_dword v2, v1, s[24:27], s3 offen offset:{4*i}")
    e("s_mov_b64 exec, -1")

def vr(a, n):
    return f"v[{a}:{a+n-1}]"

def srd(d, lo, hi, size):
    e(f"s_mov_b32 s{d}, s{lo}")
    e(f"s_and_b32 s{d+1}, s{hi}, 0xffff")
    e(f"s_mov_b32 s{d+2}, {hex(size)}")
    e(f"s_mov_b32 s{d+3}, 0x00020000")

def gen_k1():
    kernel_begin("qkv_kernel")
    e("s_cmp_ge_u32 s2, 256")
    e("s_cbranch_scc1 L_k1_end")
    e("s_load_dwordx4 s[4:7], s[0:1], 0")
    e("s_load_dwordx2 s[8:9], s[0:1], 40")
    e("s_and_b32 s10, s2, 7")
    e("s_lshr_b32 s11, s2, 3")
    e("s_and_b32 s12, s10, 1")
    e("s_lshl_b32 s12, s12, 2")
    e("s_and_b32 s13, s11, 3")
    e("s_add_u32 s12, s12, s13          ; nt (0..7)")
    e("s_lshr_b32 s13, s10, 1")
    e("s_lshl_b32 s13, s13, 3")
    e("s_lshr_b32 s14, s11, 2")
    e("s_add_u32 s13, s13, s14          ; mt (0..31)")
    e("v_lshrrev_b32 v1, 6, v0")
    e("v_and_b32 v2, 63, v0             ; lane")
    e("v_readfirstlane_b32 s39, v1      ; wave")
    e("v_and_b32 v3, 31, v2             ; l&31")
    e("v_lshrrev_b32 v4, 5, v2          ; h")
    e("s_and_b32 s14, s39, 3            ; w")
    e("s_lshl_b32 s15, s13, 6")
    e("s_cmp_ge_u32 s39, 4")
    e("s_cbranch_scc1 L_k1_loader")
    e("s_lshr_b32 s28, s14, 1           ; a")
    e("s_and_b32 s29, s14, 1            ; b")
    e("v_bfe_u32 v9, v2, 2, 2           ; r")
    e("v_lshl_add_u32 v10, v4, 3, v9    ; 8h+r")
    e("v_mul_u32_u24 v10, 384, v10")
    e("v_lshrrev_b32 v9, 1, v9")
    e("v_xor_b32 v9, s29, v9")
    e("v_lshl_add_u32 v10, v9, 6, v10")
    e("v_bfe_u32 v9, v2, 4, 1           ; g'")
    e("v_lshl_add_u32 v10, v9, 5, v10")
    e("v_and_b32 v9, 3, v2")
    e("v_lshl_add_u32 v20, v9, 3, v10")
    e("v_add_u32 v20, 0x2000, v20")
    e("v_bfe_u32 v9, v3, 1, 3           ; f")
    e("v_lshlrev_b32 v10, 7, v3")
    e("s_lshl_b32 s30, s28, 12")
    e("v_add_u32 v10, s30, v10")
    for k2 in range(4):
        e(f"v_add_u32 v11, {2*k2}, v4")
        e("v_xor_b32 v11, v11, v9")
        e(f"v_lshl_add_u32 v{21+k2}, v11, 4, v10")
    e("s_waitcnt lgkmcnt(0)")
    srd(24, 8, 9, WS_SIZE)
    if PF1:
        srd(16, 4, 5, 0x200000)
        srd(20, 6, 7, 0x180000)
        e("s_lshl_b32 s40, s11, 2")
        e("s_add_u32 s40, s40, s14          ; wid 0..127")
        e("s_lshr_b32 s41, s10, 1")
        e("s_lshl_b32 s41, s41, 19")
        e("s_lshl_b32 s42, s40, 12")
        e("s_add_u32 s41, s41, s42")
        e("v_lshlrev_b32 v40, 6, v2")
        e("buffer_load_dword v41, v40, s[16:19], s41 offen")
        e("v_lshrrev_b32 v40, 4, v2")
        e("v_mul_u32_u24 v40, 0xc00, v40")
        e("v_and_b32 v42, 7, v2")
        e("v_lshl_add_u32 v40, v42, 6, v40")
        e("v_bfe_u32 v42, v2, 3, 1")
        e("v_lshl_add_u32 v43, v42, 10, v40")
        e("s_mul_i32 s41, s40, 0x3000")
        e("s_and_b32 s42, s10, 1")
        e("s_lshl_b32 s42, s42, 9")
        e("s_add_u32 s41, s41, s42")
        e("buffer_load_dword v44, v43, s[20:23], s41 offen")
        e("buffer_load_dword v45, v40, s[20:23], s41 offen offset:2048")
    ACC = 64
    FR = 112
    AD = 26
    def setaddr(c):
        sl = (c % K1_NSLOT) * K1_SLOT
        for i in range(5):
            e(f"v_add_u32 v{AD+5*(c&1)+i}, {sl}, v{20+i}")
    def read_list(kk):
        b = FR + 16*(kk % 3)
        k2 = kk & 3
        ad = AD + 5*((kk//4) & 1)
        if EXP >= 2: return []
        L = [f"ds_read_b128 {vr(b,4)}, v{ad+1+k2}"]
        for j in range(3):
            for ee in range(2):
                L.append(f"ds_read_b64_tr_b16 {vr(b+4+4*j+2*ee,2)}, v{ad} offset:{k2*6144+ee*1536+j*128}")
        return L
    stamp()
    setaddr(0)
    e("s_barrier")
    stamp()
    for r in read_list(0): e(r)
    for r in read_list(1): e(r)
    for kk in range(32):
        nxt = []
        if kk+2 < 32:
            if (kk+2) % 4 == 0:
                c = (kk+2)//4
                setaddr(c)
                e("s_barrier")
                if c == 6: stamp()
            nxt = read_list(kk+2)
        e(f"s_waitcnt lgkmcnt({7 if kk+1 < 32 else 0})")
        b = FR + 16*(kk % 3)
        xf = vr(b, 4)
        for j in range(3):
            acc = vr(ACC+16*j, 16)
            cin = "0" if kk == 0 else acc
            wf = vr(b+4+4*j, 4)
            if EXP >= 2: pass
            elif j < 2:
                e(f"v_mfma_f32_32x32x16_bf16 {acc}, {wf}, {xf}, {cin}")
            else:
                e(f"v_mfma_f32_32x32x16_bf16 {acc}, {xf}, {wf}, {cin}")
            part = nxt[[0,3,5][j]:[3,5,7][j]]
            for r in part: e(r)
    stamp()
    e("v_lshlrev_b32 v5, 4, v2")
    e("s_lshl_b32 s30, s12, 1")
    e("s_add_u32 s30, s30, s29")
    e("s_lshl_b32 s30, s30, 17          ; head0*65536")
    e("s_lshl_b32 s31, s13, 1")
    e("s_add_u32 s31, s31, s28")
    e("s_lshl_b32 s31, s31, 10          ; tile*1024")
    e("s_add_u32 s30, s30, s31")
    e("s_add_u32 s31, s30, 0x10000")
    e(f"s_add_u32 s32, s30, {hex(KB)}")
    e(f"s_add_u32 s33, s31, {hex(KB)}")
    e("v_lshrrev_b32 v9, 4, v3")
    e("v_lshlrev_b32 v6, 16, v9")
    e("v_lshl_add_u32 v6, v4, 8, v6")
    e("v_and_b32 v9, 15, v3")
    e("v_lshl_add_u32 v6, v9, 4, v6")
    e(f"s_add_u32 s34, s30, {hex(VB)}")
    e("s_nop 7")
    P = 8
    for j in range(3):
        for r in range(8):
            e(f"v_cvt_pk_bf16_f32 v{P+8*j+r}, v{ACC+16*j+2*r}, v{ACC+16*j+2*r+1}")
    e(f"buffer_store_dwordx4 {vr(P,4)}, v5, s[24:27], s30 offen")
    e(f"buffer_store_dwordx4 {vr(P+4,4)}, v5, s[24:27], s31 offen")
    e(f"buffer_store_dwordx4 {vr(P+8,4)}, v5, s[24:27], s32 offen")
    e(f"buffer_store_dwordx4 {vr(P+12,4)}, v5, s[24:27], s33 offen")
    e(f"buffer_store_dwordx4 {vr(P+16,4)}, v6, s[24:27], s34 offen")
    e(f"buffer_store_dwordx4 {vr(P+20,4)}, v6, s[24:27], s34 offen offset:512")
    stamp_flush(0, 14, 4)
    dbg_end(0)
    e("s_endpgm")
    e("L_k1_loader:")
    e("s_lshl_b32 s28, s14, 4           ; 16w")
    e("s_add_u32 s30, s15, s28")
    e("v_lshrrev_b32 v9, 3, v2")
    e("v_add_u32 v9, s30, v9")
    e("v_lshlrev_b32 v9, 10, v9")
    e("v_and_b32 v10, 7, v2             ; pos")
    e("v_lshrrev_b32 v11, 4, v2")
    for a in range(2):
        e(f"v_add_u32 v12, {4*a}, v11")
        e("v_and_b32 v12, 7, v12")
        e("v_xor_b32 v12, v12, v10")
        e("v_lshl_add_u32 v12, v12, 4, v9")
        e(f"v_add_u32 v{16+a}, {8*a*1024 - a*1024}, v12")
    e("s_lshl_b32 s29, s12, 7           ; 128*nt")
    for j in range(3):
        e(f"v_add_u32 v9, {64*j}, v2")
        e("v_mul_u32_u24 v10, 0xaaab, v9")
        e("v_lshrrev_b32 v10, 20, v10       ; row")
        e("v_mul_u32_u24 v11, 24, v10")
        e("v_sub_u32 v11, v9, v11           ; pos")
        e("v_lshrrev_b32 v12, 3, v11        ; seg")
        e("v_and_b32 v11, 7, v11")
        e("v_bfe_u32 v13, v10, 1, 1")
        e("v_lshlrev_b32 v13, 2, v13")
        e("v_xor_b32 v11, v11, v13")
        e("v_mul_u32_u24 v10, 0xc00, v10    ; row*3072")
        e("v_lshl_add_u32 v10, v12, 10, v10")
        e("v_lshl_add_u32 v10, v11, 4, v10")
        e("v_add_u32 v10, s29, v10")
        if j:
            e(f"v_subrev_u32 v{6+j}, {1024*j}, v10")
        else:
            e(f"v_mov_b32 v6, v10")
    e("s_waitcnt lgkmcnt(0)")
    srd(16, 4, 5, 0x200000)
    srd(20, 6, 7, 0x180000)
    e("s_lshl_b32 s36, s14, 11          ; w*2048 (x lds)")
    e("s_mul_i32 s37, s14, 6144         ; w*16 rows*384")
    e("s_add_u32 s37, s37, 0x2000")
    e("s_mul_i32 s38, s14, 0xc000       ; w*16*3072 W global")
    def issue(c):
        if EXP == 1: return
        sl = (c % K1_NSLOT) * K1_SLOT
        e(f"s_add_u32 s30, s36, {sl}")
        e("s_mov_b32 m0, s30")
        e(f"s_mov_b32 s31, {c*128}")
        for a in range(2):
            e(f"buffer_load_dwordx4 v{16+a}, s[16:19], s31 offen offset:{1024*a} lds")
        for pp in range(2):
            e(f"s_add_u32 s30, s37, {sl + pp*3072}")
            e("s_mov_b32 m0, s30")
            e(f"s_add_u32 s31, s38, {(c*64+pp*8)*3072}")
            for j in range(3):
                e(f"buffer_load_dwordx4 v{6+j}, s[20:23], s31 offen offset:{1024*j} lds")
    for c in range(LA):
        issue(c)
    for c in range(8):
        nout = min(c+LA-1, 7) - c
        e(f"s_waitcnt vmcnt({8*nout})")
        e("s_barrier")
        if c+LA <= 7:
            issue(c+LA)
    e("L_k1_end:")
    e("s_endpgm")
    out.append("")

def gen_k2():
    kernel_begin("attn_kernel")
    e("s_cmp_ge_u32 s2, 256")
    e("s_cbranch_scc1 L_k2_end")
    e("s_load_dwordx2 s[8:9], s[0:1], 40")
    e("s_load_dwordx2 s[4:5], s[0:1], 16")
    e("s_and_b32 s10, s2, 7")
    e("s_lshr_b32 s11, s2, 3")
    e("s_mov_b32 s64, s11")
    if MAP2:
        e("s_and_b32 s12, s10, 1")
        e("s_lshl_b32 s12, s12, 4")
        e("s_and_b32 s13, s11, 15")
        e("s_add_u32 s12, s12, s13          ; head")
        e("s_lshr_b32 s11, s11, 4")
        e("s_and_b32 s13, s10, 6")
        e("s_add_u32 s11, s11, s13          ; j")
    else:
        e("s_lshl_b32 s12, s10, 2")
        e("s_and_b32 s13, s11, 3")
        e("s_add_u32 s12, s12, s13          ; head")
        e("s_lshr_b32 s11, s11, 2           ; j")
    e("v_lshrrev_b32 v1, 6, v0")
    e("v_and_b32 v2, 63, v0             ; lane")
    e("v_readfirstlane_b32 s14, v1      ; wave")
    e("v_and_b32 v3, 31, v2             ; l&31")
    e("v_lshrrev_b32 v4, 5, v2          ; h")
    e("s_lshl_b32 s13, s11, 3")
    e("s_add_u32 s13, s13, s14          ; b")
    e("v_lshlrev_b32 v5, 4, v2          ; lane*16")
    e("s_lshl_b32 s15, s12, 16          ; head*65536")
    e("s_lshl_b32 s16, s13, 10          ; b*1024")
    e("s_add_u32 s16, s16, s15")
    e("s_lshl_b32 s17, s11, 3")
    e("s_lshl_b32 s18, s14, 1")
    e("s_add_u32 s17, s17, s18")
    e("s_sub_u32 s17, s17, 8")
    e("s_max_i32 s17, s17, 0")
    e("s_lshl_b32 s19, s17, 10")
    e("s_add_u32 s19, s19, s15")
    e(f"s_add_u32 s20, s19, {hex(KB)}")
    e(f"s_add_u32 s21, s19, {hex(VB)}")
    e("s_lshl_b32 s22, s14, 11")
    e("s_add_u32 s23, s22, 0x4000")
    e("s_waitcnt lgkmcnt(0)")
    srd(24, 8, 9, WS_SIZE)
    S = 16
    KF = 160
    VF = 196
    QF = 212
    OA = 216
    stamp()
    e(f"buffer_load_dwordx4 {vr(QF,4)}, v5, s[24:27], s16 offen")
    e("s_mov_b32 m0, s22")
    e("s_nop 0")
    e("buffer_load_dwordx4 v5, s[24:27], s20 offen lds")
    e("buffer_load_dwordx4 v5, s[24:27], s20 offen offset:1024 lds")
    e("s_mov_b32 m0, s23")
    e("s_nop 0")
    e("buffer_load_dwordx4 v5, s[24:27], s21 offen lds")
    e("buffer_load_dwordx4 v5, s[24:27], s21 offen offset:1024 lds")
    e("v_mov_b32 v8, 0x3f803f80")
    e("v_mov_b32 v9, 0x3f803f80")
    e("v_mov_b32 v10, 0x8000")
    e("ds_write_b64 v10, v[8:9]")
    e("ds_write_b64 v10, v[8:9] offset:8")
    e("s_lshl_b32 s18, s14, 10")
    e("v_add_u32 v6, s18, v5")
    e("v_lshlrev_b32 v7, 8, v4")
    e("v_lshl_add_u32 v7, v3, 4, v7")
    e("v_add_u32 v7, s18, v7")
    e("v_add_u32 v7, 0x4000, v7")
    e("v_cmp_gt_u32 vcc, 16, v3")
    e("v_mov_b32 v11, 0x200")
    e("s_nop 0")
    e("v_cndmask_b32 v7, v10, v7, vcc")
    e("v_cndmask_b32 v14, 0, v11, vcc   ; step")
    e(f"s_add_u32 s17, s16, {hex(OB)}    ; O soffset")
    e("v_lshlrev_b32 v8, 2, v4")
    e("v_sub_u32 v8, v3, v8")
    for i in range(16):
        ci = (i & 3) + 8*(i >> 2)
        e(f"v_cmp_le_i32 s[{32+2*i}:{33+2*i}], {ci}, v8")
    e("v_mov_b32 v15, 0x3eb8aa3b        ; 0.25*log2(e)")
    if PF3:
        srd(28, 4, 5, 0x80000)
        e("s_lshl_b32 s64, s64, 3")
        e("s_add_u32 s64, s64, s14")
        e("s_lshl_b32 s64, s64, 11")
        e("v_lshlrev_b32 v253, 5, v2")
    e(f"s_waitcnt vmcnt(0) lgkmcnt(0)")
    e("s_barrier")
    stamp()
    if PF3:
        e("buffer_load_dword v252, v253, s[28:31], s64 offen")
    for t in range(9):
        e(f"ds_read_b128 {vr(KF+4*t,4)}, v6 offset:{1024*t}")
    for t in range(9):
        e(f"s_waitcnt lgkmcnt({8-t})")
        e(f"v_mfma_f32_32x32x16_bf16 {vr(S+16*t,16)}, {vr(KF+4*t,4)}, {vr(QF,4)}, 0")
    e("s_nop 7")
    e("s_nop 4")
    e("s_cmp_ge_u32 s13, 8")
    e("s_cbranch_scc1 L_k2_fix_done")
    e("v_mov_b32 v9, 0xff800000")
    for t in range(8):
        for i in range(16):
            e(f"v_mov_b32 v{S+16*t+i}, v9")
        if t < 7:
            e(f"s_cmp_ge_u32 s13, {7-t}")
            e("s_cbranch_scc1 L_k2_fix_done")
    e("L_k2_fix_done:")
    for i in range(16):
        e(f"v_cndmask_b32 v{S+128+i}, v{S+i}, v{S+128+i}, s[{32+2*i}:{33+2*i}]")
    vals = [S+16+i for i in range(128)]
    ch = [10, 11, 12, 13]
    for c in range(4):
        sub = vals[32*c:32*c+32]
        e(f"v_max3_f32 v{ch[c]}, v{sub[0]}, v{sub[1]}, v{sub[2]}")
    for step in range(14):
        for c in range(4):
            sub = vals[32*c:32*c+32]
            e(f"v_max3_f32 v{ch[c]}, v{sub[3+2*step]}, v{sub[4+2*step]}, v{ch[c]}")
    for c in range(4):
        sub = vals[32*c:32*c+32]
        e(f"v_max_f32 v{ch[c]}, v{sub[31]}, v{ch[c]}")
    e("v_max3_f32 v10, v10, v11, v12")
    e("v_max_f32 v10, v10, v13")
    e("v_mov_b32 v11, v10")
    e("s_nop 1")
    e("v_permlane32_swap_b32 v10, v11")
    e("v_max_f32 v10, v10, v11")
    e("v_mul_f32 v10, v15, v10          ; m*c")
    stamp()
    def softmax(t):
        base = S+16*t
        for i in range(16):
            e(f"v_fma_f32 v{base+i}, v{base+i}, v15, -v10")
        for i in range(16):
            e(f"v_exp_f32 v{base+i}, v{base+i}")
        if t == 8:
            for i in range(16):
                e(f"v_cndmask_b32 v{S+i}, v{base+i}, 0, s[{32+2*i}:{33+2*i}]")
            for i in range(16):
                e(f"v_cndmask_b32 v{base+i}, 0, v{base+i}, s[{32+2*i}:{33+2*i}]")
            for r in range(8):
                e(f"v_cvt_pk_bf16_f32 v{S+r}, v{S+2*r}, v{S+2*r+1}")
        for r in range(8):
            e(f"v_cvt_pk_bf16_f32 v{base+r}, v{base+2*r}, v{base+2*r+1}")
    def vread(t):
        b = VF + 8*(t & 1)
        for m in range(2):
            e(f"ds_read_b128 {vr(b+4*m,4)}, v7")
            e("v_add_u32 v7, v7, v14")
    vread(0)
    softmax(8)
    for t in range(9):
        if t+1 < 9:
            vread(t+1)
        if 1 <= t+1 <= 7:
            softmax(t+1)
        e(f"s_waitcnt lgkmcnt({2 if t+1 < 9 else 0})")
        b = VF + 8*(t & 1)
        base = S+16*t
        for m in range(2):
            cin = "0" if (t == 0 and m == 0) else vr(OA, 16)
            e(f"v_mfma_f32_32x32x16_bf16 {vr(OA,16)}, {vr(b+4*m,4)}, {vr(base+4*m,4)}, {cin}")
    stamp()
    e("s_nop 7")
    e("s_nop 7")
    e(f"v_rcp_f32 v10, v{OA+8}")
    e("s_nop 0")
    for i in range(8):
        e(f"v_mul_f32 v{OA+i}, v10, v{OA+i}")
    for r in range(4):
        e(f"v_cvt_pk_bf16_f32 v{16+r}, v{OA+2*r}, v{OA+2*r+1}")
    e(f"buffer_store_dwordx4 v[16:19], v5, s[24:27], s17 offen")
    stamp_flush(1, 14, 8)
    dbg_end(1)
    e("L_k2_end:")
    e("s_endpgm")
    out.append("")

def gen_k3():
    kernel_begin("oproj_kernel")
    e("s_cmp_ge_u32 s2, 256")
    e("s_cbranch_scc1 L_k3_end")
    e("s_load_dwordx4 s[4:7], s[0:1], 16")
    e("s_load_dwordx2 s[8:9], s[0:1], 40")
    e("s_and_b32 s10, s2, 7")
    e("s_lshr_b32 s11, s2, 3")
    if MAP2:
        e("s_lshr_b32 s13, s10, 1")
        e("s_lshl_b32 s13, s13, 3")
        e("s_and_b32 s12, s11, 7")
        e("s_add_u32 s13, s13, s12          ; mt (0..31)")
        e("s_lshr_b32 s12, s11, 3")
        e("s_and_b32 s11, s10, 1")
        e("s_lshl_b32 s11, s11, 2")
        e("s_add_u32 s12, s12, s11          ; nt (0..7)")
    else:
        e("s_lshl_b32 s13, s10, 2")
        e("s_and_b32 s12, s11, 3")
        e("s_add_u32 s13, s13, s12          ; mt (0..31)")
        e("s_lshr_b32 s12, s11, 2           ; nt (0..7)")
    e("v_lshrrev_b32 v1, 6, v0")
    e("v_and_b32 v2, 63, v0             ; lane")
    e("v_readfirstlane_b32 s39, v1      ; wave")
    e("v_and_b32 v3, 31, v2             ; l&31")
    e("v_lshrrev_b32 v4, 5, v2          ; h")
    e("s_and_b32 s14, s39, 3")
    e("v_lshlrev_b32 v5, 4, v2          ; lane*16")
    e("s_cmp_ge_u32 s39, 4")
    e("s_cbranch_scc1 L_k3_loader")
    e("s_lshr_b32 s28, s14, 1           ; a")
    e("s_and_b32 s29, s14, 1            ; b")
    e("s_lshl_b32 s30, s28, 10")
    e("v_add_u32 v12, s30, v5")
    e("v_bfe_u32 v9, v2, 2, 2           ; r")
    e("v_lshl_add_u32 v10, v4, 2, v9    ; 4h+r")
    e("v_lshlrev_b32 v10, 7, v10")
    e("v_lshrrev_b32 v9, 1, v9")
    e("v_xor_b32 v9, s29, v9")
    e("v_lshl_add_u32 v10, v9, 6, v10")
    e("v_bfe_u32 v9, v2, 4, 1           ; g'")
    e("v_lshl_add_u32 v10, v9, 5, v10")
    e("v_and_b32 v9, 3, v2")
    e("v_lshl_add_u32 v13, v9, 3, v10")
    e("v_add_u32 v13, 0x10000, v13")
    e("v_add_u32 v14, 0x8000, v13")
    e("v_add_u32 v15, 0x8000, v12")
    e("s_waitcnt lgkmcnt(0)")
    srd(16, 6, 7, 0x200000)
    srd(24, 8, 9, WS_SIZE)
    ACC = 64
    FR = 32
    def read_list(kk):
        b = FR + 8*(kk % 3)
        k2 = kk & 15
        L = [f"ds_read_b128 {vr(b,4)}, {'v12' if kk < 16 else 'v15'} offset:{k2*2048}"]
        for ee in range(2):
            L.append(f"ds_read_b64_tr_b16 {vr(b+4+2*ee,2)}, {'v13' if kk < 16 else 'v14'} offset:{k2*2048+ee*1024}")
        return L
    stamp()
    e("s_barrier")
    stamp()
    for r in read_list(0): e(r)
    for r in read_list(1): e(r)
    for kk in range(32):
        nxt = []
        if kk+2 < 32:
            if (kk+2) % 4 == 0:
                e("s_barrier")
                if kk+2 == 24: stamp()
            nxt = read_list(kk+2)
        e(f"s_waitcnt lgkmcnt({3 if kk+1 < 32 else 0})")
        b = FR + 8*(kk % 3)
        acc = vr(ACC, 16)
        cin = "0" if kk == 0 else acc
        e(f"v_mfma_f32_32x32x16_bf16 {acc}, {vr(b+4,4)}, {vr(b,4)}, {cin}")
        for r in nxt: e(r)
    stamp()
    e("s_lshl_b32 s30, s13, 1")
    e("s_add_u32 s30, s30, s28")
    e("s_lshl_b32 s30, s30, 5")
    e("v_add_u32 v5, s30, v3")
    e("v_lshlrev_b32 v5, 10, v5")
    e("v_lshl_add_u32 v5, v4, 3, v5")
    e("s_lshl_b32 s30, s12, 1")
    e("s_add_u32 s30, s30, s29")
    e("s_lshl_b32 s30, s30, 6")
    e("v_add_u32 v5, s30, v5")
    e("s_nop 7")
    e("s_nop 3")
    for r in range(8):
        e(f"v_cvt_pk_bf16_f32 v{16+r}, v{ACC+2*r}, v{ACC+2*r+1}")
    for g in range(4):
        e(f"buffer_store_dwordx2 {vr(16+2*g,2)}, v5, s[16:19], 0 offen offset:{16*g}")
    stamp_flush(2, 14, 4)
    dbg_end(2)
    e("s_endpgm")
    e("L_k3_loader:")
    e("v_lshrrev_b32 v9, 3, v2")
    e("v_and_b32 v10, 7, v2")
    e("v_bfe_u32 v11, v2, 4, 1")
    e("v_lshlrev_b32 v11, 2, v11")
    e("v_xor_b32 v10, v10, v11")
    e("v_lshlrev_b32 v9, 10, v9")
    e("v_lshl_add_u32 v9, v10, 4, v9")
    e("s_lshl_b32 s29, s12, 7")
    e("v_add_u32 v6, s29, v9")
    e(f"v_add_u32 v7, {8*1024-1024}, v6")
    e("s_waitcnt lgkmcnt(0)")
    srd(20, 4, 5, 0x80000)
    srd(24, 8, 9, WS_SIZE)
    e("s_lshl_b32 s36, s14, 11")
    e("s_lshl_b32 s37, s14, 16")
    e("s_lshl_b32 s30, s13, 11")
    e("s_add_u32 s37, s37, s30")
    e(f"s_add_u32 s37, s37, {hex(OB)}")
    e("s_lshl_b32 s38, s14, 14          ; W global w*16*1024")
    def issue(c):
        e(f"s_add_u32 s30, s36, {c*8192}")
        e("s_mov_b32 m0, s30")
        e(f"s_add_u32 s31, s37, {c*4*65536}")
        e("buffer_load_dwordx4 v5, s[24:27], s31 offen lds")
        e("buffer_load_dwordx4 v5, s[24:27], s31 offen offset:1024 lds")
        e(f"s_add_u32 s30, s36, {65536 + c*8192}")
        e("s_mov_b32 m0, s30")
        e(f"s_add_u32 s31, s38, {c*65536}")
        e("buffer_load_dwordx4 v6, s[20:23], s31 offen lds")
        e("buffer_load_dwordx4 v7, s[20:23], s31 offen offset:1024 lds")
    LA3 = 4
    for c in range(LA3):
        issue(c)
    for c in range(8):
        nout = min(c+LA3-1, 7) - c
        e(f"s_waitcnt vmcnt({4*nout})")
        e("s_barrier")
        if c+LA3 <= 7:
            issue(c+LA3)
    e("L_k3_end:")
    e("s_endpgm")
    out.append("")

gen_k1()
gen_k2()
gen_k3()
txt = HEADER + "\n".join(out) + "\n" + '.section .rodata,"a"\n'
for n, v in (("qkv_kernel", 160), ("attn_kernel", 256), ("oproj_kernel", 80)):
    txt += ".p2align 6\n" + kd(n, v)
dst = sys.argv[1] if len(sys.argv) > 1 else "standalone__sliding_block__prompt.s"
open(dst, "w").write(txt)
```

```python
import sys, os

K2_LDS = 32768 + 64
K1_SLOT = 32768
K1_NSLOT = 5
PF3 = int(os.environ.get('PF3', '0'))
PF1 = int(os.environ.get('PF1', '0'))
MAP2 = int(os.environ.get('MAP2', '0'))
NL = int(os.environ.get('NL', '4'))
PK = int(os.environ.get('PK', '1'))
LA = int(os.environ.get('LA', '3'))
HEADER = f"""; Kernarg layout for this problem (48 bytes, ptrs only, base s[0:1]):
; @launch kernel=qkv_kernel grid=(256,1,1) block=({256+64*NL},1,1) lds={K1_SLOT*K1_NSLOT}
; @launch kernel=attn_kernel grid=(256,1,1) block=(512,1,1) lds={K2_LDS}
; @launch kernel=oproj_kernel grid=(256,1,1) block=(512,1,1) lds=131072
.amdgcn_target "amdgcn-amd-amdhsa--gfx950"
.text
"""
QB = 0
KB = 0x200000
VB = 0x400000
OB = 0x800000
WS_SIZE = 0x1000000

out = []
def e(s=""):
    out.append("    " + s if s and not s.endswith(":") else s)

DBG = int(os.environ.get("DBG", "0"))
def kernel_begin(name):
    out.append(f".globl {name}")
    out.append(".p2align 8")
    out.append(f".type {name},@function")
    out.append(f"{name}:")
    if DBG:
        e("s_memrealtime s[96:97]")
        e("s_load_dwordx2 s[98:99], s[0:1], 32")
def dbg_end(kid):
    if not DBG: return
    e("s_waitcnt vmcnt(0)")
    e("s_memrealtime s[100:101]")
    e("s_waitcnt lgkmcnt(0)")
    e("s_cmp_lg_u32 s14, 0")
    e(f"s_cbranch_scc1 L_dbg_done{kid}")
    e("s_mov_b32 s92, 0")
    e("s_cmp_eq_u32 s2, 0")
    e(f"s_cbranch_scc1 L_dbg_go{kid}")
    e("s_mov_b32 s92, 8")
    e("s_cmp_lg_u32 s2, 200")
    e(f"s_cbranch_scc1 L_dbg_done{kid}")
    e(f"L_dbg_go{kid}:")
    e(f"s_add_u32 s92, s92, {0xE00000 + kid*16}")
    e("s_mov_b64 exec, 1")
    e("v_mov_b32 v1, 0")
    e("v_mov_b32 v2, s96")
    e("v_mov_b32 v3, s100")
    e(f"buffer_store_dwordx2 v[2:3], v1, s[24:27], s92 offen")
    if kid == 2:
        e("s_cmp_lg_u32 s2, 0")
        e(f"s_cbranch_scc1 L_dbg_done{kid}")
        e("s_mov_b64 exec, 0xffff")
        e("v_lshlrev_b32 v1, 2, v0")
        e("s_mov_b32 s92, 0xE00000")
        e("s_waitcnt vmcnt(0)")
        e("buffer_load_dword v2, v1, s[24:27], s92 offen sc0 sc1")
        e("s_mov_b32 s92, s98")
        e("s_and_b32 s93, s99, 0xffff")
        e("s_mov_b32 s94, 256")
        e("s_mov_b32 s95, 0x20000")
        e("s_waitcnt vmcnt(0)")
        e("buffer_store_dword v2, v1, s[92:95], 0 offen")
    e(f"L_dbg_done{kid}:")
    e("s_mov_b64 exec, -1")

def kd(name, vgpr, sgpr=102):
    return f""".amdhsa_kernel {name}
  .amdhsa_next_free_vgpr {vgpr}
  .amdhsa_next_free_sgpr {sgpr}
  .amdhsa_accum_offset {((vgpr+3)//4)*4}
  .amdhsa_group_segment_fixed_size 0
  .amdhsa_kernarg_size 48
  .amdhsa_user_sgpr_count 2
  .amdhsa_user_sgpr_kernarg_segment_ptr 1
  .amdhsa_system_sgpr_workgroup_id_x 1
.end_amdhsa_kernel
"""

STAMP = int(os.environ.get("STAMP", "0"))
EXP = int(os.environ.get("EXP", "0"))
STAMP_BASE = 0xC00000
STAMP_S = 90
stamp_n = [0]
def stamp():
    if not STAMP: return
    i = stamp_n[0]; stamp_n[0] += 1
    assert i < 6
    e(f"{'s_memrealtime' if STAMP==2 else 's_memtime'} s[{STAMP_S+2*i}:{STAMP_S+2*i+1}]")
def stamp_flush(kid, wave_sgpr, nw):
    if not STAMP: return
    e("s_waitcnt vmcnt(0)")
    stamp()
    n = stamp_n[0]; stamp_n[0] = 0
    e("s_waitcnt lgkmcnt(0)")
    e(f"s_mul_i32 s3, s2, {nw}")
    e(f"s_add_u32 s3, s3, s{wave_sgpr}")
    e("s_lshl_b32 s3, s3, 6")
    e(f"s_add_u32 s3, s3, {hex(STAMP_BASE + kid*0x40000)}")
    e("s_mov_b64 exec, 1")
    e("v_mov_b32 v1, 0")
    for i in range(n):
        e(f"v_mov_b32 v2, s{STAMP_S+2*i}")
        e(f"buffer_store_dword v2, v1, s[24:27], s3 offen offset:{4*i}")
    e("s_mov_b64 exec, -1")

def vr(a, n):
    return f"v[{a}:{a+n-1}]"

def srd(d, lo, hi, size):
    e(f"s_mov_b32 s{d}, s{lo}")
    e(f"s_and_b32 s{d+1}, s{hi}, 0xffff")
    e(f"s_mov_b32 s{d+2}, {hex(size)}")
    e(f"s_mov_b32 s{d+3}, 0x00020000")

def gen_k1():
    kernel_begin("qkv_kernel")
    e("s_cmp_ge_u32 s2, 256")
    e("s_cbranch_scc1 L_k1_end")
    e("s_load_dwordx4 s[4:7], s[0:1], 0")
    e("s_load_dwordx2 s[8:9], s[0:1], 40")
    e("s_and_b32 s10, s2, 7")
    e("s_lshr_b32 s11, s2, 3")
    e("s_and_b32 s12, s10, 1")
    e("s_lshl_b32 s12, s12, 2")
    e("s_and_b32 s13, s11, 3")
    e("s_add_u32 s12, s12, s13          ; nt (0..7)")
    e("s_lshr_b32 s13, s10, 1")
    e("s_lshl_b32 s13, s13, 3")
    e("s_lshr_b32 s14, s11, 2")
    e("s_add_u32 s13, s13, s14          ; mt (0..31)")
    e("v_lshrrev_b32 v1, 6, v0")
    e("v_and_b32 v2, 63, v0             ; lane")
    e("v_readfirstlane_b32 s39, v1      ; wave")
    e("v_and_b32 v3, 31, v2             ; l&31")
    e("v_lshrrev_b32 v4, 5, v2          ; h")
    e("s_and_b32 s14, s39, 3            ; w")
    e("s_lshl_b32 s15, s13, 6")
    e("s_cmp_ge_u32 s39, 4")
    e("s_cbranch_scc1 L_k1_loader")
    e("s_lshr_b32 s28, s14, 1           ; a")
    e("s_and_b32 s29, s14, 1            ; b")
    e("v_bfe_u32 v9, v2, 2, 2           ; r")
    e("v_lshl_add_u32 v10, v4, 3, v9    ; 8h+r")
    e("v_mul_u32_u24 v10, 384, v10")
    e("v_lshrrev_b32 v9, 1, v9")
    e("v_xor_b32 v9, s29, v9")
    e("v_lshl_add_u32 v10, v9, 6, v10")
    e("v_bfe_u32 v9, v2, 4, 1           ; g'")
    e("v_lshl_add_u32 v10, v9, 5, v10")
    e("v_and_b32 v9, 3, v2")
    e("v_lshl_add_u32 v20, v9, 3, v10")
    e("v_add_u32 v20, 0x2000, v20")
    e("v_bfe_u32 v9, v3, 1, 3           ; f")
    e("v_lshlrev_b32 v10, 7, v3")
    e("s_lshl_b32 s30, s28, 12")
    e("v_add_u32 v10, s30, v10")
    for k2 in range(4):
        e(f"v_add_u32 v11, {2*k2}, v4")
        e("v_xor_b32 v11, v11, v9")
        e(f"v_lshl_add_u32 v{21+k2}, v11, 4, v10")
    e("s_waitcnt lgkmcnt(0)")
    srd(24, 8, 9, WS_SIZE)
    if PF1:
        srd(16, 4, 5, 0x200000)
        srd(20, 6, 7, 0x180000)
        e("s_lshl_b32 s40, s11, 2")
        e("s_add_u32 s40, s40, s14          ; wid 0..127")
        e("s_lshr_b32 s41, s10, 1")
        e("s_lshl_b32 s41, s41, 19")
        e("s_lshl_b32 s42, s40, 12")
        e("s_add_u32 s41, s41, s42")
        e("v_lshlrev_b32 v40, 6, v2")
        e("buffer_load_dword v41, v40, s[16:19], s41 offen")
        e("v_lshrrev_b32 v40, 4, v2")
        e("v_mul_u32_u24 v40, 0xc00, v40")
        e("v_and_b32 v42, 7, v2")
        e("v_lshl_add_u32 v40, v42, 6, v40")
        e("v_bfe_u32 v42, v2, 3, 1")
        e("v_lshl_add_u32 v43, v42, 10, v40")
        e("s_mul_i32 s41, s40, 0x3000")
        e("s_and_b32 s42, s10, 1")
        e("s_lshl_b32 s42, s42, 9")
        e("s_add_u32 s41, s41, s42")
        e("buffer_load_dword v44, v43, s[20:23], s41 offen")
        e("buffer_load_dword v45, v40, s[20:23], s41 offen offset:2048")
    ACC = 64
    FR = 112
    AD = 26
    def setaddr(c):
        sl = (c % K1_NSLOT) * K1_SLOT
        for i in range(5):
            e(f"v_add_u32 v{AD+5*(c&1)+i}, {sl}, v{20+i}")
    def read_list(kk):
        b = FR + 16*(kk % 3)
        k2 = kk & 3
        ad = AD + 5*((kk//4) & 1)
        if EXP >= 2: return []
        L = [f"ds_read_b128 {vr(b,4)}, v{ad+1+k2}"]
        for j in range(3):
            for ee in range(2):
                L.append(f"ds_read_b64_tr_b16 {vr(b+4+4*j+2*ee,2)}, v{ad} offset:{k2*6144+ee*1536+j*128}")
        return L
    stamp()
    setaddr(0)
    e("s_barrier")
    stamp()
    for r in read_list(0): e(r)
    for r in read_list(1): e(r)
    for kk in range(32):
        nxt = []
        if kk+2 < 32:
            if (kk+2) % 4 == 0:
                c = (kk+2)//4
                setaddr(c)
                e("s_barrier")
                if c == 6: stamp()
            nxt = read_list(kk+2)
        e(f"s_waitcnt lgkmcnt({7 if kk+1 < 32 else 0})")
        b = FR + 16*(kk % 3)
        xf = vr(b, 4)
        for j in range(3):
            acc = vr(ACC+16*j, 16)
            cin = "0" if kk == 0 else acc
            wf = vr(b+4+4*j, 4)
            if EXP >= 2: pass
            elif j < 2:
                e(f"v_mfma_f32_32x32x16_bf16 {acc}, {wf}, {xf}, {cin}")
            else:
                e(f"v_mfma_f32_32x32x16_bf16 {acc}, {xf}, {wf}, {cin}")
            part = nxt[[0,3,5][j]:[3,5,7][j]]
            for r in part: e(r)
    stamp()
    e("v_lshlrev_b32 v5, 4, v2")
    e("s_lshl_b32 s30, s12, 1")
    e("s_add_u32 s30, s30, s29")
    e("s_lshl_b32 s30, s30, 17          ; head0*65536")
    e("s_lshl_b32 s31, s13, 1")
    e("s_add_u32 s31, s31, s28")
    e("s_lshl_b32 s31, s31, 10          ; tile*1024")
    e("s_add_u32 s30, s30, s31")
    e("s_add_u32 s31, s30, 0x10000")
    e(f"s_add_u32 s32, s30, {hex(KB)}")
    e(f"s_add_u32 s33, s31, {hex(KB)}")
    e("v_lshrrev_b32 v9, 4, v3")
    e("v_lshlrev_b32 v6, 16, v9")
    e("v_lshl_add_u32 v6, v4, 8, v6")
    e("v_and_b32 v9, 15, v3")
    e("v_lshl_add_u32 v6, v9, 4, v6")
    e(f"s_add_u32 s34, s30, {hex(VB)}")
    e("s_nop 7")
    P = 8
    for j in range(3):
        for r in range(8):
            e(f"v_cvt_pk_bf16_f32 v{P+8*j+r}, v{ACC+16*j+2*r}, v{ACC+16*j+2*r+1}")
    e(f"buffer_store_dwordx4 {vr(P,4)}, v5, s[24:27], s30 offen")
    e(f"buffer_store_dwordx4 {vr(P+4,4)}, v5, s[24:27], s31 offen")
    e(f"buffer_store_dwordx4 {vr(P+8,4)}, v5, s[24:27], s32 offen")
    e(f"buffer_store_dwordx4 {vr(P+12,4)}, v5, s[24:27], s33 offen")
    e(f"buffer_store_dwordx4 {vr(P+16,4)}, v6, s[24:27], s34 offen")
    e(f"buffer_store_dwordx4 {vr(P+20,4)}, v6, s[24:27], s34 offen offset:512")
    stamp_flush(0, 14, 4)
    dbg_end(0)
    e("s_endpgm")
    e("L_k1_loader:")
    RPL = 64 // NL
    NX = RPL // 8
    NP = RPL // 8
    e("s_sub_u32 s14, s39, 4            ; L")
    e(f"s_mul_i32 s28, s14, {RPL}")
    e("s_add_u32 s30, s15, s28")
    e("v_lshrrev_b32 v9, 3, v2")
    e("v_add_u32 v9, s30, v9")
    e("v_lshlrev_b32 v9, 10, v9")
    e("v_and_b32 v10, 7, v2             ; pos")
    e("v_lshrrev_b32 v11, 4, v2")
    e("s_lshr_b32 s30, s28, 1")
    e("v_add_u32 v11, s30, v11")
    for a_ in range(NX):
        e(f"v_add_u32 v12, {4*a_}, v11")
        e("v_and_b32 v12, 7, v12")
        e("v_xor_b32 v12, v12, v10")
        e("v_lshl_add_u32 v12, v12, 4, v9")
        e(f"v_add_u32 v{16+a_}, {8*a_*1024 - a_*1024}, v12")
    e("s_lshl_b32 s29, s12, 7           ; 128*nt")
    for j in range(3):
        e(f"v_add_u32 v9, {64*j}, v2")
        e("v_mul_u32_u24 v10, 0xaaab, v9")
        e("v_lshrrev_b32 v10, 20, v10       ; row")
        e("v_mul_u32_u24 v11, 24, v10")
        e("v_sub_u32 v11, v9, v11           ; pos")
        e("v_lshrrev_b32 v12, 3, v11        ; seg")
        e("v_and_b32 v11, 7, v11")
        e("v_bfe_u32 v13, v10, 1, 1")
        e("v_lshlrev_b32 v13, 2, v13")
        e("v_xor_b32 v11, v11, v13")
        e("v_mul_u32_u24 v10, 0xc00, v10    ; row*3072")
        e("v_lshl_add_u32 v10, v12, 10, v10")
        e("v_lshl_add_u32 v10, v11, 4, v10")
        e("v_add_u32 v10, s29, v10")
        if j:
            e(f"v_subrev_u32 v{6+j}, {1024*j}, v10")
        else:
            e(f"v_mov_b32 v6, v10")
    e("s_waitcnt lgkmcnt(0)")
    srd(16, 4, 5, 0x200000)
    srd(20, 6, 7, 0x180000)
    e("s_lshl_b32 s36, s28, 7")
    e("s_mul_i32 s37, s28, 384")
    e("s_add_u32 s37, s37, 0x2000")
    e("s_mul_i32 s38, s28, 0xc00        ; W global")
    def issue(c):
        if EXP == 1: return
        sl = (c % K1_NSLOT) * K1_SLOT
        e(f"s_add_u32 s30, s36, {sl}")
        e("s_mov_b32 m0, s30")
        e(f"s_mov_b32 s31, {c*128}")
        for a_ in range(NX):
            e(f"buffer_load_dwordx4 v{16+a_}, s[16:19], s31 offen offset:{1024*a_} lds")
        for pp in range(NP):
            e(f"s_add_u32 s30, s37, {sl + pp*3072}")
            e("s_mov_b32 m0, s30")
            e(f"s_add_u32 s31, s38, {(c*64+pp*8)*3072}")
            for j in range(3):
                e(f"buffer_load_dwordx4 v{6+j}, s[20:23], s31 offen offset:{1024*j} lds")
    per = NX + 3*NP
    for c in range(LA):
        issue(c)
    for c in range(8):
        nout = min(c+LA-1, 7) - c
        e(f"s_waitcnt vmcnt({per*nout})")
        e("s_barrier")
        if c+LA <= 7:
            issue(c+LA)
    e("L_k1_end:")
    e("s_endpgm")
    out.append("")

def gen_k2():
    kernel_begin("attn_kernel")
    e("s_cmp_ge_u32 s2, 256")
    e("s_cbranch_scc1 L_k2_end")
    e("s_load_dwordx2 s[8:9], s[0:1], 40")
    e("s_load_dwordx2 s[4:5], s[0:1], 16")
    e("s_and_b32 s10, s2, 7")
    e("s_lshr_b32 s11, s2, 3")
    e("s_mov_b32 s64, s11")
    if MAP2:
        e("s_and_b32 s12, s10, 1")
        e("s_lshl_b32 s12, s12, 4")
        e("s_and_b32 s13, s11, 15")
        e("s_add_u32 s12, s12, s13          ; head")
        e("s_lshr_b32 s11, s11, 4")
        e("s_and_b32 s13, s10, 6")
        e("s_add_u32 s11, s11, s13          ; j")
    else:
        e("s_lshl_b32 s12, s10, 2")
        e("s_and_b32 s13, s11, 3")
        e("s_add_u32 s12, s12, s13          ; head")
        e("s_lshr_b32 s11, s11, 2           ; j")
    e("v_lshrrev_b32 v1, 6, v0")
    e("v_and_b32 v2, 63, v0             ; lane")
    e("v_readfirstlane_b32 s14, v1      ; wave")
    e("v_and_b32 v3, 31, v2             ; l&31")
    e("v_lshrrev_b32 v4, 5, v2          ; h")
    e("s_lshl_b32 s13, s11, 3")
    e("s_add_u32 s13, s13, s14          ; b")
    e("v_lshlrev_b32 v5, 4, v2          ; lane*16")
    e("s_lshl_b32 s15, s12, 16          ; head*65536")
    e("s_lshl_b32 s16, s13, 10          ; b*1024")
    e("s_add_u32 s16, s16, s15")
    e("s_lshl_b32 s17, s11, 3")
    e("s_lshl_b32 s18, s14, 1")
    e("s_add_u32 s17, s17, s18")
    e("s_sub_u32 s17, s17, 8")
    e("s_max_i32 s17, s17, 0")
    e("s_lshl_b32 s19, s17, 10")
    e("s_add_u32 s19, s19, s15")
    e(f"s_add_u32 s20, s19, {hex(KB)}")
    e(f"s_add_u32 s21, s19, {hex(VB)}")
    e("s_lshl_b32 s22, s14, 11")
    e("s_add_u32 s23, s22, 0x4000")
    e("s_waitcnt lgkmcnt(0)")
    srd(24, 8, 9, WS_SIZE)
    S = 16
    KF = 160
    VF = 196
    QF = 212
    OA = 216
    stamp()
    e(f"buffer_load_dwordx4 {vr(QF,4)}, v5, s[24:27], s16 offen")
    e("s_mov_b32 m0, s22")
    e("s_nop 0")
    e("buffer_load_dwordx4 v5, s[24:27], s20 offen lds")
    e("buffer_load_dwordx4 v5, s[24:27], s20 offen offset:1024 lds")
    e("s_mov_b32 m0, s23")
    e("s_nop 0")
    e("buffer_load_dwordx4 v5, s[24:27], s21 offen lds")
    e("buffer_load_dwordx4 v5, s[24:27], s21 offen offset:1024 lds")
    e("v_mov_b32 v8, 0x3f803f80")
    e("v_mov_b32 v9, 0x3f803f80")
    e("v_mov_b32 v10, 0x8000")
    e("ds_write_b64 v10, v[8:9]")
    e("ds_write_b64 v10, v[8:9] offset:8")
    e("s_lshl_b32 s18, s14, 10")
    e("v_add_u32 v6, s18, v5")
    e("v_lshlrev_b32 v7, 8, v4")
    e("v_lshl_add_u32 v7, v3, 4, v7")
    e("v_add_u32 v7, s18, v7")
    e("v_add_u32 v7, 0x4000, v7")
    e("v_cmp_gt_u32 vcc, 16, v3")
    e("v_mov_b32 v11, 0x200")
    e("s_nop 0")
    e("v_cndmask_b32 v7, v10, v7, vcc")
    e("v_cndmask_b32 v14, 0, v11, vcc   ; step")
    e(f"s_add_u32 s17, s16, {hex(OB)}    ; O soffset")
    e("v_lshlrev_b32 v8, 2, v4")
    e("v_sub_u32 v8, v3, v8")
    for i in range(16):
        ci = (i & 3) + 8*(i >> 2)
        e(f"v_cmp_le_i32 s[{32+2*i}:{33+2*i}], {ci}, v8")
    e("v_mov_b32 v15, 0x3eb8aa3b        ; 0.25*log2(e)")
    e("v_mov_b32 v240, 0x3eb8aa3b")
    e("v_mov_b32 v241, 0x3eb8aa3b")
    e("v_mov_b32 v8, 0xffff")
    e("v_mov_b32 v9, 0xffff0000")
    for r in range(8):
        e(f"v_cndmask_b32 v{232+r}, 0, v8, s[{32+4*r}:{33+4*r}]")
        e(f"v_cndmask_b32 v11, 0, v9, s[{34+4*r}:{35+4*r}]")
        e(f"v_or_b32 v{232+r}, v{232+r}, v11")
    if PF3:
        srd(28, 4, 5, 0x80000)
        e("s_lshl_b32 s64, s64, 3")
        e("s_add_u32 s64, s64, s14")
        e("s_lshl_b32 s64, s64, 11")
        e("v_lshlrev_b32 v253, 5, v2")
    e(f"s_waitcnt vmcnt(0) lgkmcnt(0)")
    e("s_barrier")
    stamp()
    if PF3:
        e("buffer_load_dword v252, v253, s[28:31], s64 offen")
    for t in range(9):
        e(f"ds_read_b128 {vr(KF+4*t,4)}, v6 offset:{1024*t}")
    for t in range(9):
        e(f"s_waitcnt lgkmcnt({8-t})")
        e(f"v_mfma_f32_32x32x16_bf16 {vr(S+16*t,16)}, {vr(KF+4*t,4)}, {vr(QF,4)}, 0")
    e("s_nop 7")
    e("s_nop 4")
    e("s_cmp_ge_u32 s13, 8")
    e("s_cbranch_scc1 L_k2_fix_done")
    e("v_mov_b32 v9, 0xcf800000")
    for t in range(8):
        for i in range(16):
            e(f"v_mov_b32 v{S+16*t+i}, v9")
        if t < 7:
            e(f"s_cmp_ge_u32 s13, {7-t}")
            e("s_cbranch_scc1 L_k2_fix_done")
    e("L_k2_fix_done:")
    for i in range(16):
        e(f"v_cndmask_b32 v{S+128+i}, v{S+i}, v{S+128+i}, s[{32+2*i}:{33+2*i}]")
    vals = [S+16+i for i in range(128)]
    ch = [10, 11, 12, 13]
    for c in range(4):
        sub = vals[32*c:32*c+32]
        e(f"v_max3_f32 v{ch[c]}, v{sub[0]}, v{sub[1]}, v{sub[2]}")
    for step in range(14):
        for c in range(4):
            sub = vals[32*c:32*c+32]
            e(f"v_max3_f32 v{ch[c]}, v{sub[3+2*step]}, v{sub[4+2*step]}, v{ch[c]}")
    for c in range(4):
        sub = vals[32*c:32*c+32]
        e(f"v_max_f32 v{ch[c]}, v{sub[31]}, v{ch[c]}")
    e("v_max3_f32 v10, v10, v11, v12")
    e("v_max_f32 v10, v10, v13")
    e("v_mov_b32 v11, v10")
    e("s_nop 1")
    e("v_permlane32_swap_b32 v10, v11")
    e("v_max_f32 v10, v10, v11")
    e("v_mul_f32 v10, v15, v10          ; m*c")
    e("v_mov_b32 v242, v10")
    e("v_mov_b32 v243, v10")
    stamp()
    def softmax(t):
        base = S+16*t
        if PK:
            for i in range(0, 16, 2):
                e(f"v_pk_fma_f32 {vr(base+i,2)}, {vr(base+i,2)}, v[240:241], v[242:243] neg_lo:[0,0,1] neg_hi:[0,0,1]")
        else:
            for i in range(16):
                e(f"v_fma_f32 v{base+i}, v{base+i}, v15, -v10")
        for i in range(16):
            e(f"v_exp_f32 v{base+i}, v{base+i}")
        for r in range(8):
            e(f"v_cvt_pk_bf16_f32 v{base+r}, v{base+2*r}, v{base+2*r+1}")
        if t == 8:
            for r in range(8):
                e(f"v_and_b32 v{S+8+r}, v{base+r}, v{232+r}")
            for r in range(8):
                e(f"v_xor_b32 v{S+r}, v{base+r}, v{S+8+r}")
            for r in range(8):
                e(f"v_mov_b32 v{base+r}, v{S+8+r}")
    def vread(t):
        b = VF + 8*(t & 1)
        for m in range(2):
            e(f"ds_read_b128 {vr(b+4*m,4)}, v7")
            e("v_add_u32 v7, v7, v14")
    vread(0)
    softmax(8)
    for t in range(9):
        if t+1 < 9:
            vread(t+1)
        if 1 <= t+1 <= 7:
            softmax(t+1)
        e(f"s_waitcnt lgkmcnt({2 if t+1 < 9 else 0})")
        b = VF + 8*(t & 1)
        base = S+16*t
        for m in range(2):
            cin = "0" if (t == 0 and m == 0) else vr(OA, 16)
            e(f"v_mfma_f32_32x32x16_bf16 {vr(OA,16)}, {vr(b+4*m,4)}, {vr(base+4*m,4)}, {cin}")
    stamp()
    e("s_nop 7")
    e("s_nop 7")
    e(f"v_rcp_f32 v10, v{OA+8}")
    e("s_nop 0")
    for i in range(8):
        e(f"v_mul_f32 v{OA+i}, v10, v{OA+i}")
    for r in range(4):
        e(f"v_cvt_pk_bf16_f32 v{16+r}, v{OA+2*r}, v{OA+2*r+1}")
    e(f"buffer_store_dwordx4 v[16:19], v5, s[24:27], s17 offen")
    stamp_flush(1, 14, 8)
    dbg_end(1)
    e("L_k2_end:")
    e("s_endpgm")
    out.append("")

def gen_k3():
    kernel_begin("oproj_kernel")
    e("s_cmp_ge_u32 s2, 256")
    e("s_cbranch_scc1 L_k3_end")
    e("s_load_dwordx4 s[4:7], s[0:1], 16")
    e("s_load_dwordx2 s[8:9], s[0:1], 40")
    e("s_and_b32 s10, s2, 7")
    e("s_lshr_b32 s11, s2, 3")
    if MAP2:
        e("s_lshr_b32 s13, s10, 1")
        e("s_lshl_b32 s13, s13, 3")
        e("s_and_b32 s12, s11, 7")
        e("s_add_u32 s13, s13, s12          ; mt (0..31)")
        e("s_lshr_b32 s12, s11, 3")
        e("s_and_b32 s11, s10, 1")
        e("s_lshl_b32 s11, s11, 2")
        e("s_add_u32 s12, s12, s11          ; nt (0..7)")
    else:
        e("s_lshl_b32 s13, s10, 2")
        e("s_and_b32 s12, s11, 3")
        e("s_add_u32 s13, s13, s12          ; mt (0..31)")
        e("s_lshr_b32 s12, s11, 2           ; nt (0..7)")
    e("v_lshrrev_b32 v1, 6, v0")
    e("v_and_b32 v2, 63, v0             ; lane")
    e("v_readfirstlane_b32 s39, v1      ; wave")
    e("v_and_b32 v3, 31, v2             ; l&31")
    e("v_lshrrev_b32 v4, 5, v2          ; h")
    e("s_and_b32 s14, s39, 3")
    e("v_lshlrev_b32 v5, 4, v2          ; lane*16")
    e("s_cmp_ge_u32 s39, 4")
    e("s_cbranch_scc1 L_k3_loader")
    e("s_lshr_b32 s28, s14, 1           ; a")
    e("s_and_b32 s29, s14, 1            ; b")
    e("s_lshl_b32 s30, s28, 10")
    e("v_add_u32 v12, s30, v5")
    e("v_bfe_u32 v9, v2, 2, 2           ; r")
    e("v_lshl_add_u32 v10, v4, 2, v9    ; 4h+r")
    e("v_lshlrev_b32 v10, 7, v10")
    e("v_lshrrev_b32 v9, 1, v9")
    e("v_xor_b32 v9, s29, v9")
    e("v_lshl_add_u32 v10, v9, 6, v10")
    e("v_bfe_u32 v9, v2, 4, 1           ; g'")
    e("v_lshl_add_u32 v10, v9, 5, v10")
    e("v_and_b32 v9, 3, v2")
    e("v_lshl_add_u32 v13, v9, 3, v10")
    e("v_add_u32 v13, 0x10000, v13")
    e("v_add_u32 v14, 0x8000, v13")
    e("v_add_u32 v15, 0x8000, v12")
    e("s_waitcnt lgkmcnt(0)")
    srd(16, 6, 7, 0x200000)
    srd(24, 8, 9, WS_SIZE)
    ACC = 64
    FR = 32
    def read_list(kk):
        b = FR + 8*(kk % 3)
        k2 = kk & 15
        L = [f"ds_read_b128 {vr(b,4)}, {'v12' if kk < 16 else 'v15'} offset:{k2*2048}"]
        for ee in range(2):
            L.append(f"ds_read_b64_tr_b16 {vr(b+4+2*ee,2)}, {'v13' if kk < 16 else 'v14'} offset:{k2*2048+ee*1024}")
        return L
    stamp()
    e("s_barrier")
    stamp()
    for r in read_list(0): e(r)
    for r in read_list(1): e(r)
    for kk in range(32):
        nxt = []
        if kk+2 < 32:
            if (kk+2) % 4 == 0:
                e("s_barrier")
                if kk+2 == 24: stamp()
            nxt = read_list(kk+2)
        e(f"s_waitcnt lgkmcnt({3 if kk+1 < 32 else 0})")
        b = FR + 8*(kk % 3)
        acc = vr(ACC, 16)
        cin = "0" if kk == 0 else acc
        e(f"v_mfma_f32_32x32x16_bf16 {acc}, {vr(b+4,4)}, {vr(b,4)}, {cin}")
        for r in nxt: e(r)
    stamp()
    e("s_lshl_b32 s30, s13, 1")
    e("s_add_u32 s30, s30, s28")
    e("s_lshl_b32 s30, s30, 5")
    e("v_add_u32 v5, s30, v3")
    e("v_lshlrev_b32 v5, 10, v5")
    e("v_lshl_add_u32 v5, v4, 3, v5")
    e("s_lshl_b32 s30, s12, 1")
    e("s_add_u32 s30, s30, s29")
    e("s_lshl_b32 s30, s30, 6")
    e("v_add_u32 v5, s30, v5")
    e("s_nop 7")
    e("s_nop 3")
    for r in range(8):
        e(f"v_cvt_pk_bf16_f32 v{16+r}, v{ACC+2*r}, v{ACC+2*r+1}")
    for g in range(4):
        e(f"buffer_store_dwordx2 {vr(16+2*g,2)}, v5, s[16:19], 0 offen offset:{16*g}")
    stamp_flush(2, 14, 4)
    dbg_end(2)
    e("s_endpgm")
    e("L_k3_loader:")
    e("v_lshrrev_b32 v9, 3, v2")
    e("v_and_b32 v10, 7, v2")
    e("v_bfe_u32 v11, v2, 4, 1")
    e("v_lshlrev_b32 v11, 2, v11")
    e("v_xor_b32 v10, v10, v11")
    e("v_lshlrev_b32 v9, 10, v9")
    e("v_lshl_add_u32 v9, v10, 4, v9")
    e("s_lshl_b32 s29, s12, 7")
    e("v_add_u32 v6, s29, v9")
    e(f"v_add_u32 v7, {8*1024-1024}, v6")
    e("s_waitcnt lgkmcnt(0)")
    srd(20, 4, 5, 0x80000)
    srd(24, 8, 9, WS_SIZE)
    e("s_lshl_b32 s36, s14, 11")
    e("s_lshl_b32 s37, s14, 16")
    e("s_lshl_b32 s30, s13, 11")
    e("s_add_u32 s37, s37, s30")
    e(f"s_add_u32 s37, s37, {hex(OB)}")
    e("s_lshl_b32 s38, s14, 14          ; W global w*16*1024")
    def issue(c):
        e(f"s_add_u32 s30, s36, {c*8192}")
        e("s_mov_b32 m0, s30")
        e(f"s_add_u32 s31, s37, {c*4*65536}")
        e("buffer_load_dwordx4 v5, s[24:27], s31 offen lds")
        e("buffer_load_dwordx4 v5, s[24:27], s31 offen offset:1024 lds")
        e(f"s_add_u32 s30, s36, {65536 + c*8192}")
        e("s_mov_b32 m0, s30")
        e(f"s_add_u32 s31, s38, {c*65536}")
        e("buffer_load_dwordx4 v6, s[20:23], s31 offen lds")
        e("buffer_load_dwordx4 v7, s[20:23], s31 offen offset:1024 lds")
    LA3 = int(os.environ.get('LA3', '4'))
    for c in range(LA3):
        issue(c)
    for c in range(8):
        nout = min(c+LA3-1, 7) - c
        e(f"s_waitcnt vmcnt({4*nout})")
        e("s_barrier")
        if c+LA3 <= 7:
            issue(c+LA3)
    e("L_k3_end:")
    e("s_endpgm")
    out.append("")

gen_k1()
gen_k2()
gen_k3()
txt = HEADER + "\n".join(out) + "\n" + '.section .rodata,"a"\n'
for n, v in (("qkv_kernel", 160), ("attn_kernel", 256), ("oproj_kernel", 80)):
    txt += ".p2align 6\n" + kd(n, v)
dst = sys.argv[1] if len(sys.argv) > 1 else "standalone__sliding_block__prompt.s"
open(dst, "w").write(txt)
```

```python
import sys, os

K2_LDS = 32768 + 64
K1_SLOT = 32768
K1_NSLOT = 5
PF3 = int(os.environ.get('PF3', '0'))
PF1 = int(os.environ.get('PF1', '0'))
MAP2 = int(os.environ.get('MAP2', '0'))
NL = int(os.environ.get('NL', '4'))
PK = int(os.environ.get('PK', '1'))
PFD = int(os.environ.get('PFD', '8'))
PFD0 = int(os.environ.get('PFD0', '2'))
STM = os.environ.get('STM', '')
LA = int(os.environ.get('LA', '3'))
HEADER = f"""; Kernarg layout for this problem (48 bytes, ptrs only, base s[0:1]):
; @launch kernel=qkv_kernel grid=(256,1,1) block=({256+64*NL},1,1) lds={K1_SLOT*K1_NSLOT}
; @launch kernel=attn_kernel grid=(256,1,1) block=(512,1,1) lds={K2_LDS}
; @launch kernel=oproj_kernel grid=(256,1,1) block=(512,1,1) lds=131072
.amdgcn_target "amdgcn-amd-amdhsa--gfx950"
.text
"""
QB = 0
KB = 0x200000
VB = 0x400000
OB = 0x800000
WS_SIZE = 0x1000000

out = []
def e(s=""):
    out.append("    " + s if s and not s.endswith(":") else s)

DBG = int(os.environ.get("DBG", "0"))
def kernel_begin(name):
    out.append(f".globl {name}")
    out.append(".p2align 8")
    out.append(f".type {name},@function")
    out.append(f"{name}:")
    if DBG:
        e("s_memrealtime s[96:97]")
        e("s_load_dwordx2 s[98:99], s[0:1], 32")
def dbg_end(kid):
    if not DBG: return
    e("s_waitcnt vmcnt(0)")
    e("s_memrealtime s[100:101]")
    e("s_waitcnt lgkmcnt(0)")
    e("s_cmp_lg_u32 s14, 0")
    e(f"s_cbranch_scc1 L_dbg_done{kid}")
    e("s_mov_b32 s92, 0")
    e("s_cmp_eq_u32 s2, 0")
    e(f"s_cbranch_scc1 L_dbg_go{kid}")
    e("s_mov_b32 s92, 8")
    e("s_cmp_lg_u32 s2, 200")
    e(f"s_cbranch_scc1 L_dbg_done{kid}")
    e(f"L_dbg_go{kid}:")
    e(f"s_add_u32 s92, s92, {0xE00000 + kid*16}")
    e("s_mov_b64 exec, 1")
    e("v_mov_b32 v1, 0")
    e("v_mov_b32 v2, s96")
    e("v_mov_b32 v3, s100")
    e(f"buffer_store_dwordx2 v[2:3], v1, s[24:27], s92 offen")
    if kid == 2:
        e("s_cmp_lg_u32 s2, 0")
        e(f"s_cbranch_scc1 L_dbg_done{kid}")
        e("s_mov_b64 exec, 0xffff")
        e("v_lshlrev_b32 v1, 2, v0")
        e("s_mov_b32 s92, 0xE00000")
        e("s_waitcnt vmcnt(0)")
        e("buffer_load_dword v2, v1, s[24:27], s92 offen sc0 sc1")
        e("s_mov_b32 s92, s98")
        e("s_and_b32 s93, s99, 0xffff")
        e("s_mov_b32 s94, 256")
        e("s_mov_b32 s95, 0x20000")
        e("s_waitcnt vmcnt(0)")
        e("buffer_store_dword v2, v1, s[92:95], 0 offen")
    e(f"L_dbg_done{kid}:")
    e("s_mov_b64 exec, -1")

def kd(name, vgpr, sgpr=102):
    return f""".amdhsa_kernel {name}
  .amdhsa_next_free_vgpr {vgpr}
  .amdhsa_next_free_sgpr {sgpr}
  .amdhsa_accum_offset {((vgpr+3)//4)*4}
  .amdhsa_group_segment_fixed_size 0
  .amdhsa_kernarg_size 48
  .amdhsa_user_sgpr_count 2
  .amdhsa_user_sgpr_kernarg_segment_ptr 1
  .amdhsa_system_sgpr_workgroup_id_x 1
.end_amdhsa_kernel
"""

STAMP = int(os.environ.get("STAMP", "0"))
EXP = int(os.environ.get("EXP", "0"))
STAMP_BASE = 0xC00000
STAMP_S = 90
stamp_n = [0]
def stamp():
    if not STAMP: return
    i = stamp_n[0]; stamp_n[0] += 1
    assert i < 6
    e(f"{'s_memrealtime' if STAMP==2 else 's_memtime'} s[{STAMP_S+2*i}:{STAMP_S+2*i+1}]")
def stamp_flush(kid, wave_sgpr, nw):
    if not STAMP: return
    e("s_waitcnt vmcnt(0)")
    stamp()
    n = stamp_n[0]; stamp_n[0] = 0
    e("s_waitcnt lgkmcnt(0)")
    e(f"s_mul_i32 s3, s2, {nw}")
    e(f"s_add_u32 s3, s3, s{wave_sgpr}")
    e("s_lshl_b32 s3, s3, 6")
    e(f"s_add_u32 s3, s3, {hex(STAMP_BASE + kid*0x40000)}")
    e("s_mov_b64 exec, 1")
    e("v_mov_b32 v1, 0")
    for i in range(n):
        e(f"v_mov_b32 v2, s{STAMP_S+2*i}")
        e(f"buffer_store_dword v2, v1, s[24:27], s3 offen offset:{4*i}")
    e("s_mov_b64 exec, -1")

def vr(a, n):
    return f"v[{a}:{a+n-1}]"

def srd(d, lo, hi, size):
    e(f"s_mov_b32 s{d}, s{lo}")
    e(f"s_and_b32 s{d+1}, s{hi}, 0xffff")
    e(f"s_mov_b32 s{d+2}, {hex(size)}")
    e(f"s_mov_b32 s{d+3}, 0x00020000")

def gen_k1():
    kernel_begin("qkv_kernel")
    e("s_cmp_ge_u32 s2, 256")
    e("s_cbranch_scc1 L_k1_end")
    e("s_load_dwordx4 s[4:7], s[0:1], 0")
    e("s_load_dwordx2 s[8:9], s[0:1], 40")
    e("s_and_b32 s10, s2, 7")
    e("s_lshr_b32 s11, s2, 3")
    e("s_and_b32 s12, s10, 1")
    e("s_lshl_b32 s12, s12, 2")
    e("s_and_b32 s13, s11, 3")
    e("s_add_u32 s12, s12, s13          ; nt (0..7)")
    e("s_lshr_b32 s13, s10, 1")
    e("s_lshl_b32 s13, s13, 3")
    e("s_lshr_b32 s14, s11, 2")
    e("s_add_u32 s13, s13, s14          ; mt (0..31)")
    e("v_lshrrev_b32 v1, 6, v0")
    e("v_and_b32 v2, 63, v0             ; lane")
    e("v_readfirstlane_b32 s39, v1      ; wave")
    e("v_and_b32 v3, 31, v2             ; l&31")
    e("v_lshrrev_b32 v4, 5, v2          ; h")
    e("s_and_b32 s14, s39, 3            ; w")
    e("s_lshl_b32 s15, s13, 6")
    e("s_cmp_ge_u32 s39, 4")
    e("s_cbranch_scc1 L_k1_loader")
    e("s_lshr_b32 s28, s14, 1           ; a")
    e("s_and_b32 s29, s14, 1            ; b")
    e("v_bfe_u32 v9, v2, 2, 2           ; r")
    e("v_lshl_add_u32 v10, v4, 3, v9    ; 8h+r")
    e("v_mul_u32_u24 v10, 384, v10")
    e("v_lshrrev_b32 v9, 1, v9")
    e("v_xor_b32 v9, s29, v9")
    e("v_lshl_add_u32 v10, v9, 6, v10")
    e("v_bfe_u32 v9, v2, 4, 1           ; g'")
    e("v_lshl_add_u32 v10, v9, 5, v10")
    e("v_and_b32 v9, 3, v2")
    e("v_lshl_add_u32 v20, v9, 3, v10")
    e("v_add_u32 v20, 0x2000, v20")
    e("v_bfe_u32 v9, v3, 1, 3           ; f")
    e("v_lshlrev_b32 v10, 7, v3")
    e("s_lshl_b32 s30, s28, 12")
    e("v_add_u32 v10, s30, v10")
    for k2 in range(4):
        e(f"v_add_u32 v11, {2*k2}, v4")
        e("v_xor_b32 v11, v11, v9")
        e(f"v_lshl_add_u32 v{21+k2}, v11, 4, v10")
    e("s_waitcnt lgkmcnt(0)")
    srd(24, 8, 9, WS_SIZE)
    stamp()
    if PF1 == 1:
        srd(16, 4, 5, 0x200000)
        srd(20, 6, 7, 0x180000)
        e("s_lshl_b32 s40, s11, 2")
        e("s_add_u32 s40, s40, s14          ; wid 0..127")
        e("s_lshr_b32 s41, s10, 1")
        e("s_lshl_b32 s41, s41, 19")
        e("s_lshl_b32 s42, s40, 12")
        e("s_add_u32 s41, s41, s42")
        e("v_lshlrev_b32 v40, 6, v2")
        e("buffer_load_dword v41, v40, s[16:19], s41 offen")
        e("v_lshrrev_b32 v40, 4, v2")
        e("v_mul_u32_u24 v40, 0xc00, v40")
        e("v_and_b32 v42, 7, v2")
        e("v_lshl_add_u32 v40, v42, 6, v40")
        e("v_bfe_u32 v42, v2, 3, 1")
        e("v_lshl_add_u32 v43, v42, 10, v40")
        e("s_mul_i32 s41, s40, 0x3000")
        e("s_and_b32 s42, s10, 1")
        e("s_lshl_b32 s42, s42, 9")
        e("s_add_u32 s41, s41, s42")
        e("buffer_load_dword v44, v43, s[20:23], s41 offen")
        e("buffer_load_dword v45, v40, s[20:23], s41 offen offset:2048")
    if PF1 == 2:
        srd(16, 4, 5, 0x200000)
        srd(20, 6, 7, 0x180000)
        e("s_lshl_b32 s40, s11, 2")
        e("s_add_u32 s40, s40, s14          ; wid 0..127")
        e("s_cmp_ge_u32 s40, 120")
        e("s_cbranch_scc1 L_pf_done")
        e("s_cmp_ge_u32 s40, 48")
        e("s_cbranch_scc1 L_pf_w")
        e("s_lshl_b32 s41, s40, 6")
        e("v_add_u32 v40, s41, v2")
        e("v_mul_u32_u24 v41, 0xaaab, v40")
        e("v_lshrrev_b32 v41, 18, v41       ; /6")
        e("v_mul_u32_u24 v42, 6, v41")
        e("v_sub_u32 v42, v40, v42")
        e("v_lshlrev_b32 v41, 10, v41")
        e("v_lshl_add_u32 v40, v42, 6, v41")
        e("s_lshr_b32 s41, s10, 1")
        e("s_lshl_b32 s41, s41, 19")
        e(f"s_sleep {PFD0}")
        e("buffer_load_dword v41, v40, s[16:19], s41 offen offset:256")
        e(f"s_sleep {PFD}")
        e("buffer_load_dword v42, v40, s[16:19], s41 offen offset:640")
        e("s_branch L_pf_done")
        e("L_pf_w:")
        e("s_sub_u32 s41, s40, 48")
        e("s_lshl_b32 s41, s41, 6")
        e("v_add_u32 v40, s41, v2")
        e("v_mul_u32_u24 v41, 0xaaab, v40")
        e("v_lshrrev_b32 v41, 20, v41       ; /24")
        e("v_mul_u32_u24 v42, 24, v41")
        e("v_sub_u32 v42, v40, v42")
        e("v_mul_u32_u24 v41, 0xc00, v41")
        e("v_lshrrev_b32 v43, 3, v42")
        e("v_lshl_add_u32 v41, v43, 10, v41")
        e("v_and_b32 v42, 7, v42")
        e("v_lshl_add_u32 v40, v42, 6, v41")
        e("s_and_b32 s42, s10, 1")
        e("s_lshl_b32 s42, s42, 9")
        e(f"s_add_u32 s41, s42, {128*3072}")
        e(f"s_add_u32 s42, s42, {320*3072}")
        e(f"s_sleep {PFD0}")
        e("buffer_load_dword v41, v40, s[20:23], s41 offen")
        e(f"s_sleep {PFD}")
        e("buffer_load_dword v42, v40, s[20:23], s42 offen")
        e("L_pf_done:")
    ACC = 64
    FR = 112
    AD = 26
    def setaddr(c):
        sl = (c % K1_NSLOT) * K1_SLOT
        for i in range(5):
            e(f"v_add_u32 v{AD+5*(c&1)+i}, {sl}, v{20+i}")
    def read_list(kk):
        b = FR + 16*(kk % 3)
        k2 = kk & 3
        ad = AD + 5*((kk//4) & 1)
        if EXP >= 2: return []
        L = [f"ds_read_b128 {vr(b,4)}, v{ad+1+k2}"]
        for j in range(3):
            for ee in range(2):
                L.append(f"ds_read_b64_tr_b16 {vr(b+4+4*j+2*ee,2)}, v{ad} offset:{k2*6144+ee*1536+j*128}")
        return L
    setaddr(0)
    e("s_barrier")
    stamp()
    for r in read_list(0): e(r)
    for r in read_list(1): e(r)
    for kk in range(32):
        nxt = []
        if kk+2 < 32:
            if (kk+2) % 4 == 0:
                c = (kk+2)//4
                setaddr(c)
                e("s_barrier")
                if c == 6: stamp()
            nxt = read_list(kk+2)
        e(f"s_waitcnt lgkmcnt({7 if kk+1 < 32 else 0})")
        b = FR + 16*(kk % 3)
        xf = vr(b, 4)
        for j in range(3):
            acc = vr(ACC+16*j, 16)
            cin = "0" if kk == 0 else acc
            wf = vr(b+4+4*j, 4)
            if EXP >= 2: pass
            elif j < 2:
                e(f"v_mfma_f32_32x32x16_bf16 {acc}, {wf}, {xf}, {cin}")
            else:
                e(f"v_mfma_f32_32x32x16_bf16 {acc}, {xf}, {wf}, {cin}")
            part = nxt[[0,3,5][j]:[3,5,7][j]]
            for r in part: e(r)
    stamp()
    e("v_lshlrev_b32 v5, 4, v2")
    e("s_lshl_b32 s30, s12, 1")
    e("s_add_u32 s30, s30, s29")
    e("s_lshl_b32 s30, s30, 17          ; head0*65536")
    e("s_lshl_b32 s31, s13, 1")
    e("s_add_u32 s31, s31, s28")
    e("s_lshl_b32 s31, s31, 10          ; tile*1024")
    e("s_add_u32 s30, s30, s31")
    e("s_add_u32 s31, s30, 0x10000")
    e(f"s_add_u32 s32, s30, {hex(KB)}")
    e(f"s_add_u32 s33, s31, {hex(KB)}")
    e("v_lshrrev_b32 v9, 4, v3")
    e("v_lshlrev_b32 v6, 16, v9")
    e("v_lshl_add_u32 v6, v4, 8, v6")
    e("v_and_b32 v9, 15, v3")
    e("v_lshl_add_u32 v6, v9, 4, v6")
    e(f"s_add_u32 s34, s30, {hex(VB)}")
    e("s_nop 7")
    P = 8
    for j in range(3):
        for r in range(8):
            e(f"v_cvt_pk_bf16_f32 v{P+8*j+r}, v{ACC+16*j+2*r}, v{ACC+16*j+2*r+1}")
    e(f"buffer_store_dwordx4 {vr(P,4)}, v5, s[24:27], s30 offen {STM}")
    e(f"buffer_store_dwordx4 {vr(P+4,4)}, v5, s[24:27], s31 offen {STM}")
    e(f"buffer_store_dwordx4 {vr(P+8,4)}, v5, s[24:27], s32 offen {STM}")
    e(f"buffer_store_dwordx4 {vr(P+12,4)}, v5, s[24:27], s33 offen {STM}")
    e(f"buffer_store_dwordx4 {vr(P+16,4)}, v6, s[24:27], s34 offen {STM}")
    e(f"buffer_store_dwordx4 {vr(P+20,4)}, v6, s[24:27], s34 offen offset:512 {STM}")
    stamp_flush(0, 14, 4)
    dbg_end(0)
    e("s_endpgm")
    e("L_k1_loader:")
    RPL = 64 // NL
    NX = RPL // 8
    NP = RPL // 8
    e("s_sub_u32 s14, s39, 4            ; L")
    e(f"s_mul_i32 s28, s14, {RPL}")
    e("s_add_u32 s30, s15, s28")
    e("v_lshrrev_b32 v9, 3, v2")
    e("v_add_u32 v9, s30, v9")
    e("v_lshlrev_b32 v9, 10, v9")
    e("v_and_b32 v10, 7, v2             ; pos")
    e("v_lshrrev_b32 v11, 4, v2")
    e("s_lshr_b32 s30, s28, 1")
    e("v_add_u32 v11, s30, v11")
    for a_ in range(NX):
        e(f"v_add_u32 v12, {4*a_}, v11")
        e("v_and_b32 v12, 7, v12")
        e("v_xor_b32 v12, v12, v10")
        e("v_lshl_add_u32 v12, v12, 4, v9")
        e(f"v_add_u32 v{16+a_}, {8*a_*1024 - a_*1024}, v12")
    e("s_lshl_b32 s29, s12, 7           ; 128*nt")
    for j in range(3):
        e(f"v_add_u32 v9, {64*j}, v2")
        e("v_mul_u32_u24 v10, 0xaaab, v9")
        e("v_lshrrev_b32 v10, 20, v10       ; row")
        e("v_mul_u32_u24 v11, 24, v10")
        e("v_sub_u32 v11, v9, v11           ; pos")
        e("v_lshrrev_b32 v12, 3, v11        ; seg")
        e("v_and_b32 v11, 7, v11")
        e("v_bfe_u32 v13, v10, 1, 1")
        e("v_lshlrev_b32 v13, 2, v13")
        e("v_xor_b32 v11, v11, v13")
        e("v_mul_u32_u24 v10, 0xc00, v10    ; row*3072")
        e("v_lshl_add_u32 v10, v12, 10, v10")
        e("v_lshl_add_u32 v10, v11, 4, v10")
        e("v_add_u32 v10, s29, v10")
        if j:
            e(f"v_subrev_u32 v{6+j}, {1024*j}, v10")
        else:
            e(f"v_mov_b32 v6, v10")
    e("s_waitcnt lgkmcnt(0)")
    srd(16, 4, 5, 0x200000)
    srd(20, 6, 7, 0x180000)
    e("s_lshl_b32 s36, s28, 7")
    e("s_mul_i32 s37, s28, 384")
    e("s_add_u32 s37, s37, 0x2000")
    e("s_mul_i32 s38, s28, 0xc00        ; W global")
    def issue(c):
        if EXP == 1: return
        sl = (c % K1_NSLOT) * K1_SLOT
        e(f"s_add_u32 s30, s36, {sl}")
        e("s_mov_b32 m0, s30")
        e(f"s_mov_b32 s31, {c*128}")
        for a_ in range(NX):
            e(f"buffer_load_dwordx4 v{16+a_}, s[16:19], s31 offen offset:{1024*a_} lds")
        for pp in range(NP):
            e(f"s_add_u32 s30, s37, {sl + pp*3072}")
            e("s_mov_b32 m0, s30")
            e(f"s_add_u32 s31, s38, {(c*64+pp*8)*3072}")
            for j in range(3):
                e(f"buffer_load_dwordx4 v{6+j}, s[20:23], s31 offen offset:{1024*j} lds")
    per = NX + 3*NP
    for c in range(LA):
        issue(c)
    for c in range(8):
        nout = min(c+LA-1, 7) - c
        e(f"s_waitcnt vmcnt({per*nout})")
        e("s_barrier")
        if c+LA <= 7:
            issue(c+LA)
    e("L_k1_end:")
    e("s_endpgm")
    out.append("")

def gen_k2():
    kernel_begin("attn_kernel")
    e("s_cmp_ge_u32 s2, 256")
    e("s_cbranch_scc1 L_k2_end")
    e("s_load_dwordx2 s[8:9], s[0:1], 40")
    e("s_load_dwordx2 s[4:5], s[0:1], 16")
    e("s_and_b32 s10, s2, 7")
    e("s_lshr_b32 s11, s2, 3")
    e("s_mov_b32 s64, s11")
    if MAP2:
        e("s_and_b32 s12, s10, 1")
        e("s_lshl_b32 s12, s12, 4")
        e("s_and_b32 s13, s11, 15")
        e("s_add_u32 s12, s12, s13          ; head")
        e("s_lshr_b32 s11, s11, 4")
        e("s_and_b32 s13, s10, 6")
        e("s_add_u32 s11, s11, s13          ; j")
    else:
        e("s_lshl_b32 s12, s10, 2")
        e("s_and_b32 s13, s11, 3")
        e("s_add_u32 s12, s12, s13          ; head")
        e("s_lshr_b32 s11, s11, 2           ; j")
    e("v_lshrrev_b32 v1, 6, v0")
    e("v_and_b32 v2, 63, v0             ; lane")
    e("v_readfirstlane_b32 s14, v1      ; wave")
    e("v_and_b32 v3, 31, v2             ; l&31")
    e("v_lshrrev_b32 v4, 5, v2          ; h")
    e("s_lshl_b32 s13, s11, 3")
    e("s_add_u32 s13, s13, s14          ; b")
    e("v_lshlrev_b32 v5, 4, v2          ; lane*16")
    e("s_lshl_b32 s15, s12, 16          ; head*65536")
    e("s_lshl_b32 s16, s13, 10          ; b*1024")
    e("s_add_u32 s16, s16, s15")
    e("s_lshl_b32 s17, s11, 3")
    e("s_lshl_b32 s18, s14, 1")
    e("s_add_u32 s17, s17, s18")
    e("s_sub_u32 s17, s17, 8")
    e("s_max_i32 s17, s17, 0")
    e("s_lshl_b32 s19, s17, 10")
    e("s_add_u32 s19, s19, s15")
    e(f"s_add_u32 s20, s19, {hex(KB)}")
    e(f"s_add_u32 s21, s19, {hex(VB)}")
    e("s_lshl_b32 s22, s14, 11")
    e("s_add_u32 s23, s22, 0x4000")
    e("s_waitcnt lgkmcnt(0)")
    srd(24, 8, 9, WS_SIZE)
    S = 16
    KF = 160
    VF = 196
    QF = 212
    OA = 216
    stamp()
    e(f"buffer_load_dwordx4 {vr(QF,4)}, v5, s[24:27], s16 offen")
    e("s_mov_b32 m0, s22")
    e("s_nop 0")
    e("buffer_load_dwordx4 v5, s[24:27], s20 offen lds")
    e("buffer_load_dwordx4 v5, s[24:27], s20 offen offset:1024 lds")
    e("s_mov_b32 m0, s23")
    e("s_nop 0")
    e("buffer_load_dwordx4 v5, s[24:27], s21 offen lds")
    e("buffer_load_dwordx4 v5, s[24:27], s21 offen offset:1024 lds")
    e("v_mov_b32 v8, 0x3f803f80")
    e("v_mov_b32 v9, 0x3f803f80")
    e("v_mov_b32 v10, 0x8000")
    e("ds_write_b64 v10, v[8:9]")
    e("ds_write_b64 v10, v[8:9] offset:8")
    e("s_lshl_b32 s18, s14, 10")
    e("v_add_u32 v6, s18, v5")
    e("v_lshlrev_b32 v7, 8, v4")
    e("v_lshl_add_u32 v7, v3, 4, v7")
    e("v_add_u32 v7, s18, v7")
    e("v_add_u32 v7, 0x4000, v7")
    e("v_cmp_gt_u32 vcc, 16, v3")
    e("v_mov_b32 v11, 0x200")
    e("s_nop 0")
    e("v_cndmask_b32 v7, v10, v7, vcc")
    e("v_cndmask_b32 v14, 0, v11, vcc   ; step")
    e(f"s_add_u32 s17, s16, {hex(OB)}    ; O soffset")
    e("v_lshlrev_b32 v8, 2, v4")
    e("v_sub_u32 v8, v3, v8")
    for i in range(16):
        ci = (i & 3) + 8*(i >> 2)
        e(f"v_cmp_le_i32 s[{32+2*i}:{33+2*i}], {ci}, v8")
    e("v_mov_b32 v15, 0x3eb8aa3b        ; 0.25*log2(e)")
    e("v_mov_b32 v240, 0x3eb8aa3b")
    e("v_mov_b32 v241, 0x3eb8aa3b")
    e("v_mov_b32 v8, 0xffff")
    e("v_mov_b32 v9, 0xffff0000")
    for r in range(8):
        e(f"v_cndmask_b32 v{232+r}, 0, v8, s[{32+4*r}:{33+4*r}]")
        e(f"v_cndmask_b32 v11, 0, v9, s[{34+4*r}:{35+4*r}]")
        e(f"v_or_b32 v{232+r}, v{232+r}, v11")
    if PF3:
        srd(28, 4, 5, 0x80000)
        e("s_lshl_b32 s64, s64, 3")
        e("s_add_u32 s64, s64, s14")
        e("s_lshl_b32 s64, s64, 11")
        e("v_lshlrev_b32 v253, 5, v2")
    e(f"s_waitcnt vmcnt(0) lgkmcnt(0)")
    e("s_barrier")
    stamp()
    if PF3:
        e("buffer_load_dword v252, v253, s[28:31], s64 offen")
    for t in range(9):
        e(f"ds_read_b128 {vr(KF+4*t,4)}, v6 offset:{1024*t}")
    for t in range(9):
        e(f"s_waitcnt lgkmcnt({8-t})")
        e(f"v_mfma_f32_32x32x16_bf16 {vr(S+16*t,16)}, {vr(KF+4*t,4)}, {vr(QF,4)}, 0")
    e("s_nop 7")
    e("s_nop 4")
    e("s_cmp_ge_u32 s13, 8")
    e("s_cbranch_scc1 L_k2_fix_done")
    e("v_mov_b32 v9, 0xcf800000")
    for t in range(8):
        for i in range(16):
            e(f"v_mov_b32 v{S+16*t+i}, v9")
        if t < 7:
            e(f"s_cmp_ge_u32 s13, {7-t}")
            e("s_cbranch_scc1 L_k2_fix_done")
    e("L_k2_fix_done:")
    for i in range(16):
        e(f"v_cndmask_b32 v{S+128+i}, v{S+i}, v{S+128+i}, s[{32+2*i}:{33+2*i}]")
    vals = [S+16+i for i in range(128)]
    ch = [10, 11, 12, 13]
    for c in range(4):
        sub = vals[32*c:32*c+32]
        e(f"v_max3_f32 v{ch[c]}, v{sub[0]}, v{sub[1]}, v{sub[2]}")
    for step in range(14):
        for c in range(4):
            sub = vals[32*c:32*c+32]
            e(f"v_max3_f32 v{ch[c]}, v{sub[3+2*step]}, v{sub[4+2*step]}, v{ch[c]}")
    for c in range(4):
        sub = vals[32*c:32*c+32]
        e(f"v_max_f32 v{ch[c]}, v{sub[31]}, v{ch[c]}")
    e("v_max3_f32 v10, v10, v11, v12")
    e("v_max_f32 v10, v10, v13")
    e("v_mov_b32 v11, v10")
    e("s_nop 1")
    e("v_permlane32_swap_b32 v10, v11")
    e("v_max_f32 v10, v10, v11")
    e("v_mul_f32 v10, v15, v10          ; m*c")
    e("v_mov_b32 v242, v10")
    e("v_mov_b32 v243, v10")
    stamp()
    def softmax(t):
        base = S+16*t
        if PK:
            for i in range(0, 16, 2):
                e(f"v_pk_fma_f32 {vr(base+i,2)}, {vr(base+i,2)}, v[240:241], v[242:243] neg_lo:[0,0,1] neg_hi:[0,0,1]")
        else:
            for i in range(16):
                e(f"v_fma_f32 v{base+i}, v{base+i}, v15, -v10")
        for i in range(16):
            e(f"v_exp_f32 v{base+i}, v{base+i}")
        for r in range(8):
            e(f"v_cvt_pk_bf16_f32 v{base+r}, v{base+2*r}, v{base+2*r+1}")
        if t == 8:
            for r in range(8):
                e(f"v_and_b32 v{S+8+r}, v{base+r}, v{232+r}")
            for r in range(8):
                e(f"v_xor_b32 v{S+r}, v{base+r}, v{S+8+r}")
            for r in range(8):
                e(f"v_mov_b32 v{base+r}, v{S+8+r}")
    def vread(t):
        b = VF + 8*(t & 1)
        for m in range(2):
            e(f"ds_read_b128 {vr(b+4*m,4)}, v7")
            e("v_add_u32 v7, v7, v14")
    vread(0)
    softmax(8)
    for t in range(9):
        if t+1 < 9:
            vread(t+1)
        if 1 <= t+1 <= 7:
            softmax(t+1)
        e(f"s_waitcnt lgkmcnt({2 if t+1 < 9 else 0})")
        b = VF + 8*(t & 1)
        base = S+16*t
        for m in range(2):
            cin = "0" if (t == 0 and m == 0) else vr(OA, 16)
            e(f"v_mfma_f32_32x32x16_bf16 {vr(OA,16)}, {vr(b+4*m,4)}, {vr(base+4*m,4)}, {cin}")
    stamp()
    e("s_nop 7")
    e("s_nop 7")
    e(f"v_rcp_f32 v10, v{OA+8}")
    e("s_nop 0")
    for i in range(8):
        e(f"v_mul_f32 v{OA+i}, v10, v{OA+i}")
    for r in range(4):
        e(f"v_cvt_pk_bf16_f32 v{16+r}, v{OA+2*r}, v{OA+2*r+1}")
    e(f"buffer_store_dwordx4 v[16:19], v5, s[24:27], s17 offen {STM}")
    stamp_flush(1, 14, 8)
    dbg_end(1)
    e("L_k2_end:")
    e("s_endpgm")
    out.append("")

def gen_k3():
    kernel_begin("oproj_kernel")
    e("s_cmp_ge_u32 s2, 256")
    e("s_cbranch_scc1 L_k3_end")
    e("s_load_dwordx4 s[4:7], s[0:1], 16")
    e("s_load_dwordx2 s[8:9], s[0:1], 40")
    e("s_and_b32 s10, s2, 7")
    e("s_lshr_b32 s11, s2, 3")
    if MAP2:
        e("s_lshr_b32 s13, s10, 1")
        e("s_lshl_b32 s13, s13, 3")
        e("s_and_b32 s12, s11, 7")
        e("s_add_u32 s13, s13, s12          ; mt (0..31)")
        e("s_lshr_b32 s12, s11, 3")
        e("s_and_b32 s11, s10, 1")
        e("s_lshl_b32 s11, s11, 2")
        e("s_add_u32 s12, s12, s11          ; nt (0..7)")
    else:
        e("s_lshl_b32 s13, s10, 2")
        e("s_and_b32 s12, s11, 3")
        e("s_add_u32 s13, s13, s12          ; mt (0..31)")
        e("s_lshr_b32 s12, s11, 2           ; nt (0..7)")
    e("v_lshrrev_b32 v1, 6, v0")
    e("v_and_b32 v2, 63, v0             ; lane")
    e("v_readfirstlane_b32 s39, v1      ; wave")
    e("v_and_b32 v3, 31, v2             ; l&31")
    e("v_lshrrev_b32 v4, 5, v2          ; h")
    e("s_and_b32 s14, s39, 3")
    e("v_lshlrev_b32 v5, 4, v2          ; lane*16")
    e("s_cmp_ge_u32 s39, 4")
    e("s_cbranch_scc1 L_k3_loader")
    e("s_lshr_b32 s28, s14, 1           ; a")
    e("s_and_b32 s29, s14, 1            ; b")
    e("s_lshl_b32 s30, s28, 10")
    e("v_add_u32 v12, s30, v5")
    e("v_bfe_u32 v9, v2, 2, 2           ; r")
    e("v_lshl_add_u32 v10, v4, 2, v9    ; 4h+r")
    e("v_lshlrev_b32 v10, 7, v10")
    e("v_lshrrev_b32 v9, 1, v9")
    e("v_xor_b32 v9, s29, v9")
    e("v_lshl_add_u32 v10, v9, 6, v10")
    e("v_bfe_u32 v9, v2, 4, 1           ; g'")
    e("v_lshl_add_u32 v10, v9, 5, v10")
    e("v_and_b32 v9, 3, v2")
    e("v_lshl_add_u32 v13, v9, 3, v10")
    e("v_add_u32 v13, 0x10000, v13")
    e("v_add_u32 v14, 0x8000, v13")
    e("v_add_u32 v15, 0x8000, v12")
    e("s_waitcnt lgkmcnt(0)")
    srd(16, 6, 7, 0x200000)
    srd(24, 8, 9, WS_SIZE)
    ACC = 64
    FR = 32
    def read_list(kk):
        b = FR + 8*(kk % 3)
        k2 = kk & 15
        L = [f"ds_read_b128 {vr(b,4)}, {'v12' if kk < 16 else 'v15'} offset:{k2*2048}"]
        for ee in range(2):
            L.append(f"ds_read_b64_tr_b16 {vr(b+4+2*ee,2)}, {'v13' if kk < 16 else 'v14'} offset:{k2*2048+ee*1024}")
        return L
    stamp()
    e("s_barrier")
    stamp()
    for r in read_list(0): e(r)
    for r in read_list(1): e(r)
    for kk in range(32):
        nxt = []
        if kk+2 < 32:
            if (kk+2) % 4 == 0:
                e("s_barrier")
                if kk+2 == 24: stamp()
            nxt = read_list(kk+2)
        e(f"s_waitcnt lgkmcnt({3 if kk+1 < 32 else 0})")
        b = FR + 8*(kk % 3)
        acc = vr(ACC, 16)
        cin = "0" if kk == 0 else acc
        e(f"v_mfma_f32_32x32x16_bf16 {acc}, {vr(b+4,4)}, {vr(b,4)}, {cin}")
        for r in nxt: e(r)
    stamp()
    e("s_lshl_b32 s30, s13, 1")
    e("s_add_u32 s30, s30, s28")
    e("s_lshl_b32 s30, s30, 5")
    e("v_add_u32 v5, s30, v3")
    e("v_lshlrev_b32 v5, 10, v5")
    e("v_lshl_add_u32 v5, v4, 3, v5")
    e("s_lshl_b32 s30, s12, 1")
    e("s_add_u32 s30, s30, s29")
    e("s_lshl_b32 s30, s30, 6")
    e("v_add_u32 v5, s30, v5")
    e("s_nop 7")
    e("s_nop 3")
    for r in range(8):
        e(f"v_cvt_pk_bf16_f32 v{16+r}, v{ACC+2*r}, v{ACC+2*r+1}")
    for g in range(4):
        e(f"buffer_store_dwordx2 {vr(16+2*g,2)}, v5, s[16:19], 0 offen offset:{16*g} {STM}")
    stamp_flush(2, 14, 4)
    dbg_end(2)
    e("s_endpgm")
    e("L_k3_loader:")
    e("v_lshrrev_b32 v9, 3, v2")
    e("v_and_b32 v10, 7, v2")
    e("v_bfe_u32 v11, v2, 4, 1")
    e("v_lshlrev_b32 v11, 2, v11")
    e("v_xor_b32 v10, v10, v11")
    e("v_lshlrev_b32 v9, 10, v9")
    e("v_lshl_add_u32 v9, v10, 4, v9")
    e("s_lshl_b32 s29, s12, 7")
    e("v_add_u32 v6, s29, v9")
    e(f"v_add_u32 v7, {8*1024-1024}, v6")
    e("s_waitcnt lgkmcnt(0)")
    srd(20, 4, 5, 0x80000)
    srd(24, 8, 9, WS_SIZE)
    e("s_lshl_b32 s36, s14, 11")
    e("s_lshl_b32 s37, s14, 16")
    e("s_lshl_b32 s30, s13, 11")
    e("s_add_u32 s37, s37, s30")
    e(f"s_add_u32 s37, s37, {hex(OB)}")
    e("s_lshl_b32 s38, s14, 14          ; W global w*16*1024")
    def issue(c):
        e(f"s_add_u32 s30, s36, {c*8192}")
        e("s_mov_b32 m0, s30")
        e(f"s_add_u32 s31, s37, {c*4*65536}")
        e("buffer_load_dwordx4 v5, s[24:27], s31 offen lds")
        e("buffer_load_dwordx4 v5, s[24:27], s31 offen offset:1024 lds")
        e(f"s_add_u32 s30, s36, {65536 + c*8192}")
        e("s_mov_b32 m0, s30")
        e(f"s_add_u32 s31, s38, {c*65536}")
        e("buffer_load_dwordx4 v6, s[20:23], s31 offen lds")
        e("buffer_load_dwordx4 v7, s[20:23], s31 offen offset:1024 lds")
    LA3 = int(os.environ.get('LA3', '4'))
    for c in range(LA3):
        issue(c)
    for c in range(8):
        nout = min(c+LA3-1, 7) - c
        e(f"s_waitcnt vmcnt({4*nout})")
        e("s_barrier")
        if c+LA3 <= 7:
            issue(c+LA3)
    e("L_k3_end:")
    e("s_endpgm")
    out.append("")

gen_k1()
gen_k2()
gen_k3()
txt = HEADER + "\n".join(out) + "\n" + '.section .rodata,"a"\n'
for n, v in (("qkv_kernel", 160), ("attn_kernel", 256), ("oproj_kernel", 80)):
    txt += ".p2align 6\n" + kd(n, v)
dst = sys.argv[1] if len(sys.argv) > 1 else "standalone__sliding_block__prompt.s"
open(dst, "w").write(txt)
```

```python
import sys, os

K2_LDS = 32768 + 64
K1_SLOT = 32768
K1_NSLOT = 5
PF3 = int(os.environ.get('PF3', '0'))
PF1 = int(os.environ.get('PF1', '0'))
MAP2 = int(os.environ.get('MAP2', '0'))
NL = int(os.environ.get('NL', '4'))
PK = int(os.environ.get('PK', '1'))
PFD = int(os.environ.get('PFD', '8'))
PFD0 = int(os.environ.get('PFD0', '2'))
STM = os.environ.get('STM', '')
LA = int(os.environ.get('LA', '3'))
HEADER = f"""; Kernarg layout for this problem (48 bytes, ptrs only, base s[0:1]):
; @launch kernel=qkv_kernel grid=(256,1,1) block=({256+64*NL},1,1) lds={K1_SLOT*K1_NSLOT}
; @launch kernel=attn_kernel grid=(256,1,1) block=(512,1,1) lds={K2_LDS}
; @launch kernel=oproj_kernel grid=(256,1,1) block=(512,1,1) lds=131072
.amdgcn_target "amdgcn-amd-amdhsa--gfx950"
.text
"""
QB = 0
KB = 0x200000
VB = 0x400000
OB = 0x800000
WS_SIZE = 0x1000000

out = []
def e(s=""):
    out.append("    " + s if s and not s.endswith(":") else s)

DBG = int(os.environ.get("DBG", "0"))
def kernel_begin(name):
    out.append(f".globl {name}")
    out.append(".p2align 8")
    out.append(f".type {name},@function")
    out.append(f"{name}:")
    if DBG:
        e("s_memrealtime s[96:97]")
        e("s_load_dwordx2 s[98:99], s[0:1], 32")
def dbg_end(kid):
    if not DBG: return
    e("s_waitcnt vmcnt(0)")
    e("s_memrealtime s[100:101]")
    e("s_waitcnt lgkmcnt(0)")
    e("s_cmp_lg_u32 s14, 0")
    e(f"s_cbranch_scc1 L_dbg_done{kid}")
    e("s_mov_b32 s92, 0")
    e("s_cmp_eq_u32 s2, 0")
    e(f"s_cbranch_scc1 L_dbg_go{kid}")
    e("s_mov_b32 s92, 8")
    e("s_cmp_lg_u32 s2, 200")
    e(f"s_cbranch_scc1 L_dbg_done{kid}")
    e(f"L_dbg_go{kid}:")
    e(f"s_add_u32 s92, s92, {0xE00000 + kid*16}")
    e("s_mov_b64 exec, 1")
    e("v_mov_b32 v1, 0")
    e("v_mov_b32 v2, s96")
    e("v_mov_b32 v3, s100")
    e(f"buffer_store_dwordx2 v[2:3], v1, s[24:27], s92 offen")
    if kid == 2:
        e("s_cmp_lg_u32 s2, 0")
        e(f"s_cbranch_scc1 L_dbg_done{kid}")
        e("s_mov_b64 exec, 0xffff")
        e("v_lshlrev_b32 v1, 2, v0")
        e("s_mov_b32 s92, 0xE00000")
        e("s_waitcnt vmcnt(0)")
        e("buffer_load_dword v2, v1, s[24:27], s92 offen sc0 sc1")
        e("s_mov_b32 s92, s98")
        e("s_and_b32 s93, s99, 0xffff")
        e("s_mov_b32 s94, 256")
        e("s_mov_b32 s95, 0x20000")
        e("s_waitcnt vmcnt(0)")
        e("buffer_store_dword v2, v1, s[92:95], 0 offen")
    e(f"L_dbg_done{kid}:")
    e("s_mov_b64 exec, -1")

def kd(name, vgpr, sgpr=102):
    return f""".amdhsa_kernel {name}
  .amdhsa_next_free_vgpr {vgpr}
  .amdhsa_next_free_sgpr {sgpr}
  .amdhsa_accum_offset {((vgpr+3)//4)*4}
  .amdhsa_group_segment_fixed_size 0
  .amdhsa_kernarg_size 48
  .amdhsa_user_sgpr_count 2
  .amdhsa_user_sgpr_kernarg_segment_ptr 1
  .amdhsa_system_sgpr_workgroup_id_x 1
.end_amdhsa_kernel
"""

STAMP = int(os.environ.get("STAMP", "0"))
EXP = int(os.environ.get("EXP", "0"))
STAMP_BASE = 0xC00000
STAMP_S = 90
stamp_n = [0]
def stamp():
    if not STAMP: return
    i = stamp_n[0]; stamp_n[0] += 1
    assert i < 6
    e(f"{'s_memrealtime' if STAMP==2 else 's_memtime'} s[{STAMP_S+2*i}:{STAMP_S+2*i+1}]")
def stamp_flush(kid, wave_sgpr, nw):
    if not STAMP: return
    e("s_waitcnt vmcnt(0)")
    stamp()
    n = stamp_n[0]; stamp_n[0] = 0
    e("s_waitcnt lgkmcnt(0)")
    e(f"s_mul_i32 s3, s2, {nw}")
    e(f"s_add_u32 s3, s3, s{wave_sgpr}")
    e("s_lshl_b32 s3, s3, 6")
    e(f"s_add_u32 s3, s3, {hex(STAMP_BASE + kid*0x40000)}")
    e("s_mov_b64 exec, 1")
    e("v_mov_b32 v1, 0")
    for i in range(n):
        e(f"v_mov_b32 v2, s{STAMP_S+2*i}")
        e(f"buffer_store_dword v2, v1, s[24:27], s3 offen offset:{4*i}")
    e("s_mov_b64 exec, -1")

def vr(a, n):
    return f"v[{a}:{a+n-1}]"

def srd(d, lo, hi, size):
    e(f"s_mov_b32 s{d}, s{lo}")
    e(f"s_and_b32 s{d+1}, s{hi}, 0xffff")
    e(f"s_mov_b32 s{d+2}, {hex(size)}")
    e(f"s_mov_b32 s{d+3}, 0x00020000")

def gen_k1():
    kernel_begin("qkv_kernel")
    e("s_cmp_ge_u32 s2, 256")
    e("s_cbranch_scc1 L_k1_end")
    e("s_load_dwordx4 s[4:7], s[0:1], 0")
    e("s_load_dwordx2 s[8:9], s[0:1], 40")
    e("s_and_b32 s10, s2, 7")
    e("s_lshr_b32 s11, s2, 3")
    e("s_and_b32 s12, s10, 1")
    e("s_lshl_b32 s12, s12, 2")
    e("s_and_b32 s13, s11, 3")
    e("s_add_u32 s12, s12, s13          ; nt (0..7)")
    e("s_lshr_b32 s13, s10, 1")
    e("s_lshl_b32 s13, s13, 3")
    e("s_lshr_b32 s14, s11, 2")
    e("s_add_u32 s13, s13, s14          ; mt (0..31)")
    e("v_lshrrev_b32 v1, 6, v0")
    e("v_and_b32 v2, 63, v0             ; lane")
    e("v_readfirstlane_b32 s39, v1      ; wave")
    e("v_and_b32 v3, 31, v2             ; l&31")
    e("v_lshrrev_b32 v4, 5, v2          ; h")
    e("s_and_b32 s14, s39, 3            ; w")
    e("s_lshl_b32 s15, s13, 6")
    e("s_cmp_ge_u32 s39, 4")
    e("s_cbranch_scc1 L_k1_loader")
    e("s_lshr_b32 s28, s14, 1           ; a")
    e("s_and_b32 s29, s14, 1            ; b")
    e("v_bfe_u32 v9, v2, 2, 2           ; r")
    e("v_lshl_add_u32 v10, v4, 3, v9    ; 8h+r")
    e("v_mul_u32_u24 v10, 384, v10")
    e("v_lshrrev_b32 v9, 1, v9")
    e("v_xor_b32 v9, s29, v9")
    e("v_lshl_add_u32 v10, v9, 6, v10")
    e("v_bfe_u32 v9, v2, 4, 1           ; g'")
    e("v_lshl_add_u32 v10, v9, 5, v10")
    e("v_and_b32 v9, 3, v2")
    e("v_lshl_add_u32 v20, v9, 3, v10")
    e("v_add_u32 v20, 0x2000, v20")
    e("v_bfe_u32 v9, v3, 1, 3           ; f")
    e("v_lshlrev_b32 v10, 7, v3")
    e("s_lshl_b32 s30, s28, 12")
    e("v_add_u32 v10, s30, v10")
    for k2 in range(4):
        e(f"v_add_u32 v11, {2*k2}, v4")
        e("v_xor_b32 v11, v11, v9")
        e(f"v_lshl_add_u32 v{21+k2}, v11, 4, v10")
    e("s_waitcnt lgkmcnt(0)")
    srd(24, 8, 9, WS_SIZE)
    stamp()
    if PF1 == 1:
        srd(16, 4, 5, 0x200000)
        srd(20, 6, 7, 0x180000)
        e("s_lshl_b32 s40, s11, 2")
        e("s_add_u32 s40, s40, s14          ; wid 0..127")
        e("s_lshr_b32 s41, s10, 1")
        e("s_lshl_b32 s41, s41, 19")
        e("s_lshl_b32 s42, s40, 12")
        e("s_add_u32 s41, s41, s42")
        e("v_lshlrev_b32 v40, 6, v2")
        e("buffer_load_dword v41, v40, s[16:19], s41 offen")
        e("v_lshrrev_b32 v40, 4, v2")
        e("v_mul_u32_u24 v40, 0xc00, v40")
        e("v_and_b32 v42, 7, v2")
        e("v_lshl_add_u32 v40, v42, 6, v40")
        e("v_bfe_u32 v42, v2, 3, 1")
        e("v_lshl_add_u32 v43, v42, 10, v40")
        e("s_mul_i32 s41, s40, 0x3000")
        e("s_and_b32 s42, s10, 1")
        e("s_lshl_b32 s42, s42, 9")
        e("s_add_u32 s41, s41, s42")
        e("buffer_load_dword v44, v43, s[20:23], s41 offen")
        e("buffer_load_dword v45, v40, s[20:23], s41 offen offset:2048")
    if PF1 == 2:
        srd(16, 4, 5, 0x200000)
        srd(20, 6, 7, 0x180000)
        e("s_lshl_b32 s40, s11, 2")
        e("s_add_u32 s40, s40, s14          ; wid 0..127")
        e("s_cmp_ge_u32 s40, 120")
        e("s_cbranch_scc1 L_pf_done")
        e("s_cmp_ge_u32 s40, 48")
        e("s_cbranch_scc1 L_pf_w")
        e("s_lshl_b32 s41, s40, 6")
        e("v_add_u32 v40, s41, v2")
        e("v_mul_u32_u24 v41, 0xaaab, v40")
        e("v_lshrrev_b32 v41, 18, v41       ; /6")
        e("v_mul_u32_u24 v42, 6, v41")
        e("v_sub_u32 v42, v40, v42")
        e("v_lshlrev_b32 v41, 10, v41")
        e("v_lshl_add_u32 v40, v42, 6, v41")
        e("s_lshr_b32 s41, s10, 1")
        e("s_lshl_b32 s41, s41, 19")
        e(f"s_sleep {PFD0}")
        e("buffer_load_dword v41, v40, s[16:19], s41 offen offset:256")
        e(f"s_sleep {PFD}")
        e("buffer_load_dword v42, v40, s[16:19], s41 offen offset:640")
        e("s_branch L_pf_done")
        e("L_pf_w:")
        e("s_sub_u32 s41, s40, 48")
        e("s_lshl_b32 s41, s41, 6")
        e("v_add_u32 v40, s41, v2")
        e("v_mul_u32_u24 v41, 0xaaab, v40")
        e("v_lshrrev_b32 v41, 20, v41       ; /24")
        e("v_mul_u32_u24 v42, 24, v41")
        e("v_sub_u32 v42, v40, v42")
        e("v_mul_u32_u24 v41, 0xc00, v41")
        e("v_lshrrev_b32 v43, 3, v42")
        e("v_lshl_add_u32 v41, v43, 10, v41")
        e("v_and_b32 v42, 7, v42")
        e("v_lshl_add_u32 v40, v42, 6, v41")
        e("s_and_b32 s42, s10, 1")
        e("s_lshl_b32 s42, s42, 9")
        e(f"s_add_u32 s41, s42, {128*3072}")
        e(f"s_add_u32 s42, s42, {320*3072}")
        e(f"s_sleep {PFD0}")
        e("buffer_load_dword v41, v40, s[20:23], s41 offen")
        e(f"s_sleep {PFD}")
        e("buffer_load_dword v42, v40, s[20:23], s42 offen")
        e("L_pf_done:")
    ACC = 64
    FR = 112
    AD = 26
    def rd(buf, k2, ad):
        b_ = FR + 16*buf
        L = [f"ds_read_b128 {vr(b_,4)}, v{ad+1+k2}"]
        for j in range(3):
            for ee in range(2):
                L.append(f"ds_read_b64_tr_b16 {vr(b_+4+4*j+2*ee,2)}, v{ad} offset:{k2*6144+ee*1536+j*128}")
        return L
    for i in range(48):
        e(f"v_mov_b32 v{ACC+i}, 0")
    for i in range(5):
        e(f"v_mov_b32 v{AD+i}, v{20+i}")
    e("s_mov_b32 s40, 0")
    e("s_mov_b32 s41, 0")
    e("s_barrier")
    stamp()
    for r in rd(0, 0, AD): e(r)
    for r in rd(1, 1, AD): e(r)
    e("L_k1_loop:")
    e(f"s_add_u32 s41, s41, {K1_SLOT}")
    e(f"s_cmp_ge_u32 s41, {K1_SLOT*K1_NSLOT}")
    e("s_cselect_b32 s41, 0, s41")
    for i in range(5):
        e(f"v_add_u32 v{AD+5+i}, s41, v{20+i}")
    for k2 in range(4):
        if k2 == 2:
            e("s_cmp_eq_u32 s40, 7")
            e("s_cbranch_scc1 L_k1_nobar")
            e("s_barrier")
            e("L_k1_nobar:")
        nxt = rd((k2+2) & 3, (k2+2) & 3, AD if k2 < 2 else AD+5)
        e("s_waitcnt lgkmcnt(7)")
        b_ = FR + 16*k2
        xf = vr(b_, 4)
        for j in range(3):
            acc = vr(ACC+16*j, 16)
            wf = vr(b_+4+4*j, 4)
            if j < 2:
                e(f"v_mfma_f32_32x32x16_bf16 {acc}, {wf}, {xf}, {acc}")
            else:
                e(f"v_mfma_f32_32x32x16_bf16 {acc}, {xf}, {wf}, {acc}")
            for r in nxt[[0,3,5][j]:[3,5,7][j]]: e(r)
    for i in range(5):
        e(f"v_mov_b32 v{AD+i}, v{AD+5+i}")
    e("s_add_u32 s40, s40, 1")
    e("s_cmp_lt_u32 s40, 8")
    e("s_cbranch_scc1 L_k1_loop")
    e("s_waitcnt lgkmcnt(0)")
    stamp()
    stamp()
    e("v_lshlrev_b32 v5, 4, v2")
    e("s_lshl_b32 s30, s12, 1")
    e("s_add_u32 s30, s30, s29")
    e("s_lshl_b32 s30, s30, 17          ; head0*65536")
    e("s_lshl_b32 s31, s13, 1")
    e("s_add_u32 s31, s31, s28")
    e("s_lshl_b32 s31, s31, 10          ; tile*1024")
    e("s_add_u32 s30, s30, s31")
    e("s_add_u32 s31, s30, 0x10000")
    e(f"s_add_u32 s32, s30, {hex(KB)}")
    e(f"s_add_u32 s33, s31, {hex(KB)}")
    e("v_lshrrev_b32 v9, 4, v3")
    e("v_lshlrev_b32 v6, 16, v9")
    e("v_lshl_add_u32 v6, v4, 8, v6")
    e("v_and_b32 v9, 15, v3")
    e("v_lshl_add_u32 v6, v9, 4, v6")
    e(f"s_add_u32 s34, s30, {hex(VB)}")
    e("s_nop 7")
    P = 8
    for j in range(3):
        for r in range(8):
            e(f"v_cvt_pk_bf16_f32 v{P+8*j+r}, v{ACC+16*j+2*r}, v{ACC+16*j+2*r+1}")
    e(f"buffer_store_dwordx4 {vr(P,4)}, v5, s[24:27], s30 offen {STM}")
    e(f"buffer_store_dwordx4 {vr(P+4,4)}, v5, s[24:27], s31 offen {STM}")
    e(f"buffer_store_dwordx4 {vr(P+8,4)}, v5, s[24:27], s32 offen {STM}")
    e(f"buffer_store_dwordx4 {vr(P+12,4)}, v5, s[24:27], s33 offen {STM}")
    e(f"buffer_store_dwordx4 {vr(P+16,4)}, v6, s[24:27], s34 offen {STM}")
    e(f"buffer_store_dwordx4 {vr(P+20,4)}, v6, s[24:27], s34 offen offset:512 {STM}")
    stamp_flush(0, 14, 4)
    dbg_end(0)
    e("s_endpgm")
    e("L_k1_loader:")
    RPL = 64 // NL
    NX = RPL // 8
    NP = RPL // 8
    e("s_sub_u32 s14, s39, 4            ; L")
    e(f"s_mul_i32 s28, s14, {RPL}")
    e("s_add_u32 s30, s15, s28")
    e("v_lshrrev_b32 v9, 3, v2")
    e("v_add_u32 v9, s30, v9")
    e("v_lshlrev_b32 v9, 10, v9")
    e("v_and_b32 v10, 7, v2             ; pos")
    e("v_lshrrev_b32 v11, 4, v2")
    e("s_lshr_b32 s30, s28, 1")
    e("v_add_u32 v11, s30, v11")
    for a_ in range(NX):
        e(f"v_add_u32 v12, {4*a_}, v11")
        e("v_and_b32 v12, 7, v12")
        e("v_xor_b32 v12, v12, v10")
        e("v_lshl_add_u32 v12, v12, 4, v9")
        e(f"v_add_u32 v{16+a_}, {8*a_*1024 - a_*1024}, v12")
    e("s_lshl_b32 s29, s12, 7           ; 128*nt")
    for j in range(3):
        e(f"v_add_u32 v9, {64*j}, v2")
        e("v_mul_u32_u24 v10, 0xaaab, v9")
        e("v_lshrrev_b32 v10, 20, v10       ; row")
        e("v_mul_u32_u24 v11, 24, v10")
        e("v_sub_u32 v11, v9, v11           ; pos")
        e("v_lshrrev_b32 v12, 3, v11        ; seg")
        e("v_and_b32 v11, 7, v11")
        e("v_bfe_u32 v13, v10, 1, 1")
        e("v_lshlrev_b32 v13, 2, v13")
        e("v_xor_b32 v11, v11, v13")
        e("v_mul_u32_u24 v10, 0xc00, v10    ; row*3072")
        e("v_lshl_add_u32 v10, v12, 10, v10")
        e("v_lshl_add_u32 v10, v11, 4, v10")
        e("v_add_u32 v10, s29, v10")
        if j:
            e(f"v_subrev_u32 v{6+j}, {1024*j}, v10")
        else:
            e(f"v_mov_b32 v6, v10")
    e("s_waitcnt lgkmcnt(0)")
    srd(16, 4, 5, 0x200000)
    srd(20, 6, 7, 0x180000)
    e("s_lshl_b32 s36, s28, 7")
    e("s_mul_i32 s37, s28, 384")
    e("s_add_u32 s37, s37, 0x2000")
    e("s_mul_i32 s38, s28, 0xc00        ; W global")
    def issue(c):
        if EXP == 1: return
        sl = (c % K1_NSLOT) * K1_SLOT
        e(f"s_add_u32 s30, s36, {sl}")
        e("s_mov_b32 m0, s30")
        e(f"s_mov_b32 s31, {c*128}")
        for a_ in range(NX):
            e(f"buffer_load_dwordx4 v{16+a_}, s[16:19], s31 offen offset:{1024*a_} lds")
        for pp in range(NP):
            e(f"s_add_u32 s30, s37, {sl + pp*3072}")
            e("s_mov_b32 m0, s30")
            e(f"s_add_u32 s31, s38, {(c*64+pp*8)*3072}")
            for j in range(3):
                e(f"buffer_load_dwordx4 v{6+j}, s[20:23], s31 offen offset:{1024*j} lds")
    per = NX + 3*NP
    for c in range(LA):
        issue(c)
    for c in range(8):
        nout = min(c+LA-1, 7) - c
        e(f"s_waitcnt vmcnt({per*nout})")
        e("s_barrier")
        if c+LA <= 7:
            issue(c+LA)
    e("L_k1_end:")
    e("s_endpgm")
    out.append("")

def gen_k2():
    kernel_begin("attn_kernel")
    e("s_cmp_ge_u32 s2, 256")
    e("s_cbranch_scc1 L_k2_end")
    e("s_load_dwordx2 s[8:9], s[0:1], 40")
    e("s_load_dwordx2 s[4:5], s[0:1], 16")
    e("s_and_b32 s10, s2, 7")
    e("s_lshr_b32 s11, s2, 3")
    e("s_mov_b32 s64, s11")
    if MAP2:
        e("s_and_b32 s12, s10, 1")
        e("s_lshl_b32 s12, s12, 4")
        e("s_and_b32 s13, s11, 15")
        e("s_add_u32 s12, s12, s13          ; head")
        e("s_lshr_b32 s11, s11, 4")
        e("s_and_b32 s13, s10, 6")
        e("s_add_u32 s11, s11, s13          ; j")
    else:
        e("s_lshl_b32 s12, s10, 2")
        e("s_and_b32 s13, s11, 3")
        e("s_add_u32 s12, s12, s13          ; head")
        e("s_lshr_b32 s11, s11, 2           ; j")
    e("v_lshrrev_b32 v1, 6, v0")
    e("v_and_b32 v2, 63, v0             ; lane")
    e("v_readfirstlane_b32 s14, v1      ; wave")
    e("v_and_b32 v3, 31, v2             ; l&31")
    e("v_lshrrev_b32 v4, 5, v2          ; h")
    e("s_lshl_b32 s13, s11, 3")
    e("s_add_u32 s13, s13, s14          ; b")
    e("v_lshlrev_b32 v5, 4, v2          ; lane*16")
    e("s_lshl_b32 s15, s12, 16          ; head*65536")
    e("s_lshl_b32 s16, s13, 10          ; b*1024")
    e("s_add_u32 s16, s16, s15")
    e("s_lshl_b32 s17, s11, 3")
    e("s_lshl_b32 s18, s14, 1")
    e("s_add_u32 s17, s17, s18")
    e("s_sub_u32 s17, s17, 8")
    e("s_max_i32 s17, s17, 0")
    e("s_lshl_b32 s19, s17, 10")
    e("s_add_u32 s19, s19, s15")
    e(f"s_add_u32 s20, s19, {hex(KB)}")
    e(f"s_add_u32 s21, s19, {hex(VB)}")
    e("s_lshl_b32 s22, s14, 11")
    e("s_add_u32 s23, s22, 0x4000")
    e("s_waitcnt lgkmcnt(0)")
    srd(24, 8, 9, WS_SIZE)
    S = 16
    KF = 160
    VF = 196
    QF = 212
    OA = 216
    stamp()
    e(f"buffer_load_dwordx4 {vr(QF,4)}, v5, s[24:27], s16 offen")
    e("s_mov_b32 m0, s22")
    e("s_nop 0")
    e("buffer_load_dwordx4 v5, s[24:27], s20 offen lds")
    e("buffer_load_dwordx4 v5, s[24:27], s20 offen offset:1024 lds")
    e("s_mov_b32 m0, s23")
    e("s_nop 0")
    e("buffer_load_dwordx4 v5, s[24:27], s21 offen lds")
    e("buffer_load_dwordx4 v5, s[24:27], s21 offen offset:1024 lds")
    e("v_mov_b32 v8, 0x3f803f80")
    e("v_mov_b32 v9, 0x3f803f80")
    e("v_mov_b32 v10, 0x8000")
    e("ds_write_b64 v10, v[8:9]")
    e("ds_write_b64 v10, v[8:9] offset:8")
    e("s_lshl_b32 s18, s14, 10")
    e("v_add_u32 v6, s18, v5")
    e("v_lshlrev_b32 v7, 8, v4")
    e("v_lshl_add_u32 v7, v3, 4, v7")
    e("v_add_u32 v7, s18, v7")
    e("v_add_u32 v7, 0x4000, v7")
    e("v_cmp_gt_u32 vcc, 16, v3")
    e("v_mov_b32 v11, 0x200")
    e("s_nop 0")
    e("v_cndmask_b32 v7, v10, v7, vcc")
    e("v_cndmask_b32 v14, 0, v11, vcc   ; step")
    e(f"s_add_u32 s17, s16, {hex(OB)}    ; O soffset")
    e("v_lshlrev_b32 v8, 2, v4")
    e("v_sub_u32 v8, v3, v8")
    for i in range(16):
        ci = (i & 3) + 8*(i >> 2)
        e(f"v_cmp_le_i32 s[{32+2*i}:{33+2*i}], {ci}, v8")
    e("v_mov_b32 v15, 0x3eb8aa3b        ; 0.25*log2(e)")
    e("v_mov_b32 v240, 0x3eb8aa3b")
    e("v_mov_b32 v241, 0x3eb8aa3b")
    e("v_mov_b32 v8, 0xffff")
    e("v_mov_b32 v9, 0xffff0000")
    for r in range(8):
        e(f"v_cndmask_b32 v{232+r}, 0, v8, s[{32+4*r}:{33+4*r}]")
        e(f"v_cndmask_b32 v11, 0, v9, s[{34+4*r}:{35+4*r}]")
        e(f"v_or_b32 v{232+r}, v{232+r}, v11")
    if PF3:
        srd(28, 4, 5, 0x80000)
        e("s_lshl_b32 s64, s64, 3")
        e("s_add_u32 s64, s64, s14")
        e("s_lshl_b32 s64, s64, 11")
        e("v_lshlrev_b32 v253, 5, v2")
    e(f"s_waitcnt vmcnt(0) lgkmcnt(0)")
    e("s_barrier")
    stamp()
    if PF3:
        e("buffer_load_dword v252, v253, s[28:31], s64 offen")
    for t in range(9):
        e(f"ds_read_b128 {vr(KF+4*t,4)}, v6 offset:{1024*t}")
    for t in range(9):
        e(f"s_waitcnt lgkmcnt({8-t})")
        e(f"v_mfma_f32_32x32x16_bf16 {vr(S+16*t,16)}, {vr(KF+4*t,4)}, {vr(QF,4)}, 0")
    e("s_nop 7")
    e("s_nop 4")
    e("s_cmp_ge_u32 s13, 8")
    e("s_cbranch_scc1 L_k2_fix_done")
    e("v_mov_b32 v9, 0xcf800000")
    for t in range(8):
        for i in range(16):
            e(f"v_mov_b32 v{S+16*t+i}, v9")
        if t < 7:
            e(f"s_cmp_ge_u32 s13, {7-t}")
            e("s_cbranch_scc1 L_k2_fix_done")
    e("L_k2_fix_done:")
    for i in range(16):
        e(f"v_cndmask_b32 v{S+128+i}, v{S+i}, v{S+128+i}, s[{32+2*i}:{33+2*i}]")
    vals = [S+16+i for i in range(128)]
    ch = [10, 11, 12, 13]
    for c in range(4):
        sub = vals[32*c:32*c+32]
        e(f"v_max3_f32 v{ch[c]}, v{sub[0]}, v{sub[1]}, v{sub[2]}")
    for step in range(14):
        for c in range(4):
            sub = vals[32*c:32*c+32]
            e(f"v_max3_f32 v{ch[c]}, v{sub[3+2*step]}, v{sub[4+2*step]}, v{ch[c]}")
    for c in range(4):
        sub = vals[32*c:32*c+32]
        e(f"v_max_f32 v{ch[c]}, v{sub[31]}, v{ch[c]}")
    e("v_max3_f32 v10, v10, v11, v12")
    e("v_max_f32 v10, v10, v13")
    e("v_mov_b32 v11, v10")
    e("s_nop 1")
    e("v_permlane32_swap_b32 v10, v11")
    e("v_max_f32 v10, v10, v11")
    e("v_mul_f32 v10, v15, v10          ; m*c")
    e("v_mov_b32 v242, v10")
    e("v_mov_b32 v243, v10")
    stamp()
    def softmax(t):
        base = S+16*t
        if PK:
            for i in range(0, 16, 2):
                e(f"v_pk_fma_f32 {vr(base+i,2)}, {vr(base+i,2)}, v[240:241], v[242:243] neg_lo:[0,0,1] neg_hi:[0,0,1]")
        else:
            for i in range(16):
                e(f"v_fma_f32 v{base+i}, v{base+i}, v15, -v10")
        for i in range(16):
            e(f"v_exp_f32 v{base+i}, v{base+i}")
        for r in range(8):
            e(f"v_cvt_pk_bf16_f32 v{base+r}, v{base+2*r}, v{base+2*r+1}")
        if t == 8:
            for r in range(8):
                e(f"v_and_b32 v{S+8+r}, v{base+r}, v{232+r}")
            for r in range(8):
                e(f"v_xor_b32 v{S+r}, v{base+r}, v{S+8+r}")
            for r in range(8):
                e(f"v_mov_b32 v{base+r}, v{S+8+r}")
    def vread(t):
        b = VF + 8*(t & 1)
        for m in range(2):
            e(f"ds_read_b128 {vr(b+4*m,4)}, v7")
            e("v_add_u32 v7, v7, v14")
    vread(0)
    softmax(8)
    for t in range(9):
        if t+1 < 9:
            vread(t+1)
        if 1 <= t+1 <= 7:
            softmax(t+1)
        e(f"s_waitcnt lgkmcnt({2 if t+1 < 9 else 0})")
        b = VF + 8*(t & 1)
        base = S+16*t
        for m in range(2):
            cin = "0" if (t == 0 and m == 0) else vr(OA, 16)
            e(f"v_mfma_f32_32x32x16_bf16 {vr(OA,16)}, {vr(b+4*m,4)}, {vr(base+4*m,4)}, {cin}")
    stamp()
    e("s_nop 7")
    e("s_nop 7")
    e(f"v_rcp_f32 v10, v{OA+8}")
    e("s_nop 0")
    for i in range(8):
        e(f"v_mul_f32 v{OA+i}, v10, v{OA+i}")
    for r in range(4):
        e(f"v_cvt_pk_bf16_f32 v{16+r}, v{OA+2*r}, v{OA+2*r+1}")
    e(f"buffer_store_dwordx4 v[16:19], v5, s[24:27], s17 offen {STM}")
    stamp_flush(1, 14, 8)
    dbg_end(1)
    e("L_k2_end:")
    e("s_endpgm")
    out.append("")

def gen_k3():
    kernel_begin("oproj_kernel")
    e("s_cmp_ge_u32 s2, 256")
    e("s_cbranch_scc1 L_k3_end")
    e("s_load_dwordx4 s[4:7], s[0:1], 16")
    e("s_load_dwordx2 s[8:9], s[0:1], 40")
    e("s_and_b32 s10, s2, 7")
    e("s_lshr_b32 s11, s2, 3")
    if MAP2:
        e("s_lshr_b32 s13, s10, 1")
        e("s_lshl_b32 s13, s13, 3")
        e("s_and_b32 s12, s11, 7")
        e("s_add_u32 s13, s13, s12          ; mt (0..31)")
        e("s_lshr_b32 s12, s11, 3")
        e("s_and_b32 s11, s10, 1")
        e("s_lshl_b32 s11, s11, 2")
        e("s_add_u32 s12, s12, s11          ; nt (0..7)")
    else:
        e("s_lshl_b32 s13, s10, 2")
        e("s_and_b32 s12, s11, 3")
        e("s_add_u32 s13, s13, s12          ; mt (0..31)")
        e("s_lshr_b32 s12, s11, 2           ; nt (0..7)")
    e("v_lshrrev_b32 v1, 6, v0")
    e("v_and_b32 v2, 63, v0             ; lane")
    e("v_readfirstlane_b32 s39, v1      ; wave")
    e("v_and_b32 v3, 31, v2             ; l&31")
    e("v_lshrrev_b32 v4, 5, v2          ; h")
    e("s_and_b32 s14, s39, 3")
    e("v_lshlrev_b32 v5, 4, v2          ; lane*16")
    e("s_cmp_ge_u32 s39, 4")
    e("s_cbranch_scc1 L_k3_loader")
    e("s_lshr_b32 s28, s14, 1           ; a")
    e("s_and_b32 s29, s14, 1            ; b")
    e("s_lshl_b32 s30, s28, 10")
    e("v_add_u32 v12, s30, v5")
    e("v_bfe_u32 v9, v2, 2, 2           ; r")
    e("v_lshl_add_u32 v10, v4, 2, v9    ; 4h+r")
    e("v_lshlrev_b32 v10, 7, v10")
    e("v_lshrrev_b32 v9, 1, v9")
    e("v_xor_b32 v9, s29, v9")
    e("v_lshl_add_u32 v10, v9, 6, v10")
    e("v_bfe_u32 v9, v2, 4, 1           ; g'")
    e("v_lshl_add_u32 v10, v9, 5, v10")
    e("v_and_b32 v9, 3, v2")
    e("v_lshl_add_u32 v13, v9, 3, v10")
    e("v_add_u32 v13, 0x10000, v13")
    e("v_add_u32 v14, 0x8000, v13")
    e("v_add_u32 v15, 0x8000, v12")
    e("s_waitcnt lgkmcnt(0)")
    srd(16, 6, 7, 0x200000)
    srd(24, 8, 9, WS_SIZE)
    ACC = 64
    FR = 32
    def read_list(kk):
        b = FR + 8*(kk % 3)
        k2 = kk & 15
        L = [f"ds_read_b128 {vr(b,4)}, {'v12' if kk < 16 else 'v15'} offset:{k2*2048}"]
        for ee in range(2):
            L.append(f"ds_read_b64_tr_b16 {vr(b+4+2*ee,2)}, {'v13' if kk < 16 else 'v14'} offset:{k2*2048+ee*1024}")
        return L
    stamp()
    e("s_barrier")
    stamp()
    for r in read_list(0): e(r)
    for r in read_list(1): e(r)
    for kk in range(32):
        nxt = []
        if kk+2 < 32:
            if (kk+2) % 4 == 0:
                e("s_barrier")
                if kk+2 == 24: stamp()
            nxt = read_list(kk+2)
        e(f"s_waitcnt lgkmcnt({3 if kk+1 < 32 else 0})")
        b = FR + 8*(kk % 3)
        acc = vr(ACC, 16)
        cin = "0" if kk == 0 else acc
        e(f"v_mfma_f32_32x32x16_bf16 {acc}, {vr(b+4,4)}, {vr(b,4)}, {cin}")
        for r in nxt: e(r)
    stamp()
    e("s_lshl_b32 s30, s13, 1")
    e("s_add_u32 s30, s30, s28")
    e("s_lshl_b32 s30, s30, 5")
    e("v_add_u32 v5, s30, v3")
    e("v_lshlrev_b32 v5, 10, v5")
    e("v_lshl_add_u32 v5, v4, 3, v5")
    e("s_lshl_b32 s30, s12, 1")
    e("s_add_u32 s30, s30, s29")
    e("s_lshl_b32 s30, s30, 6")
    e("v_add_u32 v5, s30, v5")
    e("s_nop 7")
    e("s_nop 3")
    for r in range(8):
        e(f"v_cvt_pk_bf16_f32 v{16+r}, v{ACC+2*r}, v{ACC+2*r+1}")
    for g in range(4):
        e(f"buffer_store_dwordx2 {vr(16+2*g,2)}, v5, s[16:19], 0 offen offset:{16*g} {STM}")
    stamp_flush(2, 14, 4)
    dbg_end(2)
    e("s_endpgm")
    e("L_k3_loader:")
    e("v_lshrrev_b32 v9, 3, v2")
    e("v_and_b32 v10, 7, v2")
    e("v_bfe_u32 v11, v2, 4, 1")
    e("v_lshlrev_b32 v11, 2, v11")
    e("v_xor_b32 v10, v10, v11")
    e("v_lshlrev_b32 v9, 10, v9")
    e("v_lshl_add_u32 v9, v10, 4, v9")
    e("s_lshl_b32 s29, s12, 7")
    e("v_add_u32 v6, s29, v9")
    e(f"v_add_u32 v7, {8*1024-1024}, v6")
    e("s_waitcnt lgkmcnt(0)")
    srd(20, 4, 5, 0x80000)
    srd(24, 8, 9, WS_SIZE)
    e("s_lshl_b32 s36, s14, 11")
    e("s_lshl_b32 s37, s14, 16")
    e("s_lshl_b32 s30, s13, 11")
    e("s_add_u32 s37, s37, s30")
    e(f"s_add_u32 s37, s37, {hex(OB)}")
    e("s_lshl_b32 s38, s14, 14          ; W global w*16*1024")
    def issue(c):
        e(f"s_add_u32 s30, s36, {c*8192}")
        e("s_mov_b32 m0, s30")
        e(f"s_add_u32 s31, s37, {c*4*65536}")
        e("buffer_load_dwordx4 v5, s[24:27], s31 offen lds")
        e("buffer_load_dwordx4 v5, s[24:27], s31 offen offset:1024 lds")
        e(f"s_add_u32 s30, s36, {65536 + c*8192}")
        e("s_mov_b32 m0, s30")
        e(f"s_add_u32 s31, s38, {c*65536}")
        e("buffer_load_dwordx4 v6, s[20:23], s31 offen lds")
        e("buffer_load_dwordx4 v7, s[20:23], s31 offen offset:1024 lds")
    LA3 = int(os.environ.get('LA3', '4'))
    for c in range(LA3):
        issue(c)
    for c in range(8):
        nout = min(c+LA3-1, 7) - c
        e(f"s_waitcnt vmcnt({4*nout})")
        e("s_barrier")
        if c+LA3 <= 7:
            issue(c+LA3)
    e("L_k3_end:")
    e("s_endpgm")
    out.append("")

gen_k1()
gen_k2()
gen_k3()
txt = HEADER + "\n".join(out) + "\n" + '.section .rodata,"a"\n'
for n, v in (("qkv_kernel", 176), ("attn_kernel", 256), ("oproj_kernel", 80)):
    txt += ".p2align 6\n" + kd(n, v)
dst = sys.argv[1] if len(sys.argv) > 1 else "standalone__sliding_block__prompt.s"
open(dst, "w").write(txt)
```

```python
import sys, os

K2_LDS = 32768 + 64
K1_SLOT = 32768
K1_NSLOT = 5
PF3 = int(os.environ.get('PF3', '0'))
PF1 = int(os.environ.get('PF1', '0'))
MAP2 = int(os.environ.get('MAP2', '0'))
NL = int(os.environ.get('NL', '4'))
PK = int(os.environ.get('PK', '1'))
PFD = int(os.environ.get('PFD', '8'))
PFD0 = int(os.environ.get('PFD0', '2'))
STM = os.environ.get('STM', '')
ROT = int(os.environ.get('ROT', '1'))
MAP1 = int(os.environ.get('MAP1', '0'))
LA = int(os.environ.get('LA', '3'))
HEADER = f"""; Kernarg layout for this problem (48 bytes, ptrs only, base s[0:1]):
; @launch kernel=qkv_kernel grid=(256,1,1) block=({256+64*NL},1,1) lds={K1_SLOT*K1_NSLOT}
; @launch kernel=attn_kernel grid=(256,1,1) block=(512,1,1) lds={K2_LDS}
; @launch kernel=oproj_kernel grid=(256,1,1) block=(512,1,1) lds=131072
.amdgcn_target "amdgcn-amd-amdhsa--gfx950"
.text
"""
QB = 0
KB = 0x200000
VB = 0x400000
OB = 0x800000
WS_SIZE = 0x1000000

out = []
def e(s=""):
    out.append("    " + s if s and not s.endswith(":") else s)

DBG = int(os.environ.get("DBG", "0"))
def kernel_begin(name):
    out.append(f".globl {name}")
    out.append(".p2align 8")
    out.append(f".type {name},@function")
    out.append(f"{name}:")
    if DBG:
        e("s_memrealtime s[96:97]")
        e("s_load_dwordx2 s[98:99], s[0:1], 32")
def dbg_end(kid):
    if not DBG: return
    e("s_waitcnt vmcnt(0)")
    e("s_memrealtime s[100:101]")
    e("s_waitcnt lgkmcnt(0)")
    e("s_cmp_lg_u32 s14, 0")
    e(f"s_cbranch_scc1 L_dbg_done{kid}")
    e("s_mov_b32 s92, 0")
    e("s_cmp_eq_u32 s2, 0")
    e(f"s_cbranch_scc1 L_dbg_go{kid}")
    e("s_mov_b32 s92, 8")
    e("s_cmp_lg_u32 s2, 200")
    e(f"s_cbranch_scc1 L_dbg_done{kid}")
    e(f"L_dbg_go{kid}:")
    e(f"s_add_u32 s92, s92, {0xE00000 + kid*16}")
    e("s_mov_b64 exec, 1")
    e("v_mov_b32 v1, 0")
    e("v_mov_b32 v2, s96")
    e("v_mov_b32 v3, s100")
    e(f"buffer_store_dwordx2 v[2:3], v1, s[24:27], s92 offen")
    if kid == 2:
        e("s_cmp_lg_u32 s2, 0")
        e(f"s_cbranch_scc1 L_dbg_done{kid}")
        e("s_mov_b64 exec, 0xffff")
        e("v_lshlrev_b32 v1, 2, v0")
        e("s_mov_b32 s92, 0xE00000")
        e("s_waitcnt vmcnt(0)")
        e("buffer_load_dword v2, v1, s[24:27], s92 offen sc0 sc1")
        e("s_mov_b32 s92, s98")
        e("s_and_b32 s93, s99, 0xffff")
        e("s_mov_b32 s94, 256")
        e("s_mov_b32 s95, 0x20000")
        e("s_waitcnt vmcnt(0)")
        e("buffer_store_dword v2, v1, s[92:95], 0 offen")
    e(f"L_dbg_done{kid}:")
    e("s_mov_b64 exec, -1")

def kd(name, vgpr, sgpr=102):
    return f""".amdhsa_kernel {name}
  .amdhsa_next_free_vgpr {vgpr}
  .amdhsa_next_free_sgpr {sgpr}
  .amdhsa_accum_offset {((vgpr+3)//4)*4}
  .amdhsa_group_segment_fixed_size 0
  .amdhsa_kernarg_size 48
  .amdhsa_user_sgpr_count 2
  .amdhsa_user_sgpr_kernarg_segment_ptr 1
  .amdhsa_system_sgpr_workgroup_id_x 1
.end_amdhsa_kernel
"""

STAMP = int(os.environ.get("STAMP", "0"))
EXP = int(os.environ.get("EXP", "0"))
STAMP_BASE = 0xC00000
STAMP_S = 90
stamp_n = [0]
def stamp():
    if not STAMP: return
    i = stamp_n[0]; stamp_n[0] += 1
    assert i < 6
    e(f"{'s_memrealtime' if STAMP==2 else 's_memtime'} s[{STAMP_S+2*i}:{STAMP_S+2*i+1}]")
def stamp_flush(kid, wave_sgpr, nw):
    if not STAMP: return
    e("s_waitcnt vmcnt(0)")
    stamp()
    n = stamp_n[0]; stamp_n[0] = 0
    e("s_waitcnt lgkmcnt(0)")
    e(f"s_mul_i32 s3, s2, {nw}")
    e(f"s_add_u32 s3, s3, s{wave_sgpr}")
    e("s_lshl_b32 s3, s3, 6")
    e(f"s_add_u32 s3, s3, {hex(STAMP_BASE + kid*0x40000)}")
    e("s_mov_b64 exec, 1")
    e("v_mov_b32 v1, 0")
    for i in range(n):
        e(f"v_mov_b32 v2, s{STAMP_S+2*i}")
        e(f"buffer_store_dword v2, v1, s[24:27], s3 offen offset:{4*i}")
    e("s_mov_b64 exec, -1")

def vr(a, n):
    return f"v[{a}:{a+n-1}]"

def srd(d, lo, hi, size):
    e(f"s_mov_b32 s{d}, s{lo}")
    e(f"s_and_b32 s{d+1}, s{hi}, 0xffff")
    e(f"s_mov_b32 s{d+2}, {hex(size)}")
    e(f"s_mov_b32 s{d+3}, 0x00020000")

def gen_k1():
    kernel_begin("qkv_kernel")
    e("s_cmp_ge_u32 s2, 256")
    e("s_cbranch_scc1 L_k1_end")
    e("s_load_dwordx4 s[4:7], s[0:1], 0")
    e("s_load_dwordx2 s[8:9], s[0:1], 40")
    e("s_and_b32 s10, s2, 7")
    e("s_lshr_b32 s11, s2, 3")
    if MAP1 == 0:
        e("s_and_b32 s12, s10, 1")
        e("s_lshl_b32 s12, s12, 2")
        e("s_and_b32 s13, s11, 3")
        e("s_add_u32 s12, s12, s13          ; nt (0..7)")
        e("s_lshr_b32 s13, s10, 1")
        e("s_lshl_b32 s13, s13, 3")
        e("s_lshr_b32 s14, s11, 2")
        e("s_add_u32 s13, s13, s14          ; mt (0..31)")
    elif MAP1 == 1:
        e("s_mov_b32 s12, s10")
        e("s_mov_b32 s13, s11")
    elif MAP1 == 2:
        e("s_and_b32 s12, s11, 7")
        e("s_lshr_b32 s13, s11, 3")
        e("s_lshl_b32 s13, s13, 3")
        e("s_add_u32 s13, s13, s10")
    e("v_lshrrev_b32 v1, 6, v0")
    e("v_and_b32 v2, 63, v0             ; lane")
    e("v_readfirstlane_b32 s39, v1      ; wave")
    e("v_and_b32 v3, 31, v2             ; l&31")
    e("v_lshrrev_b32 v4, 5, v2          ; h")
    e("s_and_b32 s14, s39, 3            ; w")
    e("s_lshl_b32 s15, s13, 6")
    e("s_cmp_ge_u32 s39, 4")
    e("s_cbranch_scc1 L_k1_loader")
    e("s_lshr_b32 s28, s14, 1           ; a")
    e("s_and_b32 s29, s14, 1            ; b")
    e("v_bfe_u32 v9, v2, 2, 2           ; r")
    e("v_lshl_add_u32 v10, v4, 3, v9    ; 8h+r")
    e("v_mul_u32_u24 v10, 384, v10")
    e("v_lshrrev_b32 v9, 1, v9")
    e("v_xor_b32 v9, s29, v9")
    e("v_lshl_add_u32 v10, v9, 6, v10")
    e("v_bfe_u32 v9, v2, 4, 1           ; g'")
    e("v_lshl_add_u32 v10, v9, 5, v10")
    e("v_and_b32 v9, 3, v2")
    e("v_lshl_add_u32 v20, v9, 3, v10")
    e("v_add_u32 v20, 0x2000, v20")
    e("v_bfe_u32 v9, v3, 1, 3           ; f")
    e("v_lshlrev_b32 v10, 7, v3")
    e("s_lshl_b32 s30, s28, 12")
    e("v_add_u32 v10, s30, v10")
    for k2 in range(4):
        e(f"v_add_u32 v11, {2*k2}, v4")
        e("v_xor_b32 v11, v11, v9")
        e(f"v_lshl_add_u32 v{21+k2}, v11, 4, v10")
    e("s_waitcnt lgkmcnt(0)")
    srd(24, 8, 9, WS_SIZE)
    stamp()
    if PF1 == 1:
        srd(16, 4, 5, 0x200000)
        srd(20, 6, 7, 0x180000)
        e("s_lshl_b32 s40, s11, 2")
        e("s_add_u32 s40, s40, s14          ; wid 0..127")
        e("s_lshr_b32 s41, s10, 1")
        e("s_lshl_b32 s41, s41, 19")
        e("s_lshl_b32 s42, s40, 12")
        e("s_add_u32 s41, s41, s42")
        e("v_lshlrev_b32 v40, 6, v2")
        e("buffer_load_dword v41, v40, s[16:19], s41 offen")
        e("v_lshrrev_b32 v40, 4, v2")
        e("v_mul_u32_u24 v40, 0xc00, v40")
        e("v_and_b32 v42, 7, v2")
        e("v_lshl_add_u32 v40, v42, 6, v40")
        e("v_bfe_u32 v42, v2, 3, 1")
        e("v_lshl_add_u32 v43, v42, 10, v40")
        e("s_mul_i32 s41, s40, 0x3000")
        e("s_and_b32 s42, s10, 1")
        e("s_lshl_b32 s42, s42, 9")
        e("s_add_u32 s41, s41, s42")
        e("buffer_load_dword v44, v43, s[20:23], s41 offen")
        e("buffer_load_dword v45, v40, s[20:23], s41 offen offset:2048")
    if PF1 == 2:
        srd(16, 4, 5, 0x200000)
        srd(20, 6, 7, 0x180000)
        e("s_lshl_b32 s40, s11, 2")
        e("s_add_u32 s40, s40, s14          ; wid 0..127")
        e("s_cmp_ge_u32 s40, 120")
        e("s_cbranch_scc1 L_pf_done")
        e("s_cmp_ge_u32 s40, 48")
        e("s_cbranch_scc1 L_pf_w")
        e("s_lshl_b32 s41, s40, 6")
        e("v_add_u32 v40, s41, v2")
        e("v_mul_u32_u24 v41, 0xaaab, v40")
        e("v_lshrrev_b32 v41, 18, v41       ; /6")
        e("v_mul_u32_u24 v42, 6, v41")
        e("v_sub_u32 v42, v40, v42")
        e("v_lshlrev_b32 v41, 10, v41")
        e("v_lshl_add_u32 v40, v42, 6, v41")
        e("s_lshr_b32 s41, s10, 1")
        e("s_lshl_b32 s41, s41, 19")
        e(f"s_sleep {PFD0}")
        e("buffer_load_dword v41, v40, s[16:19], s41 offen offset:256")
        e(f"s_sleep {PFD}")
        e("buffer_load_dword v42, v40, s[16:19], s41 offen offset:640")
        e("s_branch L_pf_done")
        e("L_pf_w:")
        e("s_sub_u32 s41, s40, 48")
        e("s_lshl_b32 s41, s41, 6")
        e("v_add_u32 v40, s41, v2")
        e("v_mul_u32_u24 v41, 0xaaab, v40")
        e("v_lshrrev_b32 v41, 20, v41       ; /24")
        e("v_mul_u32_u24 v42, 24, v41")
        e("v_sub_u32 v42, v40, v42")
        e("v_mul_u32_u24 v41, 0xc00, v41")
        e("v_lshrrev_b32 v43, 3, v42")
        e("v_lshl_add_u32 v41, v43, 10, v41")
        e("v_and_b32 v42, 7, v42")
        e("v_lshl_add_u32 v40, v42, 6, v41")
        e("s_and_b32 s42, s10, 1")
        e("s_lshl_b32 s42, s42, 9")
        e(f"s_add_u32 s41, s42, {128*3072}")
        e(f"s_add_u32 s42, s42, {320*3072}")
        e(f"s_sleep {PFD0}")
        e("buffer_load_dword v41, v40, s[20:23], s41 offen")
        e(f"s_sleep {PFD}")
        e("buffer_load_dword v42, v40, s[20:23], s42 offen")
        e("L_pf_done:")
    ACC = 64
    FR = 112
    AD = 26
    def setaddr(c):
        sl = (c % K1_NSLOT) * K1_SLOT
        for i in range(5):
            e(f"v_add_u32 v{AD+5*(c&1)+i}, {sl}, v{20+i}")
    def read_list(kk):
        b = FR + 16*(kk % 3)
        k2 = kk & 3
        ad = AD + 5*((kk//4) & 1)
        if EXP >= 2: return []
        L = [f"ds_read_b128 {vr(b,4)}, v{ad+1+k2}"]
        for j in range(3):
            for ee in range(2):
                L.append(f"ds_read_b64_tr_b16 {vr(b+4+4*j+2*ee,2)}, v{ad} offset:{k2*6144+ee*1536+j*128}")
        return L
    setaddr(0)
    e("s_barrier")
    stamp()
    for r in read_list(0): e(r)
    for r in read_list(1): e(r)
    for kk in range(32):
        nxt = []
        if kk+2 < 32:
            if (kk+2) % 4 == 0:
                c = (kk+2)//4
                setaddr(c)
                e("s_barrier")
                if c == 6: stamp()
            nxt = read_list(kk+2)
        e(f"s_waitcnt lgkmcnt({7 if kk+1 < 32 else 0})")
        b = FR + 16*(kk % 3)
        xf = vr(b, 4)
        for j in range(3):
            acc = vr(ACC+16*j, 16)
            cin = "0" if kk == 0 else acc
            wf = vr(b+4+4*j, 4)
            if EXP >= 2: pass
            elif j < 2:
                e(f"v_mfma_f32_32x32x16_bf16 {acc}, {wf}, {xf}, {cin}")
            else:
                e(f"v_mfma_f32_32x32x16_bf16 {acc}, {xf}, {wf}, {cin}")
            part = nxt[[0,3,5][j]:[3,5,7][j]]
            for r in part: e(r)
    stamp()
    e("v_lshlrev_b32 v5, 4, v2")
    e("s_lshl_b32 s30, s12, 1")
    e("s_add_u32 s30, s30, s29")
    e("s_lshl_b32 s30, s30, 17          ; head0*65536")
    e("s_lshl_b32 s31, s13, 1")
    e("s_add_u32 s31, s31, s28")
    e("s_lshl_b32 s31, s31, 10          ; tile*1024")
    e("s_add_u32 s30, s30, s31")
    e("s_add_u32 s31, s30, 0x10000")
    e(f"s_add_u32 s32, s30, {hex(KB)}")
    e(f"s_add_u32 s33, s31, {hex(KB)}")
    e("v_lshrrev_b32 v9, 4, v3")
    e("v_lshlrev_b32 v6, 16, v9")
    e("v_lshl_add_u32 v6, v4, 8, v6")
    e("v_and_b32 v9, 15, v3")
    e("v_lshl_add_u32 v6, v9, 4, v6")
    e(f"s_add_u32 s34, s30, {hex(VB)}")
    e("s_nop 7")
    P = 8
    for j in range(3):
        for r in range(8):
            e(f"v_cvt_pk_bf16_f32 v{P+8*j+r}, v{ACC+16*j+2*r}, v{ACC+16*j+2*r+1}")
    e(f"buffer_store_dwordx4 {vr(P,4)}, v5, s[24:27], s30 offen {STM}")
    e(f"buffer_store_dwordx4 {vr(P+4,4)}, v5, s[24:27], s31 offen {STM}")
    e(f"buffer_store_dwordx4 {vr(P+8,4)}, v5, s[24:27], s32 offen {STM}")
    e(f"buffer_store_dwordx4 {vr(P+12,4)}, v5, s[24:27], s33 offen {STM}")
    e(f"buffer_store_dwordx4 {vr(P+16,4)}, v6, s[24:27], s34 offen {STM}")
    e(f"buffer_store_dwordx4 {vr(P+20,4)}, v6, s[24:27], s34 offen offset:512 {STM}")
    stamp_flush(0, 14, 4)
    dbg_end(0)
    e("s_endpgm")
    e("L_k1_loader:")
    RPL = 64 // NL
    NX = RPL // 8
    NP = RPL // 8
    e("s_sub_u32 s14, s39, 4            ; L")
    e(f"s_mul_i32 s28, s14, {RPL}")
    e("s_add_u32 s30, s15, s28")
    e("v_lshrrev_b32 v9, 3, v2")
    e("v_add_u32 v9, s30, v9")
    e("v_lshlrev_b32 v9, 10, v9")
    e("v_and_b32 v10, 7, v2             ; pos")
    e("v_lshrrev_b32 v11, 4, v2")
    e("s_lshr_b32 s30, s28, 1")
    e("v_add_u32 v11, s30, v11")
    for a_ in range(NX):
        e(f"v_add_u32 v12, {4*a_}, v11")
        e("v_and_b32 v12, 7, v12")
        e("v_xor_b32 v12, v12, v10")
        e("v_lshl_add_u32 v12, v12, 4, v9")
        e(f"v_add_u32 v{16+a_}, {8*a_*1024 - a_*1024}, v12")
    e("s_lshl_b32 s29, s12, 7           ; 128*nt")
    for j in range(3):
        e(f"v_add_u32 v9, {64*j}, v2")
        e("v_mul_u32_u24 v10, 0xaaab, v9")
        e("v_lshrrev_b32 v10, 20, v10       ; row")
        e("v_mul_u32_u24 v11, 24, v10")
        e("v_sub_u32 v11, v9, v11           ; pos")
        e("v_lshrrev_b32 v12, 3, v11        ; seg")
        e("v_and_b32 v11, 7, v11")
        e("v_bfe_u32 v13, v10, 1, 1")
        e("v_lshlrev_b32 v13, 2, v13")
        e("v_xor_b32 v11, v11, v13")
        e("v_mul_u32_u24 v10, 0xc00, v10    ; row*3072")
        e("v_lshl_add_u32 v10, v12, 10, v10")
        e("v_lshl_add_u32 v10, v11, 4, v10")
        e("v_add_u32 v10, s29, v10")
        if j:
            e(f"v_subrev_u32 v{6+j}, {1024*j}, v10")
        else:
            e(f"v_mov_b32 v6, v10")
    e("s_waitcnt lgkmcnt(0)")
    srd(16, 4, 5, 0x200000)
    srd(20, 6, 7, 0x180000)
    e("s_lshl_b32 s36, s28, 7")
    e("s_mul_i32 s37, s28, 384")
    e("s_add_u32 s37, s37, 0x2000")
    e("s_mul_i32 s38, s28, 0xc00        ; W global")
    if ROT:
        e("s_lshl_b32 s43, s12, 1")
        e("s_add_u32 s43, s43, s13")
    else:
        e("s_mov_b32 s43, 0")
    def issue(c):
        if EXP == 1: return
        sl = (c % K1_NSLOT) * K1_SLOT
        e(f"s_add_u32 s30, s36, {sl}")
        e("s_mov_b32 m0, s30")
        e(f"s_add_u32 s44, s43, {c}")
        e("s_and_b32 s44, s44, 7")
        e("s_lshl_b32 s31, s44, 7")
        for a_ in range(NX):
            e(f"buffer_load_dwordx4 v{16+a_}, s[16:19], s31 offen offset:{1024*a_} lds")
        e(f"s_mul_i32 s44, s44, {64*3072}")
        e("s_add_u32 s44, s44, s38")
        for pp in range(NP):
            e(f"s_add_u32 s30, s37, {sl + pp*3072}")
            e("s_mov_b32 m0, s30")
            e(f"s_add_u32 s31, s44, {pp*8*3072}")
            for j in range(3):
                e(f"buffer_load_dwordx4 v{6+j}, s[20:23], s31 offen offset:{1024*j} lds")
    per = NX + 3*NP
    for c in range(LA):
        issue(c)
    for c in range(8):
        nout = min(c+LA-1, 7) - c
        e(f"s_waitcnt vmcnt({per*nout})")
        e("s_barrier")
        if c+LA <= 7:
            issue(c+LA)
    e("L_k1_end:")
    e("s_endpgm")
    out.append("")

def gen_k2():
    kernel_begin("attn_kernel")
    e("s_cmp_ge_u32 s2, 256")
    e("s_cbranch_scc1 L_k2_end")
    e("s_load_dwordx2 s[8:9], s[0:1], 40")
    e("s_load_dwordx2 s[4:5], s[0:1], 16")
    e("s_and_b32 s10, s2, 7")
    e("s_lshr_b32 s11, s2, 3")
    e("s_mov_b32 s64, s11")
    if MAP2:
        e("s_and_b32 s12, s10, 1")
        e("s_lshl_b32 s12, s12, 4")
        e("s_and_b32 s13, s11, 15")
        e("s_add_u32 s12, s12, s13          ; head")
        e("s_lshr_b32 s11, s11, 4")
        e("s_and_b32 s13, s10, 6")
        e("s_add_u32 s11, s11, s13          ; j")
    else:
        e("s_lshl_b32 s12, s10, 2")
        e("s_and_b32 s13, s11, 3")
        e("s_add_u32 s12, s12, s13          ; head")
        e("s_lshr_b32 s11, s11, 2           ; j")
    e("v_lshrrev_b32 v1, 6, v0")
    e("v_and_b32 v2, 63, v0             ; lane")
    e("v_readfirstlane_b32 s14, v1      ; wave")
    e("v_and_b32 v3, 31, v2             ; l&31")
    e("v_lshrrev_b32 v4, 5, v2          ; h")
    e("s_lshl_b32 s13, s11, 3")
    e("s_add_u32 s13, s13, s14          ; b")
    e("v_lshlrev_b32 v5, 4, v2          ; lane*16")
    e("s_lshl_b32 s15, s12, 16          ; head*65536")
    e("s_lshl_b32 s16, s13, 10          ; b*1024")
    e("s_add_u32 s16, s16, s15")
    e("s_lshl_b32 s17, s11, 3")
    e("s_lshl_b32 s18, s14, 1")
    e("s_add_u32 s17, s17, s18")
    e("s_sub_u32 s17, s17, 8")
    e("s_max_i32 s17, s17, 0")
    e("s_lshl_b32 s19, s17, 10")
    e("s_add_u32 s19, s19, s15")
    e(f"s_add_u32 s20, s19, {hex(KB)}")
    e(f"s_add_u32 s21, s19, {hex(VB)}")
    e("s_lshl_b32 s22, s14, 11")
    e("s_add_u32 s23, s22, 0x4000")
    e("s_waitcnt lgkmcnt(0)")
    srd(24, 8, 9, WS_SIZE)
    S = 16
    KF = 160
    VF = 196
    QF = 212
    OA = 216
    stamp()
    e(f"buffer_load_dwordx4 {vr(QF,4)}, v5, s[24:27], s16 offen")
    e("s_mov_b32 m0, s22")
    e("s_nop 0")
    e("buffer_load_dwordx4 v5, s[24:27], s20 offen lds")
    e("buffer_load_dwordx4 v5, s[24:27], s20 offen offset:1024 lds")
    e("s_mov_b32 m0, s23")
    e("s_nop 0")
    e("buffer_load_dwordx4 v5, s[24:27], s21 offen lds")
    e("buffer_load_dwordx4 v5, s[24:27], s21 offen offset:1024 lds")
    e("v_mov_b32 v8, 0x3f803f80")
    e("v_mov_b32 v9, 0x3f803f80")
    e("v_mov_b32 v10, 0x8000")
    e("ds_write_b64 v10, v[8:9]")
    e("ds_write_b64 v10, v[8:9] offset:8")
    e("s_lshl_b32 s18, s14, 10")
    e("v_add_u32 v6, s18, v5")
    e("v_lshlrev_b32 v7, 8, v4")
    e("v_lshl_add_u32 v7, v3, 4, v7")
    e("v_add_u32 v7, s18, v7")
    e("v_add_u32 v7, 0x4000, v7")
    e("v_cmp_gt_u32 vcc, 16, v3")
    e("v_mov_b32 v11, 0x200")
    e("s_nop 0")
    e("v_cndmask_b32 v7, v10, v7, vcc")
    e("v_cndmask_b32 v14, 0, v11, vcc   ; step")
    e(f"s_add_u32 s17, s16, {hex(OB)}    ; O soffset")
    e("v_lshlrev_b32 v8, 2, v4")
    e("v_sub_u32 v8, v3, v8")
    for i in range(16):
        ci = (i & 3) + 8*(i >> 2)
        e(f"v_cmp_le_i32 s[{32+2*i}:{33+2*i}], {ci}, v8")
    e("v_mov_b32 v15, 0x3eb8aa3b        ; 0.25*log2(e)")
    e("v_mov_b32 v240, 0x3eb8aa3b")
    e("v_mov_b32 v241, 0x3eb8aa3b")
    e("v_mov_b32 v8, 0xffff")
    e("v_mov_b32 v9, 0xffff0000")
    for r in range(8):
        e(f"v_cndmask_b32 v{232+r}, 0, v8, s[{32+4*r}:{33+4*r}]")
        e(f"v_cndmask_b32 v11, 0, v9, s[{34+4*r}:{35+4*r}]")
        e(f"v_or_b32 v{232+r}, v{232+r}, v11")
    if PF3:
        srd(28, 4, 5, 0x80000)
        e("s_lshl_b32 s64, s64, 3")
        e("s_add_u32 s64, s64, s14")
        e("s_lshl_b32 s64, s64, 11")
        e("v_lshlrev_b32 v253, 5, v2")
    e(f"s_waitcnt vmcnt(0) lgkmcnt(0)")
    e("s_barrier")
    stamp()
    if PF3:
        e("buffer_load_dword v252, v253, s[28:31], s64 offen")
    for t in range(9):
        e(f"ds_read_b128 {vr(KF+4*t,4)}, v6 offset:{1024*t}")
    for t in range(9):
        e(f"s_waitcnt lgkmcnt({8-t})")
        e(f"v_mfma_f32_32x32x16_bf16 {vr(S+16*t,16)}, {vr(KF+4*t,4)}, {vr(QF,4)}, 0")
    e("s_nop 7")
    e("s_nop 4")
    e("s_cmp_ge_u32 s13, 8")
    e("s_cbranch_scc1 L_k2_fix_done")
    e("v_mov_b32 v9, 0xcf800000")
    for t in range(8):
        for i in range(16):
            e(f"v_mov_b32 v{S+16*t+i}, v9")
        if t < 7:
            e(f"s_cmp_ge_u32 s13, {7-t}")
            e("s_cbranch_scc1 L_k2_fix_done")
    e("L_k2_fix_done:")
    for i in range(16):
        e(f"v_cndmask_b32 v{S+128+i}, v{S+i}, v{S+128+i}, s[{32+2*i}:{33+2*i}]")
    vals = [S+16+i for i in range(128)]
    ch = [10, 11, 12, 13]
    for c in range(4):
        sub = vals[32*c:32*c+32]
        e(f"v_max3_f32 v{ch[c]}, v{sub[0]}, v{sub[1]}, v{sub[2]}")
    for step in range(14):
        for c in range(4):
            sub = vals[32*c:32*c+32]
            e(f"v_max3_f32 v{ch[c]}, v{sub[3+2*step]}, v{sub[4+2*step]}, v{ch[c]}")
    for c in range(4):
        sub = vals[32*c:32*c+32]
        e(f"v_max_f32 v{ch[c]}, v{sub[31]}, v{ch[c]}")
    e("v_max3_f32 v10, v10, v11, v12")
    e("v_max_f32 v10, v10, v13")
    e("v_mov_b32 v11, v10")
    e("s_nop 1")
    e("v_permlane32_swap_b32 v10, v11")
    e("v_max_f32 v10, v10, v11")
    e("v_mul_f32 v10, v15, v10          ; m*c")
    e("v_mov_b32 v242, v10")
    e("v_mov_b32 v243, v10")
    stamp()
    def softmax(t):
        base = S+16*t
        if PK:
            for i in range(0, 16, 2):
                e(f"v_pk_fma_f32 {vr(base+i,2)}, {vr(base+i,2)}, v[240:241], v[242:243] neg_lo:[0,0,1] neg_hi:[0,0,1]")
        else:
            for i in range(16):
                e(f"v_fma_f32 v{base+i}, v{base+i}, v15, -v10")
        for i in range(16):
            e(f"v_exp_f32 v{base+i}, v{base+i}")
        for r in range(8):
            e(f"v_cvt_pk_bf16_f32 v{base+r}, v{base+2*r}, v{base+2*r+1}")
        if t == 8:
            for r in range(8):
                e(f"v_and_b32 v{S+8+r}, v{base+r}, v{232+r}")
            for r in range(8):
                e(f"v_xor_b32 v{S+r}, v{base+r}, v{S+8+r}")
            for r in range(8):
                e(f"v_mov_b32 v{base+r}, v{S+8+r}")
    def vread(t):
        b = VF + 8*(t & 1)
        for m in range(2):
            e(f"ds_read_b128 {vr(b+4*m,4)}, v7")
            e("v_add_u32 v7, v7, v14")
    vread(0)
    softmax(8)
    for t in range(9):
        if t+1 < 9:
            vread(t+1)
        if 1 <= t+1 <= 7:
            softmax(t+1)
        e(f"s_waitcnt lgkmcnt({2 if t+1 < 9 else 0})")
        b = VF + 8*(t & 1)
        base = S+16*t
        for m in range(2):
            cin = "0" if (t == 0 and m == 0) else vr(OA, 16)
            e(f"v_mfma_f32_32x32x16_bf16 {vr(OA,16)}, {vr(b+4*m,4)}, {vr(base+4*m,4)}, {cin}")
    stamp()
    e("s_nop 7")
    e("s_nop 7")
    e(f"v_rcp_f32 v10, v{OA+8}")
    e("s_nop 0")
    for i in range(8):
        e(f"v_mul_f32 v{OA+i}, v10, v{OA+i}")
    for r in range(4):
        e(f"v_cvt_pk_bf16_f32 v{16+r}, v{OA+2*r}, v{OA+2*r+1}")
    e(f"buffer_store_dwordx4 v[16:19], v5, s[24:27], s17 offen {STM}")
    stamp_flush(1, 14, 8)
    dbg_end(1)
    e("L_k2_end:")
    e("s_endpgm")
    out.append("")

def gen_k3():
    kernel_begin("oproj_kernel")
    e("s_cmp_ge_u32 s2, 256")
    e("s_cbranch_scc1 L_k3_end")
    e("s_load_dwordx4 s[4:7], s[0:1], 16")
    e("s_load_dwordx2 s[8:9], s[0:1], 40")
    e("s_and_b32 s10, s2, 7")
    e("s_lshr_b32 s11, s2, 3")
    if MAP2:
        e("s_lshr_b32 s13, s10, 1")
        e("s_lshl_b32 s13, s13, 3")
        e("s_and_b32 s12, s11, 7")
        e("s_add_u32 s13, s13, s12          ; mt (0..31)")
        e("s_lshr_b32 s12, s11, 3")
        e("s_and_b32 s11, s10, 1")
        e("s_lshl_b32 s11, s11, 2")
        e("s_add_u32 s12, s12, s11          ; nt (0..7)")
    else:
        e("s_lshl_b32 s13, s10, 2")
        e("s_and_b32 s12, s11, 3")
        e("s_add_u32 s13, s13, s12          ; mt (0..31)")
        e("s_lshr_b32 s12, s11, 2           ; nt (0..7)")
    e("v_lshrrev_b32 v1, 6, v0")
    e("v_and_b32 v2, 63, v0             ; lane")
    e("v_readfirstlane_b32 s39, v1      ; wave")
    e("v_and_b32 v3, 31, v2             ; l&31")
    e("v_lshrrev_b32 v4, 5, v2          ; h")
    e("s_and_b32 s14, s39, 3")
    e("v_lshlrev_b32 v5, 4, v2          ; lane*16")
    e("s_cmp_ge_u32 s39, 4")
    e("s_cbranch_scc1 L_k3_loader")
    e("s_lshr_b32 s28, s14, 1           ; a")
    e("s_and_b32 s29, s14, 1            ; b")
    e("s_lshl_b32 s30, s28, 10")
    e("v_add_u32 v12, s30, v5")
    e("v_bfe_u32 v9, v2, 2, 2           ; r")
    e("v_lshl_add_u32 v10, v4, 2, v9    ; 4h+r")
    e("v_lshlrev_b32 v10, 7, v10")
    e("v_lshrrev_b32 v9, 1, v9")
    e("v_xor_b32 v9, s29, v9")
    e("v_lshl_add_u32 v10, v9, 6, v10")
    e("v_bfe_u32 v9, v2, 4, 1           ; g'")
    e("v_lshl_add_u32 v10, v9, 5, v10")
    e("v_and_b32 v9, 3, v2")
    e("v_lshl_add_u32 v13, v9, 3, v10")
    e("v_add_u32 v13, 0x10000, v13")
    e("v_add_u32 v14, 0x8000, v13")
    e("v_add_u32 v15, 0x8000, v12")
    e("s_waitcnt lgkmcnt(0)")
    srd(16, 6, 7, 0x200000)
    srd(24, 8, 9, WS_SIZE)
    ACC = 64
    FR = 32
    def read_list(kk):
        b = FR + 8*(kk % 3)
        k2 = kk & 15
        L = [f"ds_read_b128 {vr(b,4)}, {'v12' if kk < 16 else 'v15'} offset:{k2*2048}"]
        for ee in range(2):
            L.append(f"ds_read_b64_tr_b16 {vr(b+4+2*ee,2)}, {'v13' if kk < 16 else 'v14'} offset:{k2*2048+ee*1024}")
        return L
    stamp()
    e("s_barrier")
    stamp()
    for r in read_list(0): e(r)
    for r in read_list(1): e(r)
    for kk in range(32):
        nxt = []
        if kk+2 < 32:
            if (kk+2) % 4 == 0:
                e("s_barrier")
                if kk+2 == 24: stamp()
            nxt = read_list(kk+2)
        e(f"s_waitcnt lgkmcnt({3 if kk+1 < 32 else 0})")
        b = FR + 8*(kk % 3)
        acc = vr(ACC, 16)
        cin = "0" if kk == 0 else acc
        e(f"v_mfma_f32_32x32x16_bf16 {acc}, {vr(b+4,4)}, {vr(b,4)}, {cin}")
        for r in nxt: e(r)
    stamp()
    e("s_lshl_b32 s30, s13, 1")
    e("s_add_u32 s30, s30, s28")
    e("s_lshl_b32 s30, s30, 5")
    e("v_add_u32 v5, s30, v3")
    e("v_lshlrev_b32 v5, 10, v5")
    e("v_lshl_add_u32 v5, v4, 3, v5")
    e("s_lshl_b32 s30, s12, 1")
    e("s_add_u32 s30, s30, s29")
    e("s_lshl_b32 s30, s30, 6")
    e("v_add_u32 v5, s30, v5")
    e("s_nop 7")
    e("s_nop 3")
    for r in range(8):
        e(f"v_cvt_pk_bf16_f32 v{16+r}, v{ACC+2*r}, v{ACC+2*r+1}")
    for g in range(4):
        e(f"buffer_store_dwordx2 {vr(16+2*g,2)}, v5, s[16:19], 0 offen offset:{16*g} {STM}")
    stamp_flush(2, 14, 4)
    dbg_end(2)
    e("s_endpgm")
    e("L_k3_loader:")
    e("v_lshrrev_b32 v9, 3, v2")
    e("v_and_b32 v10, 7, v2")
    e("v_bfe_u32 v11, v2, 4, 1")
    e("v_lshlrev_b32 v11, 2, v11")
    e("v_xor_b32 v10, v10, v11")
    e("v_lshlrev_b32 v9, 10, v9")
    e("v_lshl_add_u32 v9, v10, 4, v9")
    e("s_lshl_b32 s29, s12, 7")
    e("v_add_u32 v6, s29, v9")
    e(f"v_add_u32 v7, {8*1024-1024}, v6")
    e("s_waitcnt lgkmcnt(0)")
    srd(20, 4, 5, 0x80000)
    srd(24, 8, 9, WS_SIZE)
    e("s_lshl_b32 s36, s14, 11")
    e("s_lshl_b32 s37, s14, 16")
    e("s_lshl_b32 s30, s13, 11")
    e("s_add_u32 s37, s37, s30")
    e(f"s_add_u32 s37, s37, {hex(OB)}")
    e("s_lshl_b32 s38, s14, 14          ; W global w*16*1024")
    def issue(c):
        e(f"s_add_u32 s30, s36, {c*8192}")
        e("s_mov_b32 m0, s30")
        e(f"s_add_u32 s31, s37, {c*4*65536}")
        e("buffer_load_dwordx4 v5, s[24:27], s31 offen lds")
        e("buffer_load_dwordx4 v5, s[24:27], s31 offen offset:1024 lds")
        e(f"s_add_u32 s30, s36, {65536 + c*8192}")
        e("s_mov_b32 m0, s30")
        e(f"s_add_u32 s31, s38, {c*65536}")
        e("buffer_load_dwordx4 v6, s[20:23], s31 offen lds")
        e("buffer_load_dwordx4 v7, s[20:23], s31 offen offset:1024 lds")
    LA3 = int(os.environ.get('LA3', '4'))
    for c in range(LA3):
        issue(c)
    for c in range(8):
        nout = min(c+LA3-1, 7) - c
        e(f"s_waitcnt vmcnt({4*nout})")
        e("s_barrier")
        if c+LA3 <= 7:
            issue(c+LA3)
    e("L_k3_end:")
    e("s_endpgm")
    out.append("")

gen_k1()
gen_k2()
gen_k3()
txt = HEADER + "\n".join(out) + "\n" + '.section .rodata,"a"\n'
for n, v in (("qkv_kernel", 160), ("attn_kernel", 256), ("oproj_kernel", 80)):
    txt += ".p2align 6\n" + kd(n, v)
dst = sys.argv[1] if len(sys.argv) > 1 else "standalone__sliding_block__prompt.s"
open(dst, "w").write(txt)
```

```python
import sys, os

K2_LDS = 32768 + 64
K1_SLOT = 32768
K1_NSLOT = 5
PF3 = int(os.environ.get('PF3', '0'))
PF1 = int(os.environ.get('PF1', '0'))
MAP2 = int(os.environ.get('MAP2', '0'))
NL = int(os.environ.get('NL', '4'))
PK = int(os.environ.get('PK', '1'))
PFD = int(os.environ.get('PFD', '8'))
PFD0 = int(os.environ.get('PFD0', '2'))
STM = os.environ.get('STM', '')
STM2 = os.environ.get('STM2', '')
STM3 = os.environ.get('STM3', '')
ROT = int(os.environ.get('ROT', '1'))
MAP1 = int(os.environ.get('MAP1', '0'))
LA = int(os.environ.get('LA', '3'))
HEADER = f"""; Kernarg layout for this problem (48 bytes, ptrs only, base s[0:1]):
; @launch kernel=qkv_kernel grid=(256,1,1) block=({256+64*NL},1,1) lds={K1_SLOT*K1_NSLOT}
; @launch kernel=attn_kernel grid=(256,1,1) block=(512,1,1) lds={K2_LDS}
; @launch kernel=oproj_kernel grid=(256,1,1) block=(512,1,1) lds=131072
.amdgcn_target "amdgcn-amd-amdhsa--gfx950"
.text
"""
QB = 0
KB = 0x200000
VB = 0x400000
OB = 0x800000
WS_SIZE = 0x1000000

out = []
def e(s=""):
    out.append("    " + s if s and not s.endswith(":") else s)

DBG = int(os.environ.get("DBG", "0"))
def kernel_begin(name):
    out.append(f".globl {name}")
    out.append(".p2align 8")
    out.append(f".type {name},@function")
    out.append(f"{name}:")
    if DBG:
        e("s_memrealtime s[96:97]")
        e("s_load_dwordx2 s[98:99], s[0:1], 32")
def dbg_end(kid):
    if not DBG: return
    e("s_waitcnt vmcnt(0)")
    e("s_memrealtime s[100:101]")
    e("s_waitcnt lgkmcnt(0)")
    e("s_cmp_lg_u32 s14, 0")
    e(f"s_cbranch_scc1 L_dbg_done{kid}")
    e("s_mov_b32 s92, 0")
    e("s_cmp_eq_u32 s2, 0")
    e(f"s_cbranch_scc1 L_dbg_go{kid}")
    e("s_mov_b32 s92, 8")
    e("s_cmp_lg_u32 s2, 200")
    e(f"s_cbranch_scc1 L_dbg_done{kid}")
    e(f"L_dbg_go{kid}:")
    e(f"s_add_u32 s92, s92, {0xE00000 + kid*16}")
    e("s_mov_b64 exec, 1")
    e("v_mov_b32 v1, 0")
    e("v_mov_b32 v2, s96")
    e("v_mov_b32 v3, s100")
    e(f"buffer_store_dwordx2 v[2:3], v1, s[24:27], s92 offen")
    if kid == 2:
        e("s_cmp_lg_u32 s2, 0")
        e(f"s_cbranch_scc1 L_dbg_done{kid}")
        e("s_mov_b64 exec, 0xffff")
        e("v_lshlrev_b32 v1, 2, v0")
        e("s_mov_b32 s92, 0xE00000")
        e("s_waitcnt vmcnt(0)")
        e("buffer_load_dword v2, v1, s[24:27], s92 offen sc0 sc1")
        e("s_mov_b32 s92, s98")
        e("s_and_b32 s93, s99, 0xffff")
        e("s_mov_b32 s94, 256")
        e("s_mov_b32 s95, 0x20000")
        e("s_waitcnt vmcnt(0)")
        e("buffer_store_dword v2, v1, s[92:95], 0 offen")
    e(f"L_dbg_done{kid}:")
    e("s_mov_b64 exec, -1")

def kd(name, vgpr, sgpr=102):
    return f""".amdhsa_kernel {name}
  .amdhsa_next_free_vgpr {vgpr}
  .amdhsa_next_free_sgpr {sgpr}
  .amdhsa_accum_offset {((vgpr+3)//4)*4}
  .amdhsa_group_segment_fixed_size 0
  .amdhsa_kernarg_size 48
  .amdhsa_user_sgpr_count 2
  .amdhsa_user_sgpr_kernarg_segment_ptr 1
  .amdhsa_system_sgpr_workgroup_id_x 1
.end_amdhsa_kernel
"""

STAMP = int(os.environ.get("STAMP", "0"))
EXP = int(os.environ.get("EXP", "0"))
STAMP_BASE = 0xC00000
STAMP_S = 90
stamp_n = [0]
def stamp():
    if not STAMP: return
    i = stamp_n[0]; stamp_n[0] += 1
    assert i < 6
    e(f"{'s_memrealtime' if STAMP==2 else 's_memtime'} s[{STAMP_S+2*i}:{STAMP_S+2*i+1}]")
def stamp_flush(kid, wave_sgpr, nw):
    if not STAMP: return
    e("s_waitcnt vmcnt(0)")
    stamp()
    n = stamp_n[0]; stamp_n[0] = 0
    e("s_waitcnt lgkmcnt(0)")
    e(f"s_mul_i32 s3, s2, {nw}")
    e(f"s_add_u32 s3, s3, s{wave_sgpr}")
    e("s_lshl_b32 s3, s3, 6")
    e(f"s_add_u32 s3, s3, {hex(STAMP_BASE + kid*0x40000)}")
    e("s_mov_b64 exec, 1")
    e("v_mov_b32 v1, 0")
    for i in range(n):
        e(f"v_mov_b32 v2, s{STAMP_S+2*i}")
        e(f"buffer_store_dword v2, v1, s[24:27], s3 offen offset:{4*i}")
    e("s_mov_b64 exec, -1")

def vr(a, n):
    return f"v[{a}:{a+n-1}]"

def srd(d, lo, hi, size):
    e(f"s_mov_b32 s{d}, s{lo}")
    e(f"s_and_b32 s{d+1}, s{hi}, 0xffff")
    e(f"s_mov_b32 s{d+2}, {hex(size)}")
    e(f"s_mov_b32 s{d+3}, 0x00020000")

def gen_k1():
    kernel_begin("qkv_kernel")
    e("s_cmp_ge_u32 s2, 256")
    e("s_cbranch_scc1 L_k1_end")
    e("s_load_dwordx4 s[4:7], s[0:1], 0")
    e("s_load_dwordx2 s[8:9], s[0:1], 40")
    e("s_and_b32 s10, s2, 7")
    e("s_lshr_b32 s11, s2, 3")
    if MAP1 == 0:
        e("s_and_b32 s12, s10, 1")
        e("s_lshl_b32 s12, s12, 2")
        e("s_and_b32 s13, s11, 3")
        e("s_add_u32 s12, s12, s13          ; nt (0..7)")
        e("s_lshr_b32 s13, s10, 1")
        e("s_lshl_b32 s13, s13, 3")
        e("s_lshr_b32 s14, s11, 2")
        e("s_add_u32 s13, s13, s14          ; mt (0..31)")
    elif MAP1 == 1:
        e("s_mov_b32 s12, s10")
        e("s_mov_b32 s13, s11")
    elif MAP1 == 2:
        e("s_and_b32 s12, s11, 7")
        e("s_lshr_b32 s13, s11, 3")
        e("s_lshl_b32 s13, s13, 3")
        e("s_add_u32 s13, s13, s10")
    e("v_lshrrev_b32 v1, 6, v0")
    e("v_and_b32 v2, 63, v0             ; lane")
    e("v_readfirstlane_b32 s39, v1      ; wave")
    e("v_and_b32 v3, 31, v2             ; l&31")
    e("v_lshrrev_b32 v4, 5, v2          ; h")
    e("s_and_b32 s14, s39, 3            ; w")
    e("s_lshl_b32 s15, s13, 6")
    e("s_cmp_ge_u32 s39, 4")
    e("s_cbranch_scc1 L_k1_loader")
    e("s_lshr_b32 s28, s14, 1           ; a")
    e("s_and_b32 s29, s14, 1            ; b")
    e("v_bfe_u32 v9, v2, 2, 2           ; r")
    e("v_lshl_add_u32 v10, v4, 3, v9    ; 8h+r")
    e("v_mul_u32_u24 v10, 384, v10")
    e("v_lshrrev_b32 v9, 1, v9")
    e("v_xor_b32 v9, s29, v9")
    e("v_lshl_add_u32 v10, v9, 6, v10")
    e("v_bfe_u32 v9, v2, 4, 1           ; g'")
    e("v_lshl_add_u32 v10, v9, 5, v10")
    e("v_and_b32 v9, 3, v2")
    e("v_lshl_add_u32 v20, v9, 3, v10")
    e("v_add_u32 v20, 0x2000, v20")
    e("v_bfe_u32 v9, v3, 1, 3           ; f")
    e("v_lshlrev_b32 v10, 7, v3")
    e("s_lshl_b32 s30, s28, 12")
    e("v_add_u32 v10, s30, v10")
    for k2 in range(4):
        e(f"v_add_u32 v11, {2*k2}, v4")
        e("v_xor_b32 v11, v11, v9")
        e(f"v_lshl_add_u32 v{21+k2}, v11, 4, v10")
    e("s_waitcnt lgkmcnt(0)")
    srd(24, 8, 9, WS_SIZE)
    stamp()
    if PF1 == 1:
        srd(16, 4, 5, 0x200000)
        srd(20, 6, 7, 0x180000)
        e("s_lshl_b32 s40, s11, 2")
        e("s_add_u32 s40, s40, s14          ; wid 0..127")
        e("s_lshr_b32 s41, s10, 1")
        e("s_lshl_b32 s41, s41, 19")
        e("s_lshl_b32 s42, s40, 12")
        e("s_add_u32 s41, s41, s42")
        e("v_lshlrev_b32 v40, 6, v2")
        e("buffer_load_dword v41, v40, s[16:19], s41 offen")
        e("v_lshrrev_b32 v40, 4, v2")
        e("v_mul_u32_u24 v40, 0xc00, v40")
        e("v_and_b32 v42, 7, v2")
        e("v_lshl_add_u32 v40, v42, 6, v40")
        e("v_bfe_u32 v42, v2, 3, 1")
        e("v_lshl_add_u32 v43, v42, 10, v40")
        e("s_mul_i32 s41, s40, 0x3000")
        e("s_and_b32 s42, s10, 1")
        e("s_lshl_b32 s42, s42, 9")
        e("s_add_u32 s41, s41, s42")
        e("buffer_load_dword v44, v43, s[20:23], s41 offen")
        e("buffer_load_dword v45, v40, s[20:23], s41 offen offset:2048")
    if PF1 == 2:
        srd(16, 4, 5, 0x200000)
        srd(20, 6, 7, 0x180000)
        e("s_lshl_b32 s40, s11, 2")
        e("s_add_u32 s40, s40, s14          ; wid 0..127")
        e("s_cmp_ge_u32 s40, 120")
        e("s_cbranch_scc1 L_pf_done")
        e("s_cmp_ge_u32 s40, 48")
        e("s_cbranch_scc1 L_pf_w")
        e("s_lshl_b32 s41, s40, 6")
        e("v_add_u32 v40, s41, v2")
        e("v_mul_u32_u24 v41, 0xaaab, v40")
        e("v_lshrrev_b32 v41, 18, v41       ; /6")
        e("v_mul_u32_u24 v42, 6, v41")
        e("v_sub_u32 v42, v40, v42")
        e("v_lshlrev_b32 v41, 10, v41")
        e("v_lshl_add_u32 v40, v42, 6, v41")
        e("s_lshr_b32 s41, s10, 1")
        e("s_lshl_b32 s41, s41, 19")
        e(f"s_sleep {PFD0}")
        e("buffer_load_dword v41, v40, s[16:19], s41 offen offset:256")
        e(f"s_sleep {PFD}")
        e("buffer_load_dword v42, v40, s[16:19], s41 offen offset:640")
        e("s_branch L_pf_done")
        e("L_pf_w:")
        e("s_sub_u32 s41, s40, 48")
        e("s_lshl_b32 s41, s41, 6")
        e("v_add_u32 v40, s41, v2")
        e("v_mul_u32_u24 v41, 0xaaab, v40")
        e("v_lshrrev_b32 v41, 20, v41       ; /24")
        e("v_mul_u32_u24 v42, 24, v41")
        e("v_sub_u32 v42, v40, v42")
        e("v_mul_u32_u24 v41, 0xc00, v41")
        e("v_lshrrev_b32 v43, 3, v42")
        e("v_lshl_add_u32 v41, v43, 10, v41")
        e("v_and_b32 v42, 7, v42")
        e("v_lshl_add_u32 v40, v42, 6, v41")
        e("s_and_b32 s42, s10, 1")
        e("s_lshl_b32 s42, s42, 9")
        e(f"s_add_u32 s41, s42, {128*3072}")
        e(f"s_add_u32 s42, s42, {320*3072}")
        e(f"s_sleep {PFD0}")
        e("buffer_load_dword v41, v40, s[20:23], s41 offen")
        e(f"s_sleep {PFD}")
        e("buffer_load_dword v42, v40, s[20:23], s42 offen")
        e("L_pf_done:")
    ACC = 64
    FR = 112
    AD = 26
    def setaddr(c):
        sl = (c % K1_NSLOT) * K1_SLOT
        for i in range(5):
            e(f"v_add_u32 v{AD+5*(c&1)+i}, {sl}, v{20+i}")
    def read_list(kk):
        b = FR + 16*(kk % 3)
        k2 = kk & 3
        ad = AD + 5*((kk//4) & 1)
        if EXP >= 2: return []
        L = [f"ds_read_b128 {vr(b,4)}, v{ad+1+k2}"]
        for j in range(3):
            for ee in range(2):
                L.append(f"ds_read_b64_tr_b16 {vr(b+4+4*j+2*ee,2)}, v{ad} offset:{k2*6144+ee*1536+j*128}")
        return L
    setaddr(0)
    e("s_barrier")
    stamp()
    for r in read_list(0): e(r)
    for r in read_list(1): e(r)
    for kk in range(32):
        nxt = []
        if kk+2 < 32:
            if (kk+2) % 4 == 0:
                c = (kk+2)//4
                setaddr(c)
                e("s_barrier")
                if c == 6: stamp()
            nxt = read_list(kk+2)
        e(f"s_waitcnt lgkmcnt({7 if kk+1 < 32 else 0})")
        b = FR + 16*(kk % 3)
        xf = vr(b, 4)
        for j in range(3):
            acc = vr(ACC+16*j, 16)
            cin = "0" if kk == 0 else acc
            wf = vr(b+4+4*j, 4)
            if EXP >= 2: pass
            elif j < 2:
                e(f"v_mfma_f32_32x32x16_bf16 {acc}, {wf}, {xf}, {cin}")
            else:
                e(f"v_mfma_f32_32x32x16_bf16 {acc}, {xf}, {wf}, {cin}")
            part = nxt[[0,3,5][j]:[3,5,7][j]]
            for r in part: e(r)
    stamp()
    e("v_lshlrev_b32 v5, 4, v2")
    e("s_lshl_b32 s30, s12, 1")
    e("s_add_u32 s30, s30, s29")
    e("s_lshl_b32 s30, s30, 17          ; head0*65536")
    e("s_lshl_b32 s31, s13, 1")
    e("s_add_u32 s31, s31, s28")
    e("s_lshl_b32 s31, s31, 10          ; tile*1024")
    e("s_add_u32 s30, s30, s31")
    e("s_add_u32 s31, s30, 0x10000")
    e(f"s_add_u32 s32, s30, {hex(KB)}")
    e(f"s_add_u32 s33, s31, {hex(KB)}")
    e("v_lshrrev_b32 v9, 4, v3")
    e("v_lshlrev_b32 v6, 16, v9")
    e("v_lshl_add_u32 v6, v4, 8, v6")
    e("v_and_b32 v9, 15, v3")
    e("v_lshl_add_u32 v6, v9, 4, v6")
    e(f"s_add_u32 s34, s30, {hex(VB)}")
    e("s_nop 7")
    P = 8
    for j in range(3):
        for r in range(8):
            e(f"v_cvt_pk_bf16_f32 v{P+8*j+r}, v{ACC+16*j+2*r}, v{ACC+16*j+2*r+1}")
    e(f"buffer_store_dwordx4 {vr(P,4)}, v5, s[24:27], s30 offen {STM}")
    e(f"buffer_store_dwordx4 {vr(P+4,4)}, v5, s[24:27], s31 offen {STM}")
    e(f"buffer_store_dwordx4 {vr(P+8,4)}, v5, s[24:27], s32 offen {STM}")
    e(f"buffer_store_dwordx4 {vr(P+12,4)}, v5, s[24:27], s33 offen {STM}")
    e(f"buffer_store_dwordx4 {vr(P+16,4)}, v6, s[24:27], s34 offen {STM}")
    e(f"buffer_store_dwordx4 {vr(P+20,4)}, v6, s[24:27], s34 offen offset:512 {STM}")
    stamp_flush(0, 14, 4)
    dbg_end(0)
    e("s_endpgm")
    e("L_k1_loader:")
    RPL = 64 // NL
    NX = RPL // 8
    NP = RPL // 8
    e("s_sub_u32 s14, s39, 4            ; L")
    e(f"s_mul_i32 s28, s14, {RPL}")
    e("s_add_u32 s30, s15, s28")
    e("v_lshrrev_b32 v9, 3, v2")
    e("v_add_u32 v9, s30, v9")
    e("v_lshlrev_b32 v9, 10, v9")
    e("v_and_b32 v10, 7, v2             ; pos")
    e("v_lshrrev_b32 v11, 4, v2")
    e("s_lshr_b32 s30, s28, 1")
    e("v_add_u32 v11, s30, v11")
    for a_ in range(NX):
        e(f"v_add_u32 v12, {4*a_}, v11")
        e("v_and_b32 v12, 7, v12")
        e("v_xor_b32 v12, v12, v10")
        e("v_lshl_add_u32 v12, v12, 4, v9")
        e(f"v_add_u32 v{16+a_}, {8*a_*1024 - a_*1024}, v12")
    e("s_lshl_b32 s29, s12, 7           ; 128*nt")
    for j in range(3):
        e(f"v_add_u32 v9, {64*j}, v2")
        e("v_mul_u32_u24 v10, 0xaaab, v9")
        e("v_lshrrev_b32 v10, 20, v10       ; row")
        e("v_mul_u32_u24 v11, 24, v10")
        e("v_sub_u32 v11, v9, v11           ; pos")
        e("v_lshrrev_b32 v12, 3, v11        ; seg")
        e("v_and_b32 v11, 7, v11")
        e("v_bfe_u32 v13, v10, 1, 1")
        e("v_lshlrev_b32 v13, 2, v13")
        e("v_xor_b32 v11, v11, v13")
        e("v_mul_u32_u24 v10, 0xc00, v10    ; row*3072")
        e("v_lshl_add_u32 v10, v12, 10, v10")
        e("v_lshl_add_u32 v10, v11, 4, v10")
        e("v_add_u32 v10, s29, v10")
        if j:
            e(f"v_subrev_u32 v{6+j}, {1024*j}, v10")
        else:
            e(f"v_mov_b32 v6, v10")
    e("s_waitcnt lgkmcnt(0)")
    srd(16, 4, 5, 0x200000)
    srd(20, 6, 7, 0x180000)
    e("s_lshl_b32 s36, s28, 7")
    e("s_mul_i32 s37, s28, 384")
    e("s_add_u32 s37, s37, 0x2000")
    e("s_mul_i32 s38, s28, 0xc00        ; W global")
    if ROT:
        e("s_lshl_b32 s43, s12, 1")
        e("s_add_u32 s43, s43, s13")
    else:
        e("s_mov_b32 s43, 0")
    def issue(c):
        if EXP == 1: return
        sl = (c % K1_NSLOT) * K1_SLOT
        e(f"s_add_u32 s30, s36, {sl}")
        e("s_mov_b32 m0, s30")
        e(f"s_add_u32 s44, s43, {c}")
        e("s_and_b32 s44, s44, 7")
        e("s_lshl_b32 s31, s44, 7")
        for a_ in range(NX):
            e(f"buffer_load_dwordx4 v{16+a_}, s[16:19], s31 offen offset:{1024*a_} lds")
        e(f"s_mul_i32 s44, s44, {64*3072}")
        e("s_add_u32 s44, s44, s38")
        for pp in range(NP):
            e(f"s_add_u32 s30, s37, {sl + pp*3072}")
            e("s_mov_b32 m0, s30")
            e(f"s_add_u32 s31, s44, {pp*8*3072}")
            for j in range(3):
                e(f"buffer_load_dwordx4 v{6+j}, s[20:23], s31 offen offset:{1024*j} lds")
    per = NX + 3*NP
    for c in range(LA):
        issue(c)
    for c in range(8):
        nout = min(c+LA-1, 7) - c
        e(f"s_waitcnt vmcnt({per*nout})")
        e("s_barrier")
        if c+LA <= 7:
            issue(c+LA)
    e("L_k1_end:")
    e("s_endpgm")
    out.append("")

def gen_k2():
    kernel_begin("attn_kernel")
    e("s_cmp_ge_u32 s2, 256")
    e("s_cbranch_scc1 L_k2_end")
    e("s_load_dwordx2 s[8:9], s[0:1], 40")
    e("s_load_dwordx2 s[4:5], s[0:1], 16")
    e("s_and_b32 s10, s2, 7")
    e("s_lshr_b32 s11, s2, 3")
    e("s_mov_b32 s64, s11")
    if MAP2:
        e("s_and_b32 s12, s10, 1")
        e("s_lshl_b32 s12, s12, 4")
        e("s_and_b32 s13, s11, 15")
        e("s_add_u32 s12, s12, s13          ; head")
        e("s_lshr_b32 s11, s11, 4")
        e("s_and_b32 s13, s10, 6")
        e("s_add_u32 s11, s11, s13          ; j")
    else:
        e("s_lshl_b32 s12, s10, 2")
        e("s_and_b32 s13, s11, 3")
        e("s_add_u32 s12, s12, s13          ; head")
        e("s_lshr_b32 s11, s11, 2           ; j")
    e("v_lshrrev_b32 v1, 6, v0")
    e("v_and_b32 v2, 63, v0             ; lane")
    e("v_readfirstlane_b32 s14, v1      ; wave")
    e("v_and_b32 v3, 31, v2             ; l&31")
    e("v_lshrrev_b32 v4, 5, v2          ; h")
    e("s_lshl_b32 s13, s11, 3")
    e("s_add_u32 s13, s13, s14          ; b")
    e("v_lshlrev_b32 v5, 4, v2          ; lane*16")
    e("s_lshl_b32 s15, s12, 16          ; head*65536")
    e("s_lshl_b32 s16, s13, 10          ; b*1024")
    e("s_add_u32 s16, s16, s15")
    e("s_lshl_b32 s17, s11, 3")
    e("s_lshl_b32 s18, s14, 1")
    e("s_add_u32 s17, s17, s18")
    e("s_sub_u32 s17, s17, 8")
    e("s_max_i32 s17, s17, 0")
    e("s_lshl_b32 s19, s17, 10")
    e("s_add_u32 s19, s19, s15")
    e(f"s_add_u32 s20, s19, {hex(KB)}")
    e(f"s_add_u32 s21, s19, {hex(VB)}")
    e("s_lshl_b32 s22, s14, 11")
    e("s_add_u32 s23, s22, 0x4000")
    e("s_waitcnt lgkmcnt(0)")
    srd(24, 8, 9, WS_SIZE)
    S = 16
    KF = 160
    VF = 196
    QF = 212
    OA = 216
    stamp()
    e(f"buffer_load_dwordx4 {vr(QF,4)}, v5, s[24:27], s16 offen")
    e("s_mov_b32 m0, s22")
    e("s_nop 0")
    e("buffer_load_dwordx4 v5, s[24:27], s20 offen lds")
    e("buffer_load_dwordx4 v5, s[24:27], s20 offen offset:1024 lds")
    e("s_mov_b32 m0, s23")
    e("s_nop 0")
    e("buffer_load_dwordx4 v5, s[24:27], s21 offen lds")
    e("buffer_load_dwordx4 v5, s[24:27], s21 offen offset:1024 lds")
    e("v_mov_b32 v8, 0x3f803f80")
    e("v_mov_b32 v9, 0x3f803f80")
    e("v_mov_b32 v10, 0x8000")
    e("ds_write_b64 v10, v[8:9]")
    e("ds_write_b64 v10, v[8:9] offset:8")
    e("s_lshl_b32 s18, s14, 10")
    e("v_add_u32 v6, s18, v5")
    e("v_lshlrev_b32 v7, 8, v4")
    e("v_lshl_add_u32 v7, v3, 4, v7")
    e("v_add_u32 v7, s18, v7")
    e("v_add_u32 v7, 0x4000, v7")
    e("v_cmp_gt_u32 vcc, 16, v3")
    e("v_mov_b32 v11, 0x200")
    e("s_nop 0")
    e("v_cndmask_b32 v7, v10, v7, vcc")
    e("v_cndmask_b32 v14, 0, v11, vcc   ; step")
    e(f"s_add_u32 s17, s16, {hex(OB)}    ; O soffset")
    e("v_lshlrev_b32 v8, 2, v4")
    e("v_sub_u32 v8, v3, v8")
    for i in range(16):
        ci = (i & 3) + 8*(i >> 2)
        e(f"v_cmp_le_i32 s[{32+2*i}:{33+2*i}], {ci}, v8")
    e("v_mov_b32 v15, 0x3eb8aa3b        ; 0.25*log2(e)")
    e("v_mov_b32 v240, 0x3eb8aa3b")
    e("v_mov_b32 v241, 0x3eb8aa3b")
    e("v_mov_b32 v8, 0xffff")
    e("v_mov_b32 v9, 0xffff0000")
    for r in range(8):
        e(f"v_cndmask_b32 v{232+r}, 0, v8, s[{32+4*r}:{33+4*r}]")
        e(f"v_cndmask_b32 v11, 0, v9, s[{34+4*r}:{35+4*r}]")
        e(f"v_or_b32 v{232+r}, v{232+r}, v11")
    if PF3:
        srd(28, 4, 5, 0x80000)
        e("s_lshl_b32 s64, s64, 3")
        e("s_add_u32 s64, s64, s14")
        e("s_lshl_b32 s64, s64, 11")
        e("v_lshlrev_b32 v253, 5, v2")
    e(f"s_waitcnt vmcnt(0) lgkmcnt(0)")
    e("s_barrier")
    stamp()
    if PF3:
        e("buffer_load_dword v252, v253, s[28:31], s64 offen")
    for t in range(9):
        e(f"ds_read_b128 {vr(KF+4*t,4)}, v6 offset:{1024*t}")
    for t in range(9):
        e(f"s_waitcnt lgkmcnt({8-t})")
        e(f"v_mfma_f32_32x32x16_bf16 {vr(S+16*t,16)}, {vr(KF+4*t,4)}, {vr(QF,4)}, 0")
    e("s_nop 7")
    e("s_nop 4")
    e("s_cmp_ge_u32 s13, 8")
    e("s_cbranch_scc1 L_k2_fix_done")
    e("v_mov_b32 v9, 0xcf800000")
    for t in range(8):
        for i in range(16):
            e(f"v_mov_b32 v{S+16*t+i}, v9")
        if t < 7:
            e(f"s_cmp_ge_u32 s13, {7-t}")
            e("s_cbranch_scc1 L_k2_fix_done")
    e("L_k2_fix_done:")
    for i in range(16):
        e(f"v_cndmask_b32 v{S+128+i}, v{S+i}, v{S+128+i}, s[{32+2*i}:{33+2*i}]")
    vals = [S+16+i for i in range(128)]
    ch = [10, 11, 12, 13]
    for c in range(4):
        sub = vals[32*c:32*c+32]
        e(f"v_max3_f32 v{ch[c]}, v{sub[0]}, v{sub[1]}, v{sub[2]}")
    for step in range(14):
        for c in range(4):
            sub = vals[32*c:32*c+32]
            e(f"v_max3_f32 v{ch[c]}, v{sub[3+2*step]}, v{sub[4+2*step]}, v{ch[c]}")
    for c in range(4):
        sub = vals[32*c:32*c+32]
        e(f"v_max_f32 v{ch[c]}, v{sub[31]}, v{ch[c]}")
    e("v_max3_f32 v10, v10, v11, v12")
    e("v_max_f32 v10, v10, v13")
    e("v_mov_b32 v11, v10")
    e("s_nop 1")
    e("v_permlane32_swap_b32 v10, v11")
    e("v_max_f32 v10, v10, v11")
    e("v_mul_f32 v10, v15, v10          ; m*c")
    e("v_mov_b32 v242, v10")
    e("v_mov_b32 v243, v10")
    stamp()
    def softmax(t):
        base = S+16*t
        if PK:
            for i in range(0, 16, 2):
                e(f"v_pk_fma_f32 {vr(base+i,2)}, {vr(base+i,2)}, v[240:241], v[242:243] neg_lo:[0,0,1] neg_hi:[0,0,1]")
        else:
            for i in range(16):
                e(f"v_fma_f32 v{base+i}, v{base+i}, v15, -v10")
        for i in range(16):
            e(f"v_exp_f32 v{base+i}, v{base+i}")
        for r in range(8):
            e(f"v_cvt_pk_bf16_f32 v{base+r}, v{base+2*r}, v{base+2*r+1}")
        if t == 8:
            for r in range(8):
                e(f"v_and_b32 v{S+8+r}, v{base+r}, v{232+r}")
            for r in range(8):
                e(f"v_xor_b32 v{S+r}, v{base+r}, v{S+8+r}")
            for r in range(8):
                e(f"v_mov_b32 v{base+r}, v{S+8+r}")
    def vread(t):
        b = VF + 8*(t & 1)
        for m in range(2):
            e(f"ds_read_b128 {vr(b+4*m,4)}, v7")
            e("v_add_u32 v7, v7, v14")
    vread(0)
    softmax(8)
    for t in range(9):
        if t+1 < 9:
            vread(t+1)
        if 1 <= t+1 <= 7:
            softmax(t+1)
        e(f"s_waitcnt lgkmcnt({2 if t+1 < 9 else 0})")
        b = VF + 8*(t & 1)
        base = S+16*t
        for m in range(2):
            cin = "0" if (t == 0 and m == 0) else vr(OA, 16)
            e(f"v_mfma_f32_32x32x16_bf16 {vr(OA,16)}, {vr(b+4*m,4)}, {vr(base+4*m,4)}, {cin}")
    stamp()
    e("s_nop 7")
    e("s_nop 7")
    e(f"v_rcp_f32 v10, v{OA+8}")
    e("s_nop 0")
    for i in range(8):
        e(f"v_mul_f32 v{OA+i}, v10, v{OA+i}")
    for r in range(4):
        e(f"v_cvt_pk_bf16_f32 v{16+r}, v{OA+2*r}, v{OA+2*r+1}")
    e(f"buffer_store_dwordx4 v[16:19], v5, s[24:27], s17 offen {STM2}")
    stamp_flush(1, 14, 8)
    dbg_end(1)
    e("L_k2_end:")
    e("s_endpgm")
    out.append("")

def gen_k3():
    kernel_begin("oproj_kernel")
    e("s_cmp_ge_u32 s2, 256")
    e("s_cbranch_scc1 L_k3_end")
    e("s_load_dwordx4 s[4:7], s[0:1], 16")
    e("s_load_dwordx2 s[8:9], s[0:1], 40")
    e("s_and_b32 s10, s2, 7")
    e("s_lshr_b32 s11, s2, 3")
    if MAP2:
        e("s_lshr_b32 s13, s10, 1")
        e("s_lshl_b32 s13, s13, 3")
        e("s_and_b32 s12, s11, 7")
        e("s_add_u32 s13, s13, s12          ; mt (0..31)")
        e("s_lshr_b32 s12, s11, 3")
        e("s_and_b32 s11, s10, 1")
        e("s_lshl_b32 s11, s11, 2")
        e("s_add_u32 s12, s12, s11          ; nt (0..7)")
    else:
        e("s_lshl_b32 s13, s10, 2")
        e("s_and_b32 s12, s11, 3")
        e("s_add_u32 s13, s13, s12          ; mt (0..31)")
        e("s_lshr_b32 s12, s11, 2           ; nt (0..7)")
    e("v_lshrrev_b32 v1, 6, v0")
    e("v_and_b32 v2, 63, v0             ; lane")
    e("v_readfirstlane_b32 s39, v1      ; wave")
    e("v_and_b32 v3, 31, v2             ; l&31")
    e("v_lshrrev_b32 v4, 5, v2          ; h")
    e("s_and_b32 s14, s39, 3")
    e("v_lshlrev_b32 v5, 4, v2          ; lane*16")
    e("s_cmp_ge_u32 s39, 4")
    e("s_cbranch_scc1 L_k3_loader")
    e("s_lshr_b32 s28, s14, 1           ; a")
    e("s_and_b32 s29, s14, 1            ; b")
    e("s_lshl_b32 s30, s28, 10")
    e("v_add_u32 v12, s30, v5")
    e("v_bfe_u32 v9, v2, 2, 2           ; r")
    e("v_lshl_add_u32 v10, v4, 2, v9    ; 4h+r")
    e("v_lshlrev_b32 v10, 7, v10")
    e("v_lshrrev_b32 v9, 1, v9")
    e("v_xor_b32 v9, s29, v9")
    e("v_lshl_add_u32 v10, v9, 6, v10")
    e("v_bfe_u32 v9, v2, 4, 1           ; g'")
    e("v_lshl_add_u32 v10, v9, 5, v10")
    e("v_and_b32 v9, 3, v2")
    e("v_lshl_add_u32 v13, v9, 3, v10")
    e("v_add_u32 v13, 0x10000, v13")
    e("v_add_u32 v14, 0x8000, v13")
    e("v_add_u32 v15, 0x8000, v12")
    e("s_waitcnt lgkmcnt(0)")
    srd(16, 6, 7, 0x200000)
    srd(24, 8, 9, WS_SIZE)
    ACC = 64
    FR = 32
    def read_list(kk):
        b = FR + 8*(kk % 3)
        k2 = kk & 15
        L = [f"ds_read_b128 {vr(b,4)}, {'v12' if kk < 16 else 'v15'} offset:{k2*2048}"]
        for ee in range(2):
            L.append(f"ds_read_b64_tr_b16 {vr(b+4+2*ee,2)}, {'v13' if kk < 16 else 'v14'} offset:{k2*2048+ee*1024}")
        return L
    stamp()
    e("s_barrier")
    stamp()
    for r in read_list(0): e(r)
    for r in read_list(1): e(r)
    for kk in range(32):
        nxt = []
        if kk+2 < 32:
            if (kk+2) % 4 == 0:
                e("s_barrier")
                if kk+2 == 24: stamp()
            nxt = read_list(kk+2)
        e(f"s_waitcnt lgkmcnt({3 if kk+1 < 32 else 0})")
        b = FR + 8*(kk % 3)
        acc = vr(ACC, 16)
        cin = "0" if kk == 0 else acc
        e(f"v_mfma_f32_32x32x16_bf16 {acc}, {vr(b+4,4)}, {vr(b,4)}, {cin}")
        for r in nxt: e(r)
    stamp()
    e("s_lshl_b32 s30, s13, 1")
    e("s_add_u32 s30, s30, s28")
    e("s_lshl_b32 s30, s30, 5")
    e("v_add_u32 v5, s30, v3")
    e("v_lshlrev_b32 v5, 10, v5")
    e("v_lshl_add_u32 v5, v4, 3, v5")
    e("s_lshl_b32 s30, s12, 1")
    e("s_add_u32 s30, s30, s29")
    e("s_lshl_b32 s30, s30, 6")
    e("v_add_u32 v5, s30, v5")
    e("s_nop 7")
    e("s_nop 3")
    for r in range(8):
        e(f"v_cvt_pk_bf16_f32 v{16+r}, v{ACC+2*r}, v{ACC+2*r+1}")
    for g in range(4):
        e(f"buffer_store_dwordx2 {vr(16+2*g,2)}, v5, s[16:19], 0 offen offset:{16*g} {STM3}")
    stamp_flush(2, 14, 4)
    dbg_end(2)
    e("s_endpgm")
    e("L_k3_loader:")
    e("v_lshrrev_b32 v9, 3, v2")
    e("v_and_b32 v10, 7, v2")
    e("v_bfe_u32 v11, v2, 4, 1")
    e("v_lshlrev_b32 v11, 2, v11")
    e("v_xor_b32 v10, v10, v11")
    e("v_lshlrev_b32 v9, 10, v9")
    e("v_lshl_add_u32 v9, v10, 4, v9")
    e("s_lshl_b32 s29, s12, 7")
    e("v_add_u32 v6, s29, v9")
    e(f"v_add_u32 v7, {8*1024-1024}, v6")
    e("s_waitcnt lgkmcnt(0)")
    srd(20, 4, 5, 0x80000)
    srd(24, 8, 9, WS_SIZE)
    e("s_lshl_b32 s36, s14, 11")
    e("s_lshl_b32 s37, s14, 16")
    e("s_lshl_b32 s30, s13, 11")
    e("s_add_u32 s37, s37, s30")
    e(f"s_add_u32 s37, s37, {hex(OB)}")
    e("s_lshl_b32 s38, s14, 14          ; W global w*16*1024")
    def issue(c):
        e(f"s_add_u32 s30, s36, {c*8192}")
        e("s_mov_b32 m0, s30")
        e(f"s_add_u32 s31, s37, {c*4*65536}")
        e("buffer_load_dwordx4 v5, s[24:27], s31 offen lds")
        e("buffer_load_dwordx4 v5, s[24:27], s31 offen offset:1024 lds")
        e(f"s_add_u32 s30, s36, {65536 + c*8192}")
        e("s_mov_b32 m0, s30")
        e(f"s_add_u32 s31, s38, {c*65536}")
        e("buffer_load_dwordx4 v6, s[20:23], s31 offen lds")
        e("buffer_load_dwordx4 v7, s[20:23], s31 offen offset:1024 lds")
    LA3 = int(os.environ.get('LA3', '4'))
    for c in range(LA3):
        issue(c)
    for c in range(8):
        nout = min(c+LA3-1, 7) - c
        e(f"s_waitcnt vmcnt({4*nout})")
        e("s_barrier")
        if c+LA3 <= 7:
            issue(c+LA3)
    e("L_k3_end:")
    e("s_endpgm")
    out.append("")

gen_k1()
gen_k2()
gen_k3()
txt = HEADER + "\n".join(out) + "\n" + '.section .rodata,"a"\n'
for n, v in (("qkv_kernel", 160), ("attn_kernel", 256), ("oproj_kernel", 80)):
    txt += ".p2align 6\n" + kd(n, v)
dst = sys.argv[1] if len(sys.argv) > 1 else "standalone__sliding_block__prompt.s"
open(dst, "w").write(txt)
```

```python
import sys, os

K2_LDS = 32768 + 64
K1_SLOT = 32768
K1_NSLOT = 5
PF3 = int(os.environ.get('PF3', '0'))
PF1 = int(os.environ.get('PF1', '0'))
MAP2 = int(os.environ.get('MAP2', '0'))
NL = int(os.environ.get('NL', '4'))
PK = int(os.environ.get('PK', '1'))
PFD = int(os.environ.get('PFD', '8'))
PFD0 = int(os.environ.get('PFD0', '2'))
STM = os.environ.get('STM', '')
STM2 = os.environ.get('STM2', '')
STM3 = os.environ.get('STM3', '')
ROT = int(os.environ.get('ROT', '1'))
MAP1 = int(os.environ.get('MAP1', '0'))
WIDE3 = int(os.environ.get('WIDE3', '1'))
LA = int(os.environ.get('LA', '3'))
HEADER = f"""; Kernarg layout for this problem (48 bytes, ptrs only, base s[0:1]):
; @launch kernel=qkv_kernel grid=(256,1,1) block=({256+64*NL},1,1) lds={K1_SLOT*K1_NSLOT}
; @launch kernel=attn_kernel grid=(256,1,1) block=(512,1,1) lds={K2_LDS}
; @launch kernel=oproj_kernel grid=(256,1,1) block=(512,1,1) lds=131072
.amdgcn_target "amdgcn-amd-amdhsa--gfx950"
.text
"""
QB = 0
KB = 0x200000
VB = 0x400000
OB = 0x800000
WS_SIZE = 0x1000000

out = []
def e(s=""):
    out.append("    " + s if s and not s.endswith(":") else s)

DBG = int(os.environ.get("DBG", "0"))
def kernel_begin(name):
    out.append(f".globl {name}")
    out.append(".p2align 8")
    out.append(f".type {name},@function")
    out.append(f"{name}:")
    if DBG:
        e("s_memrealtime s[96:97]")
        e("s_load_dwordx2 s[98:99], s[0:1], 32")
def dbg_end(kid):
    if not DBG: return
    e("s_waitcnt vmcnt(0)")
    e("s_memrealtime s[100:101]")
    e("s_waitcnt lgkmcnt(0)")
    e("s_cmp_lg_u32 s14, 0")
    e(f"s_cbranch_scc1 L_dbg_done{kid}")
    e("s_mov_b32 s92, 0")
    e("s_cmp_eq_u32 s2, 0")
    e(f"s_cbranch_scc1 L_dbg_go{kid}")
    e("s_mov_b32 s92, 8")
    e("s_cmp_lg_u32 s2, 200")
    e(f"s_cbranch_scc1 L_dbg_done{kid}")
    e(f"L_dbg_go{kid}:")
    e(f"s_add_u32 s92, s92, {0xE00000 + kid*16}")
    e("s_mov_b64 exec, 1")
    e("v_mov_b32 v1, 0")
    e("v_mov_b32 v2, s96")
    e("v_mov_b32 v3, s100")
    e(f"buffer_store_dwordx2 v[2:3], v1, s[24:27], s92 offen")
    if kid == 2:
        e("s_cmp_lg_u32 s2, 0")
        e(f"s_cbranch_scc1 L_dbg_done{kid}")
        e("s_mov_b64 exec, 0xffff")
        e("v_lshlrev_b32 v1, 2, v0")
        e("s_mov_b32 s92, 0xE00000")
        e("s_waitcnt vmcnt(0)")
        e("buffer_load_dword v2, v1, s[24:27], s92 offen sc0 sc1")
        e("s_mov_b32 s92, s98")
        e("s_and_b32 s93, s99, 0xffff")
        e("s_mov_b32 s94, 256")
        e("s_mov_b32 s95, 0x20000")
        e("s_waitcnt vmcnt(0)")
        e("buffer_store_dword v2, v1, s[92:95], 0 offen")
    e(f"L_dbg_done{kid}:")
    e("s_mov_b64 exec, -1")

def kd(name, vgpr, sgpr=102):
    return f""".amdhsa_kernel {name}
  .amdhsa_next_free_vgpr {vgpr}
  .amdhsa_next_free_sgpr {sgpr}
  .amdhsa_accum_offset {((vgpr+3)//4)*4}
  .amdhsa_group_segment_fixed_size 0
  .amdhsa_kernarg_size 48
  .amdhsa_user_sgpr_count 2
  .amdhsa_user_sgpr_kernarg_segment_ptr 1
  .amdhsa_system_sgpr_workgroup_id_x 1
.end_amdhsa_kernel
"""

STAMP = int(os.environ.get("STAMP", "0"))
EXP = int(os.environ.get("EXP", "0"))
STAMP_BASE = 0xC00000
STAMP_S = 90
stamp_n = [0]
def stamp():
    if not STAMP: return
    i = stamp_n[0]; stamp_n[0] += 1
    assert i < 6
    e(f"{'s_memrealtime' if STAMP==2 else 's_memtime'} s[{STAMP_S+2*i}:{STAMP_S+2*i+1}]")
def stamp_flush(kid, wave_sgpr, nw):
    if not STAMP: return
    e("s_waitcnt vmcnt(0)")
    stamp()
    n = stamp_n[0]; stamp_n[0] = 0
    e("s_waitcnt lgkmcnt(0)")
    e(f"s_mul_i32 s3, s2, {nw}")
    e(f"s_add_u32 s3, s3, s{wave_sgpr}")
    e("s_lshl_b32 s3, s3, 6")
    e(f"s_add_u32 s3, s3, {hex(STAMP_BASE + kid*0x40000)}")
    e("s_mov_b64 exec, 1")
    e("v_mov_b32 v1, 0")
    for i in range(n):
        e(f"v_mov_b32 v2, s{STAMP_S+2*i}")
        e(f"buffer_store_dword v2, v1, s[24:27], s3 offen offset:{4*i}")
    e("s_mov_b64 exec, -1")

def vr(a, n):
    return f"v[{a}:{a+n-1}]"

def srd(d, lo, hi, size):
    e(f"s_mov_b32 s{d}, s{lo}")
    e(f"s_and_b32 s{d+1}, s{hi}, 0xffff")
    e(f"s_mov_b32 s{d+2}, {hex(size)}")
    e(f"s_mov_b32 s{d+3}, 0x00020000")

def gen_k1():
    kernel_begin("qkv_kernel")
    e("s_cmp_ge_u32 s2, 256")
    e("s_cbranch_scc1 L_k1_end")
    e("s_load_dwordx4 s[4:7], s[0:1], 0")
    e("s_load_dwordx2 s[8:9], s[0:1], 40")
    e("s_and_b32 s10, s2, 7")
    e("s_lshr_b32 s11, s2, 3")
    if MAP1 == 0:
        e("s_and_b32 s12, s10, 1")
        e("s_lshl_b32 s12, s12, 2")
        e("s_and_b32 s13, s11, 3")
        e("s_add_u32 s12, s12, s13          ; nt (0..7)")
        e("s_lshr_b32 s13, s10, 1")
        e("s_lshl_b32 s13, s13, 3")
        e("s_lshr_b32 s14, s11, 2")
        e("s_add_u32 s13, s13, s14          ; mt (0..31)")
    elif MAP1 == 1:
        e("s_mov_b32 s12, s10")
        e("s_mov_b32 s13, s11")
    elif MAP1 == 2:
        e("s_and_b32 s12, s11, 7")
        e("s_lshr_b32 s13, s11, 3")
        e("s_lshl_b32 s13, s13, 3")
        e("s_add_u32 s13, s13, s10")
    e("v_lshrrev_b32 v1, 6, v0")
    e("v_and_b32 v2, 63, v0             ; lane")
    e("v_readfirstlane_b32 s39, v1      ; wave")
    e("v_and_b32 v3, 31, v2             ; l&31")
    e("v_lshrrev_b32 v4, 5, v2          ; h")
    e("s_and_b32 s14, s39, 3            ; w")
    e("s_lshl_b32 s15, s13, 6")
    e("s_cmp_ge_u32 s39, 4")
    e("s_cbranch_scc1 L_k1_loader")
    e("s_lshr_b32 s28, s14, 1           ; a")
    e("s_and_b32 s29, s14, 1            ; b")
    e("v_bfe_u32 v9, v2, 2, 2           ; r")
    e("v_lshl_add_u32 v10, v4, 3, v9    ; 8h+r")
    e("v_mul_u32_u24 v10, 384, v10")
    e("v_lshrrev_b32 v9, 1, v9")
    e("v_xor_b32 v9, s29, v9")
    e("v_lshl_add_u32 v10, v9, 6, v10")
    e("v_bfe_u32 v9, v2, 4, 1           ; g'")
    e("v_lshl_add_u32 v10, v9, 5, v10")
    e("v_and_b32 v9, 3, v2")
    e("v_lshl_add_u32 v20, v9, 3, v10")
    e("v_add_u32 v20, 0x2000, v20")
    e("v_bfe_u32 v9, v3, 1, 3           ; f")
    e("v_lshlrev_b32 v10, 7, v3")
    e("s_lshl_b32 s30, s28, 12")
    e("v_add_u32 v10, s30, v10")
    for k2 in range(4):
        e(f"v_add_u32 v11, {2*k2}, v4")
        e("v_xor_b32 v11, v11, v9")
        e(f"v_lshl_add_u32 v{21+k2}, v11, 4, v10")
    e("s_waitcnt lgkmcnt(0)")
    srd(24, 8, 9, WS_SIZE)
    stamp()
    if PF1 == 1:
        srd(16, 4, 5, 0x200000)
        srd(20, 6, 7, 0x180000)
        e("s_lshl_b32 s40, s11, 2")
        e("s_add_u32 s40, s40, s14          ; wid 0..127")
        e("s_lshr_b32 s41, s10, 1")
        e("s_lshl_b32 s41, s41, 19")
        e("s_lshl_b32 s42, s40, 12")
        e("s_add_u32 s41, s41, s42")
        e("v_lshlrev_b32 v40, 6, v2")
        e("buffer_load_dword v41, v40, s[16:19], s41 offen")
        e("v_lshrrev_b32 v40, 4, v2")
        e("v_mul_u32_u24 v40, 0xc00, v40")
        e("v_and_b32 v42, 7, v2")
        e("v_lshl_add_u32 v40, v42, 6, v40")
        e("v_bfe_u32 v42, v2, 3, 1")
        e("v_lshl_add_u32 v43, v42, 10, v40")
        e("s_mul_i32 s41, s40, 0x3000")
        e("s_and_b32 s42, s10, 1")
        e("s_lshl_b32 s42, s42, 9")
        e("s_add_u32 s41, s41, s42")
        e("buffer_load_dword v44, v43, s[20:23], s41 offen")
        e("buffer_load_dword v45, v40, s[20:23], s41 offen offset:2048")
    if PF1 == 2:
        srd(16, 4, 5, 0x200000)
        srd(20, 6, 7, 0x180000)
        e("s_lshl_b32 s40, s11, 2")
        e("s_add_u32 s40, s40, s14          ; wid 0..127")
        e("s_cmp_ge_u32 s40, 120")
        e("s_cbranch_scc1 L_pf_done")
        e("s_cmp_ge_u32 s40, 48")
        e("s_cbranch_scc1 L_pf_w")
        e("s_lshl_b32 s41, s40, 6")
        e("v_add_u32 v40, s41, v2")
        e("v_mul_u32_u24 v41, 0xaaab, v40")
        e("v_lshrrev_b32 v41, 18, v41       ; /6")
        e("v_mul_u32_u24 v42, 6, v41")
        e("v_sub_u32 v42, v40, v42")
        e("v_lshlrev_b32 v41, 10, v41")
        e("v_lshl_add_u32 v40, v42, 6, v41")
        e("s_lshr_b32 s41, s10, 1")
        e("s_lshl_b32 s41, s41, 19")
        e(f"s_sleep {PFD0}")
        e("buffer_load_dword v41, v40, s[16:19], s41 offen offset:256")
        e(f"s_sleep {PFD}")
        e("buffer_load_dword v42, v40, s[16:19], s41 offen offset:640")
        e("s_branch L_pf_done")
        e("L_pf_w:")
        e("s_sub_u32 s41, s40, 48")
        e("s_lshl_b32 s41, s41, 6")
        e("v_add_u32 v40, s41, v2")
        e("v_mul_u32_u24 v41, 0xaaab, v40")
        e("v_lshrrev_b32 v41, 20, v41       ; /24")
        e("v_mul_u32_u24 v42, 24, v41")
        e("v_sub_u32 v42, v40, v42")
        e("v_mul_u32_u24 v41, 0xc00, v41")
        e("v_lshrrev_b32 v43, 3, v42")
        e("v_lshl_add_u32 v41, v43, 10, v41")
        e("v_and_b32 v42, 7, v42")
        e("v_lshl_add_u32 v40, v42, 6, v41")
        e("s_and_b32 s42, s10, 1")
        e("s_lshl_b32 s42, s42, 9")
        e(f"s_add_u32 s41, s42, {128*3072}")
        e(f"s_add_u32 s42, s42, {320*3072}")
        e(f"s_sleep {PFD0}")
        e("buffer_load_dword v41, v40, s[20:23], s41 offen")
        e(f"s_sleep {PFD}")
        e("buffer_load_dword v42, v40, s[20:23], s42 offen")
        e("L_pf_done:")
    ACC = 64
    FR = 112
    AD = 26
    def setaddr(c):
        sl = (c % K1_NSLOT) * K1_SLOT
        for i in range(5):
            e(f"v_add_u32 v{AD+5*(c&1)+i}, {sl}, v{20+i}")
    def read_list(kk):
        b = FR + 16*(kk % 3)
        k2 = kk & 3
        ad = AD + 5*((kk//4) & 1)
        if EXP >= 2: return []
        L = [f"ds_read_b128 {vr(b,4)}, v{ad+1+k2}"]
        for j in range(3):
            for ee in range(2):
                L.append(f"ds_read_b64_tr_b16 {vr(b+4+4*j+2*ee,2)}, v{ad} offset:{k2*6144+ee*1536+j*128}")
        return L
    setaddr(0)
    e("s_barrier")
    stamp()
    for r in read_list(0): e(r)
    for r in read_list(1): e(r)
    for kk in range(32):
        nxt = []
        if kk+2 < 32:
            if (kk+2) % 4 == 0:
                c = (kk+2)//4
                setaddr(c)
                e("s_barrier")
                if c == 6: stamp()
            nxt = read_list(kk+2)
        e(f"s_waitcnt lgkmcnt({7 if kk+1 < 32 else 0})")
        b = FR + 16*(kk % 3)
        xf = vr(b, 4)
        for j in range(3):
            acc = vr(ACC+16*j, 16)
            cin = "0" if kk == 0 else acc
            wf = vr(b+4+4*j, 4)
            if EXP >= 2: pass
            elif j < 2:
                e(f"v_mfma_f32_32x32x16_bf16 {acc}, {wf}, {xf}, {cin}")
            else:
                e(f"v_mfma_f32_32x32x16_bf16 {acc}, {xf}, {wf}, {cin}")
            part = nxt[[0,3,5][j]:[3,5,7][j]]
            for r in part: e(r)
    stamp()
    e("v_lshlrev_b32 v5, 4, v2")
    e("s_lshl_b32 s30, s12, 1")
    e("s_add_u32 s30, s30, s29")
    e("s_lshl_b32 s30, s30, 17          ; head0*65536")
    e("s_lshl_b32 s31, s13, 1")
    e("s_add_u32 s31, s31, s28")
    e("s_lshl_b32 s31, s31, 10          ; tile*1024")
    e("s_add_u32 s30, s30, s31")
    e("s_add_u32 s31, s30, 0x10000")
    e(f"s_add_u32 s32, s30, {hex(KB)}")
    e(f"s_add_u32 s33, s31, {hex(KB)}")
    e("v_lshrrev_b32 v9, 4, v3")
    e("v_lshlrev_b32 v6, 16, v9")
    e("v_lshl_add_u32 v6, v4, 8, v6")
    e("v_and_b32 v9, 15, v3")
    e("v_lshl_add_u32 v6, v9, 4, v6")
    e(f"s_add_u32 s34, s30, {hex(VB)}")
    e("s_nop 7")
    P = 8
    for j in range(3):
        for r in range(8):
            e(f"v_cvt_pk_bf16_f32 v{P+8*j+r}, v{ACC+16*j+2*r}, v{ACC+16*j+2*r+1}")
    e(f"buffer_store_dwordx4 {vr(P,4)}, v5, s[24:27], s30 offen {STM}")
    e(f"buffer_store_dwordx4 {vr(P+4,4)}, v5, s[24:27], s31 offen {STM}")
    e(f"buffer_store_dwordx4 {vr(P+8,4)}, v5, s[24:27], s32 offen {STM}")
    e(f"buffer_store_dwordx4 {vr(P+12,4)}, v5, s[24:27], s33 offen {STM}")
    e(f"buffer_store_dwordx4 {vr(P+16,4)}, v6, s[24:27], s34 offen {STM}")
    e(f"buffer_store_dwordx4 {vr(P+20,4)}, v6, s[24:27], s34 offen offset:512 {STM}")
    stamp_flush(0, 14, 4)
    dbg_end(0)
    e("s_endpgm")
    e("L_k1_loader:")
    RPL = 64 // NL
    NX = RPL // 8
    NP = RPL // 8
    e("s_sub_u32 s14, s39, 4            ; L")
    e(f"s_mul_i32 s28, s14, {RPL}")
    e("s_add_u32 s30, s15, s28")
    e("v_lshrrev_b32 v9, 3, v2")
    e("v_add_u32 v9, s30, v9")
    e("v_lshlrev_b32 v9, 10, v9")
    e("v_and_b32 v10, 7, v2             ; pos")
    e("v_lshrrev_b32 v11, 4, v2")
    e("s_lshr_b32 s30, s28, 1")
    e("v_add_u32 v11, s30, v11")
    for a_ in range(NX):
        e(f"v_add_u32 v12, {4*a_}, v11")
        e("v_and_b32 v12, 7, v12")
        e("v_xor_b32 v12, v12, v10")
        e("v_lshl_add_u32 v12, v12, 4, v9")
        e(f"v_add_u32 v{16+a_}, {8*a_*1024 - a_*1024}, v12")
    e("s_lshl_b32 s29, s12, 7           ; 128*nt")
    for j in range(3):
        e(f"v_add_u32 v9, {64*j}, v2")
        e("v_mul_u32_u24 v10, 0xaaab, v9")
        e("v_lshrrev_b32 v10, 20, v10       ; row")
        e("v_mul_u32_u24 v11, 24, v10")
        e("v_sub_u32 v11, v9, v11           ; pos")
        e("v_lshrrev_b32 v12, 3, v11        ; seg")
        e("v_and_b32 v11, 7, v11")
        e("v_bfe_u32 v13, v10, 1, 1")
        e("v_lshlrev_b32 v13, 2, v13")
        e("v_xor_b32 v11, v11, v13")
        e("v_mul_u32_u24 v10, 0xc00, v10    ; row*3072")
        e("v_lshl_add_u32 v10, v12, 10, v10")
        e("v_lshl_add_u32 v10, v11, 4, v10")
        e("v_add_u32 v10, s29, v10")
        if j:
            e(f"v_subrev_u32 v{6+j}, {1024*j}, v10")
        else:
            e(f"v_mov_b32 v6, v10")
    e("s_waitcnt lgkmcnt(0)")
    srd(16, 4, 5, 0x200000)
    srd(20, 6, 7, 0x180000)
    e("s_lshl_b32 s36, s28, 7")
    e("s_mul_i32 s37, s28, 384")
    e("s_add_u32 s37, s37, 0x2000")
    e("s_mul_i32 s38, s28, 0xc00        ; W global")
    if ROT:
        e("s_lshl_b32 s43, s12, 1")
        e("s_add_u32 s43, s43, s13")
    else:
        e("s_mov_b32 s43, 0")
    def issue(c):
        if EXP == 1: return
        sl = (c % K1_NSLOT) * K1_SLOT
        e(f"s_add_u32 s30, s36, {sl}")
        e("s_mov_b32 m0, s30")
        e(f"s_add_u32 s44, s43, {c}")
        e("s_and_b32 s44, s44, 7")
        e("s_lshl_b32 s31, s44, 7")
        for a_ in range(NX):
            e(f"buffer_load_dwordx4 v{16+a_}, s[16:19], s31 offen offset:{1024*a_} lds")
        e(f"s_mul_i32 s44, s44, {64*3072}")
        e("s_add_u32 s44, s44, s38")
        for pp in range(NP):
            e(f"s_add_u32 s30, s37, {sl + pp*3072}")
            e("s_mov_b32 m0, s30")
            e(f"s_add_u32 s31, s44, {pp*8*3072}")
            for j in range(3):
                e(f"buffer_load_dwordx4 v{6+j}, s[20:23], s31 offen offset:{1024*j} lds")
    per = NX + 3*NP
    for c in range(LA):
        issue(c)
    for c in range(8):
        nout = min(c+LA-1, 7) - c
        e(f"s_waitcnt vmcnt({per*nout})")
        e("s_barrier")
        if c+LA <= 7:
            issue(c+LA)
    e("L_k1_end:")
    e("s_endpgm")
    out.append("")

def gen_k2():
    kernel_begin("attn_kernel")
    e("s_cmp_ge_u32 s2, 256")
    e("s_cbranch_scc1 L_k2_end")
    e("s_load_dwordx2 s[8:9], s[0:1], 40")
    e("s_load_dwordx2 s[4:5], s[0:1], 16")
    e("s_and_b32 s10, s2, 7")
    e("s_lshr_b32 s11, s2, 3")
    e("s_mov_b32 s64, s11")
    if MAP2:
        e("s_and_b32 s12, s10, 1")
        e("s_lshl_b32 s12, s12, 4")
        e("s_and_b32 s13, s11, 15")
        e("s_add_u32 s12, s12, s13          ; head")
        e("s_lshr_b32 s11, s11, 4")
        e("s_and_b32 s13, s10, 6")
        e("s_add_u32 s11, s11, s13          ; j")
    else:
        e("s_lshl_b32 s12, s10, 2")
        e("s_and_b32 s13, s11, 3")
        e("s_add_u32 s12, s12, s13          ; head")
        e("s_lshr_b32 s11, s11, 2           ; j")
    e("v_lshrrev_b32 v1, 6, v0")
    e("v_and_b32 v2, 63, v0             ; lane")
    e("v_readfirstlane_b32 s14, v1      ; wave")
    e("v_and_b32 v3, 31, v2             ; l&31")
    e("v_lshrrev_b32 v4, 5, v2          ; h")
    e("s_lshl_b32 s13, s11, 3")
    e("s_add_u32 s13, s13, s14          ; b")
    e("v_lshlrev_b32 v5, 4, v2          ; lane*16")
    e("s_lshl_b32 s15, s12, 16          ; head*65536")
    e("s_lshl_b32 s16, s13, 10          ; b*1024")
    e("s_add_u32 s16, s16, s15")
    e("s_lshl_b32 s17, s11, 3")
    e("s_lshl_b32 s18, s14, 1")
    e("s_add_u32 s17, s17, s18")
    e("s_sub_u32 s17, s17, 8")
    e("s_max_i32 s17, s17, 0")
    e("s_lshl_b32 s19, s17, 10")
    e("s_add_u32 s19, s19, s15")
    e(f"s_add_u32 s20, s19, {hex(KB)}")
    e(f"s_add_u32 s21, s19, {hex(VB)}")
    e("s_lshl_b32 s22, s14, 11")
    e("s_add_u32 s23, s22, 0x4000")
    e("s_waitcnt lgkmcnt(0)")
    srd(24, 8, 9, WS_SIZE)
    S = 16
    KF = 160
    VF = 196
    QF = 212
    OA = 216
    stamp()
    e(f"buffer_load_dwordx4 {vr(QF,4)}, v5, s[24:27], s16 offen")
    e("s_mov_b32 m0, s22")
    e("s_nop 0")
    e("buffer_load_dwordx4 v5, s[24:27], s20 offen lds")
    e("buffer_load_dwordx4 v5, s[24:27], s20 offen offset:1024 lds")
    e("s_mov_b32 m0, s23")
    e("s_nop 0")
    e("buffer_load_dwordx4 v5, s[24:27], s21 offen lds")
    e("buffer_load_dwordx4 v5, s[24:27], s21 offen offset:1024 lds")
    e("v_mov_b32 v8, 0x3f803f80")
    e("v_mov_b32 v9, 0x3f803f80")
    e("v_mov_b32 v10, 0x8000")
    e("ds_write_b64 v10, v[8:9]")
    e("ds_write_b64 v10, v[8:9] offset:8")
    e("s_lshl_b32 s18, s14, 10")
    e("v_add_u32 v6, s18, v5")
    e("v_lshlrev_b32 v7, 8, v4")
    e("v_lshl_add_u32 v7, v3, 4, v7")
    e("v_add_u32 v7, s18, v7")
    e("v_add_u32 v7, 0x4000, v7")
    e("v_cmp_gt_u32 vcc, 16, v3")
    e("v_mov_b32 v11, 0x200")
    e("s_nop 0")
    e("v_cndmask_b32 v7, v10, v7, vcc")
    e("v_cndmask_b32 v14, 0, v11, vcc   ; step")
    e(f"s_add_u32 s17, s16, {hex(OB)}    ; O soffset")
    e("v_lshlrev_b32 v8, 2, v4")
    e("v_sub_u32 v8, v3, v8")
    for i in range(16):
        ci = (i & 3) + 8*(i >> 2)
        e(f"v_cmp_le_i32 s[{32+2*i}:{33+2*i}], {ci}, v8")
    e("v_mov_b32 v15, 0x3eb8aa3b        ; 0.25*log2(e)")
    e("v_mov_b32 v240, 0x3eb8aa3b")
    e("v_mov_b32 v241, 0x3eb8aa3b")
    e("v_mov_b32 v8, 0xffff")
    e("v_mov_b32 v9, 0xffff0000")
    for r in range(8):
        e(f"v_cndmask_b32 v{232+r}, 0, v8, s[{32+4*r}:{33+4*r}]")
        e(f"v_cndmask_b32 v11, 0, v9, s[{34+4*r}:{35+4*r}]")
        e(f"v_or_b32 v{232+r}, v{232+r}, v11")
    if PF3:
        srd(28, 4, 5, 0x80000)
        e("s_lshl_b32 s64, s64, 3")
        e("s_add_u32 s64, s64, s14")
        e("s_lshl_b32 s64, s64, 11")
        e("v_lshlrev_b32 v253, 5, v2")
    e(f"s_waitcnt vmcnt(0) lgkmcnt(0)")
    e("s_barrier")
    stamp()
    if PF3:
        e("buffer_load_dword v252, v253, s[28:31], s64 offen")
    for t in range(9):
        e(f"ds_read_b128 {vr(KF+4*t,4)}, v6 offset:{1024*t}")
    for t in range(9):
        e(f"s_waitcnt lgkmcnt({8-t})")
        e(f"v_mfma_f32_32x32x16_bf16 {vr(S+16*t,16)}, {vr(KF+4*t,4)}, {vr(QF,4)}, 0")
    e("s_nop 7")
    e("s_nop 4")
    e("s_cmp_ge_u32 s13, 8")
    e("s_cbranch_scc1 L_k2_fix_done")
    e("v_mov_b32 v9, 0xcf800000")
    for t in range(8):
        for i in range(16):
            e(f"v_mov_b32 v{S+16*t+i}, v9")
        if t < 7:
            e(f"s_cmp_ge_u32 s13, {7-t}")
            e("s_cbranch_scc1 L_k2_fix_done")
    e("L_k2_fix_done:")
    for i in range(16):
        e(f"v_cndmask_b32 v{S+128+i}, v{S+i}, v{S+128+i}, s[{32+2*i}:{33+2*i}]")
    vals = [S+16+i for i in range(128)]
    ch = [10, 11, 12, 13]
    for c in range(4):
        sub = vals[32*c:32*c+32]
        e(f"v_max3_f32 v{ch[c]}, v{sub[0]}, v{sub[1]}, v{sub[2]}")
    for step in range(14):
        for c in range(4):
            sub = vals[32*c:32*c+32]
            e(f"v_max3_f32 v{ch[c]}, v{sub[3+2*step]}, v{sub[4+2*step]}, v{ch[c]}")
    for c in range(4):
        sub = vals[32*c:32*c+32]
        e(f"v_max_f32 v{ch[c]}, v{sub[31]}, v{ch[c]}")
    e("v_max3_f32 v10, v10, v11, v12")
    e("v_max_f32 v10, v10, v13")
    e("v_mov_b32 v11, v10")
    e("s_nop 1")
    e("v_permlane32_swap_b32 v10, v11")
    e("v_max_f32 v10, v10, v11")
    e("v_mul_f32 v10, v15, v10          ; m*c")
    e("v_mov_b32 v242, v10")
    e("v_mov_b32 v243, v10")
    stamp()
    def softmax(t):
        base = S+16*t
        if PK:
            for i in range(0, 16, 2):
                e(f"v_pk_fma_f32 {vr(base+i,2)}, {vr(base+i,2)}, v[240:241], v[242:243] neg_lo:[0,0,1] neg_hi:[0,0,1]")
        else:
            for i in range(16):
                e(f"v_fma_f32 v{base+i}, v{base+i}, v15, -v10")
        for i in range(16):
            e(f"v_exp_f32 v{base+i}, v{base+i}")
        for r in range(8):
            e(f"v_cvt_pk_bf16_f32 v{base+r}, v{base+2*r}, v{base+2*r+1}")
        if t == 8:
            for r in range(8):
                e(f"v_and_b32 v{S+8+r}, v{base+r}, v{232+r}")
            for r in range(8):
                e(f"v_xor_b32 v{S+r}, v{base+r}, v{S+8+r}")
            for r in range(8):
                e(f"v_mov_b32 v{base+r}, v{S+8+r}")
    def vread(t):
        b = VF + 8*(t & 1)
        for m in range(2):
            e(f"ds_read_b128 {vr(b+4*m,4)}, v7")
            e("v_add_u32 v7, v7, v14")
    vread(0)
    softmax(8)
    for t in range(9):
        if t+1 < 9:
            vread(t+1)
        if 1 <= t+1 <= 7:
            softmax(t+1)
        e(f"s_waitcnt lgkmcnt({2 if t+1 < 9 else 0})")
        b = VF + 8*(t & 1)
        base = S+16*t
        for m in range(2):
            cin = "0" if (t == 0 and m == 0) else vr(OA, 16)
            e(f"v_mfma_f32_32x32x16_bf16 {vr(OA,16)}, {vr(b+4*m,4)}, {vr(base+4*m,4)}, {cin}")
    stamp()
    e("s_nop 7")
    e("s_nop 7")
    e(f"v_rcp_f32 v10, v{OA+8}")
    e("s_nop 0")
    for i in range(8):
        e(f"v_mul_f32 v{OA+i}, v10, v{OA+i}")
    for r in range(4):
        e(f"v_cvt_pk_bf16_f32 v{16+r}, v{OA+2*r}, v{OA+2*r+1}")
    e(f"buffer_store_dwordx4 v[16:19], v5, s[24:27], s17 offen {STM2}")
    stamp_flush(1, 14, 8)
    dbg_end(1)
    e("L_k2_end:")
    e("s_endpgm")
    out.append("")

def gen_k3():
    kernel_begin("oproj_kernel")
    e("s_cmp_ge_u32 s2, 256")
    e("s_cbranch_scc1 L_k3_end")
    e("s_load_dwordx4 s[4:7], s[0:1], 16")
    e("s_load_dwordx2 s[8:9], s[0:1], 40")
    e("s_and_b32 s10, s2, 7")
    e("s_lshr_b32 s11, s2, 3")
    if MAP2:
        e("s_lshr_b32 s13, s10, 1")
        e("s_lshl_b32 s13, s13, 3")
        e("s_and_b32 s12, s11, 7")
        e("s_add_u32 s13, s13, s12          ; mt (0..31)")
        e("s_lshr_b32 s12, s11, 3")
        e("s_and_b32 s11, s10, 1")
        e("s_lshl_b32 s11, s11, 2")
        e("s_add_u32 s12, s12, s11          ; nt (0..7)")
    else:
        e("s_lshl_b32 s13, s10, 2")
        e("s_and_b32 s12, s11, 3")
        e("s_add_u32 s13, s13, s12          ; mt (0..31)")
        e("s_lshr_b32 s12, s11, 2           ; nt (0..7)")
    e("v_lshrrev_b32 v1, 6, v0")
    e("v_and_b32 v2, 63, v0             ; lane")
    e("v_readfirstlane_b32 s39, v1      ; wave")
    e("v_and_b32 v3, 31, v2             ; l&31")
    e("v_lshrrev_b32 v4, 5, v2          ; h")
    e("s_and_b32 s14, s39, 3")
    e("v_lshlrev_b32 v5, 4, v2          ; lane*16")
    e("s_cmp_ge_u32 s39, 4")
    e("s_cbranch_scc1 L_k3_loader")
    e("s_lshr_b32 s28, s14, 1           ; a")
    e("s_and_b32 s29, s14, 1            ; b")
    e("s_lshl_b32 s30, s28, 10")
    e("v_add_u32 v12, s30, v5")
    e("v_bfe_u32 v9, v2, 2, 2           ; r")
    e("v_lshl_add_u32 v10, v4, 2, v9    ; 4h+r")
    e("v_lshlrev_b32 v10, 7, v10")
    e("v_lshrrev_b32 v9, 1, v9")
    e("v_xor_b32 v9, s29, v9")
    e("v_lshl_add_u32 v10, v9, 6, v10")
    e("v_bfe_u32 v9, v2, 4, 1           ; g'")
    e("v_lshl_add_u32 v10, v9, 5, v10")
    e("v_and_b32 v9, 3, v2")
    e("v_lshl_add_u32 v13, v9, 3, v10")
    e("v_add_u32 v13, 0x10000, v13")
    e("v_add_u32 v14, 0x8000, v13")
    e("v_add_u32 v15, 0x8000, v12")
    e("s_waitcnt lgkmcnt(0)")
    srd(16, 6, 7, 0x200000)
    srd(24, 8, 9, WS_SIZE)
    ACC = 64
    FR = 32
    def read_list(kk):
        b = FR + 8*(kk % 3)
        k2 = kk & 15
        L = [f"ds_read_b128 {vr(b,4)}, {'v12' if kk < 16 else 'v15'} offset:{k2*2048}"]
        for ee in range(2):
            L.append(f"ds_read_b64_tr_b16 {vr(b+4+2*ee,2)}, {'v13' if kk < 16 else 'v14'} offset:{k2*2048+ee*1024}")
        return L
    stamp()
    e("s_barrier")
    stamp()
    for r in read_list(0): e(r)
    for r in read_list(1): e(r)
    for kk in range(32):
        nxt = []
        if kk+2 < 32:
            if (kk+2) % 4 == 0:
                e("s_barrier")
                if kk+2 == 24: stamp()
            nxt = read_list(kk+2)
        e(f"s_waitcnt lgkmcnt({3 if kk+1 < 32 else 0})")
        b = FR + 8*(kk % 3)
        acc = vr(ACC, 16)
        cin = "0" if kk == 0 else acc
        e(f"v_mfma_f32_32x32x16_bf16 {acc}, {vr(b+4,4)}, {vr(b,4)}, {cin}")
        for r in nxt: e(r)
    stamp()
    e("s_lshl_b32 s30, s13, 1")
    e("s_add_u32 s30, s30, s28")
    e("s_lshl_b32 s30, s30, 5")
    e("v_add_u32 v5, s30, v3")
    e("v_lshlrev_b32 v5, 10, v5")
    e(f"v_lshl_add_u32 v5, v4, {4 if WIDE3 else 3}, v5")
    e("s_lshl_b32 s30, s12, 1")
    e("s_add_u32 s30, s30, s29")
    e("s_lshl_b32 s30, s30, 6")
    e("v_add_u32 v5, s30, v5")
    e("s_nop 7")
    e("s_nop 3")
    for r in range(8):
        e(f"v_cvt_pk_bf16_f32 v{16+r}, v{ACC+2*r}, v{ACC+2*r+1}")
    if WIDE3:
        e("s_nop 1")
        for p in range(2):
            e(f"v_permlane32_swap_b32 v{16+4*p}, v{18+4*p}")
            e(f"v_permlane32_swap_b32 v{17+4*p}, v{19+4*p}")
        for p in range(2):
            e(f"buffer_store_dwordx4 {vr(16+4*p,4)}, v5, s[16:19], 0 offen offset:{32*p} {STM3}")
    else:
        for g in range(4):
            e(f"buffer_store_dwordx2 {vr(16+2*g,2)}, v5, s[16:19], 0 offen offset:{16*g} {STM3}")
    stamp_flush(2, 14, 4)
    dbg_end(2)
    e("s_endpgm")
    e("L_k3_loader:")
    e("v_lshrrev_b32 v9, 3, v2")
    e("v_and_b32 v10, 7, v2")
    e("v_bfe_u32 v11, v2, 4, 1")
    e("v_lshlrev_b32 v11, 2, v11")
    e("v_xor_b32 v10, v10, v11")
    e("v_lshlrev_b32 v9, 10, v9")
    e("v_lshl_add_u32 v9, v10, 4, v9")
    e("s_lshl_b32 s29, s12, 7")
    e("v_add_u32 v6, s29, v9")
    e(f"v_add_u32 v7, {8*1024-1024}, v6")
    e("s_waitcnt lgkmcnt(0)")
    srd(20, 4, 5, 0x80000)
    srd(24, 8, 9, WS_SIZE)
    e("s_lshl_b32 s36, s14, 11")
    e("s_lshl_b32 s37, s14, 16")
    e("s_lshl_b32 s30, s13, 11")
    e("s_add_u32 s37, s37, s30")
    e(f"s_add_u32 s37, s37, {hex(OB)}")
    e("s_lshl_b32 s38, s14, 14          ; W global w*16*1024")
    def issue(c):
        e(f"s_add_u32 s30, s36, {c*8192}")
        e("s_mov_b32 m0, s30")
        e(f"s_add_u32 s31, s37, {c*4*65536}")
        e("buffer_load_dwordx4 v5, s[24:27], s31 offen lds")
        e("buffer_load_dwordx4 v5, s[24:27], s31 offen offset:1024 lds")
        e(f"s_add_u32 s30, s36, {65536 + c*8192}")
        e("s_mov_b32 m0, s30")
        e(f"s_add_u32 s31, s38, {c*65536}")
        e("buffer_load_dwordx4 v6, s[20:23], s31 offen lds")
        e("buffer_load_dwordx4 v7, s[20:23], s31 offen offset:1024 lds")
    LA3 = int(os.environ.get('LA3', '4'))
    for c in range(LA3):
        issue(c)
    for c in range(8):
        nout = min(c+LA3-1, 7) - c
        e(f"s_waitcnt vmcnt({4*nout})")
        e("s_barrier")
        if c+LA3 <= 7:
            issue(c+LA3)
    e("L_k3_end:")
    e("s_endpgm")
    out.append("")

gen_k1()
gen_k2()
gen_k3()
txt = HEADER + "\n".join(out) + "\n" + '.section .rodata,"a"\n'
for n, v in (("qkv_kernel", 160), ("attn_kernel", 256), ("oproj_kernel", 80)):
    txt += ".p2align 6\n" + kd(n, v)
dst = sys.argv[1] if len(sys.argv) > 1 else "standalone__sliding_block__prompt.s"
open(dst, "w").write(txt)
```

```python
import sys, os

K2_LDS = 32768 + 64
K1_SLOT = 32768
K1_NSLOT = 5
PF3 = int(os.environ.get('PF3', '0'))
PF1 = int(os.environ.get('PF1', '0'))
MAP2 = int(os.environ.get('MAP2', '0'))
NL = int(os.environ.get('NL', '4'))
PK = int(os.environ.get('PK', '1'))
PFD = int(os.environ.get('PFD', '8'))
PFD0 = int(os.environ.get('PFD0', '2'))
STM = os.environ.get('STM', '')
STM2 = os.environ.get('STM2', '')
STM3 = os.environ.get('STM3', '')
ROT = int(os.environ.get('ROT', '1'))
MAP1 = int(os.environ.get('MAP1', '0'))
WIDE3 = int(os.environ.get('WIDE3', '1'))
LA = int(os.environ.get('LA', '3'))
HEADER = f"""; Kernarg layout for this problem (48 bytes, ptrs only, base s[0:1]):
; @launch kernel=qkv_kernel grid=(256,1,1) block=({256+64*NL},1,1) lds={K1_SLOT*K1_NSLOT}
; @launch kernel=attn_kernel grid=(256,1,1) block=(512,1,1) lds={K2_LDS}
; @launch kernel=oproj_kernel grid=(256,1,1) block=(512,1,1) lds=131072
.amdgcn_target "amdgcn-amd-amdhsa--gfx950"
.text
"""
QB = 0
KB = 0x200000
VB = 0x400000
OB = 0x800000
WS_SIZE = 0x1000000

out = []
def e(s=""):
    out.append("    " + s if s and not s.endswith(":") else s)

DBG = int(os.environ.get("DBG", "0"))
def kernel_begin(name):
    out.append(f".globl {name}")
    out.append(".p2align 8")
    out.append(f".type {name},@function")
    out.append(f"{name}:")
    if DBG:
        e("s_memrealtime s[96:97]")
        e("s_load_dwordx2 s[98:99], s[0:1], 32")
def dbg_end(kid):
    if not DBG: return
    e("s_waitcnt vmcnt(0)")
    e("s_memrealtime s[100:101]")
    e("s_waitcnt lgkmcnt(0)")
    e("s_cmp_lg_u32 s14, 0")
    e(f"s_cbranch_scc1 L_dbg_done{kid}")
    e("s_mov_b32 s92, 0")
    e("s_cmp_eq_u32 s2, 0")
    e(f"s_cbranch_scc1 L_dbg_go{kid}")
    e("s_mov_b32 s92, 8")
    e("s_cmp_lg_u32 s2, 200")
    e(f"s_cbranch_scc1 L_dbg_done{kid}")
    e(f"L_dbg_go{kid}:")
    e(f"s_add_u32 s92, s92, {0xE00000 + kid*16}")
    e("s_mov_b64 exec, 1")
    e("v_mov_b32 v1, 0")
    e("v_mov_b32 v2, s96")
    e("v_mov_b32 v3, s100")
    e(f"buffer_store_dwordx2 v[2:3], v1, s[24:27], s92 offen")
    if kid == 2:
        e("s_cmp_lg_u32 s2, 0")
        e(f"s_cbranch_scc1 L_dbg_done{kid}")
        e("s_mov_b64 exec, 0xffff")
        e("v_lshlrev_b32 v1, 2, v0")
        e("s_mov_b32 s92, 0xE00000")
        e("s_waitcnt vmcnt(0)")
        e("buffer_load_dword v2, v1, s[24:27], s92 offen sc0 sc1")
        e("s_mov_b32 s92, s98")
        e("s_and_b32 s93, s99, 0xffff")
        e("s_mov_b32 s94, 256")
        e("s_mov_b32 s95, 0x20000")
        e("s_waitcnt vmcnt(0)")
        e("buffer_store_dword v2, v1, s[92:95], 0 offen")
    e(f"L_dbg_done{kid}:")
    e("s_mov_b64 exec, -1")

def kd(name, vgpr, sgpr=102):
    return f""".amdhsa_kernel {name}
  .amdhsa_next_free_vgpr {vgpr}
  .amdhsa_next_free_sgpr {sgpr}
  .amdhsa_accum_offset {((vgpr+3)//4)*4}
  .amdhsa_group_segment_fixed_size 0
  .amdhsa_kernarg_size 48
  .amdhsa_user_sgpr_count 2
  .amdhsa_user_sgpr_kernarg_segment_ptr 1
  .amdhsa_system_sgpr_workgroup_id_x 1
.end_amdhsa_kernel
"""

STAMP = int(os.environ.get("STAMP", "0"))
EXP = int(os.environ.get("EXP", "0"))
STAMP_BASE = 0xC00000
STAMP_S = 90
stamp_n = [0]
def stamp():
    if not STAMP: return
    i = stamp_n[0]; stamp_n[0] += 1
    assert i < 6
    e(f"{'s_memrealtime' if STAMP==2 else 's_memtime'} s[{STAMP_S+2*i}:{STAMP_S+2*i+1}]")
def stamp_flush(kid, wave_sgpr, nw):
    if not STAMP: return
    e("s_waitcnt vmcnt(0)")
    stamp()
    n = stamp_n[0]; stamp_n[0] = 0
    e("s_waitcnt lgkmcnt(0)")
    e(f"s_mul_i32 s3, s2, {nw}")
    e(f"s_add_u32 s3, s3, s{wave_sgpr}")
    e("s_lshl_b32 s3, s3, 6")
    e(f"s_add_u32 s3, s3, {hex(STAMP_BASE + kid*0x40000)}")
    e("s_mov_b64 exec, 1")
    e("v_mov_b32 v1, 0")
    for i in range(n):
        e(f"v_mov_b32 v2, s{STAMP_S+2*i}")
        e(f"buffer_store_dword v2, v1, s[24:27], s3 offen offset:{4*i}")
    e("s_mov_b64 exec, -1")

def vr(a, n):
    return f"v[{a}:{a+n-1}]"

def srd(d, lo, hi, size):
    e(f"s_mov_b32 s{d}, s{lo}")
    e(f"s_and_b32 s{d+1}, s{hi}, 0xffff")
    e(f"s_mov_b32 s{d+2}, {hex(size)}")
    e(f"s_mov_b32 s{d+3}, 0x00020000")

def gen_k1():
    kernel_begin("qkv_kernel")
    e("s_cmp_ge_u32 s2, 256")
    e("s_cbranch_scc1 L_k1_end")
    e("s_load_dwordx4 s[4:7], s[0:1], 0")
    e("s_load_dwordx2 s[8:9], s[0:1], 40")
    e("s_and_b32 s10, s2, 7")
    e("s_lshr_b32 s11, s2, 3")
    if MAP1 == 0:
        e("s_and_b32 s12, s10, 1")
        e("s_lshl_b32 s12, s12, 2")
        e("s_and_b32 s13, s11, 3")
        e("s_add_u32 s12, s12, s13          ; nt (0..7)")
        e("s_lshr_b32 s13, s10, 1")
        e("s_lshl_b32 s13, s13, 3")
        e("s_lshr_b32 s14, s11, 2")
        e("s_add_u32 s13, s13, s14          ; mt (0..31)")
    elif MAP1 == 1:
        e("s_mov_b32 s12, s10")
        e("s_mov_b32 s13, s11")
    elif MAP1 == 2:
        e("s_and_b32 s12, s11, 7")
        e("s_lshr_b32 s13, s11, 3")
        e("s_lshl_b32 s13, s13, 3")
        e("s_add_u32 s13, s13, s10")
    e("v_lshrrev_b32 v1, 6, v0")
    e("v_and_b32 v2, 63, v0             ; lane")
    e("v_readfirstlane_b32 s39, v1      ; wave")
    e("v_and_b32 v3, 31, v2             ; l&31")
    e("v_lshrrev_b32 v4, 5, v2          ; h")
    e("s_and_b32 s14, s39, 3            ; w")
    e("s_lshl_b32 s15, s13, 6")
    e("s_cmp_ge_u32 s39, 4")
    e("s_cbranch_scc1 L_k1_loader")
    e("s_lshr_b32 s28, s14, 1           ; a")
    e("s_and_b32 s29, s14, 1            ; b")
    e("v_bfe_u32 v9, v2, 2, 2           ; r")
    e("v_lshl_add_u32 v10, v4, 3, v9    ; 8h+r")
    e("v_mul_u32_u24 v10, 384, v10")
    e("v_lshrrev_b32 v9, 1, v9")
    e("v_xor_b32 v9, s29, v9")
    e("v_lshl_add_u32 v10, v9, 6, v10")
    e("v_bfe_u32 v9, v2, 4, 1           ; g'")
    e("v_lshl_add_u32 v10, v9, 5, v10")
    e("v_and_b32 v9, 3, v2")
    e("v_lshl_add_u32 v20, v9, 3, v10")
    e("v_add_u32 v20, 0x2000, v20")
    e("v_bfe_u32 v9, v3, 1, 3           ; f")
    e("v_lshlrev_b32 v10, 7, v3")
    e("s_lshl_b32 s30, s28, 12")
    e("v_add_u32 v10, s30, v10")
    for k2 in range(4):
        e(f"v_add_u32 v11, {2*k2}, v4")
        e("v_xor_b32 v11, v11, v9")
        e(f"v_lshl_add_u32 v{21+k2}, v11, 4, v10")
    e("s_waitcnt lgkmcnt(0)")
    srd(24, 8, 9, WS_SIZE)
    stamp()
    if PF1 == 1:
        srd(16, 4, 5, 0x200000)
        srd(20, 6, 7, 0x180000)
        e("s_lshl_b32 s40, s11, 2")
        e("s_add_u32 s40, s40, s14          ; wid 0..127")
        e("s_lshr_b32 s41, s10, 1")
        e("s_lshl_b32 s41, s41, 19")
        e("s_lshl_b32 s42, s40, 12")
        e("s_add_u32 s41, s41, s42")
        e("v_lshlrev_b32 v40, 6, v2")
        e("buffer_load_dword v41, v40, s[16:19], s41 offen")
        e("v_lshrrev_b32 v40, 4, v2")
        e("v_mul_u32_u24 v40, 0xc00, v40")
        e("v_and_b32 v42, 7, v2")
        e("v_lshl_add_u32 v40, v42, 6, v40")
        e("v_bfe_u32 v42, v2, 3, 1")
        e("v_lshl_add_u32 v43, v42, 10, v40")
        e("s_mul_i32 s41, s40, 0x3000")
        e("s_and_b32 s42, s10, 1")
        e("s_lshl_b32 s42, s42, 9")
        e("s_add_u32 s41, s41, s42")
        e("buffer_load_dword v44, v43, s[20:23], s41 offen")
        e("buffer_load_dword v45, v40, s[20:23], s41 offen offset:2048")
    if PF1 == 2:
        srd(16, 4, 5, 0x200000)
        srd(20, 6, 7, 0x180000)
        e("s_lshl_b32 s40, s11, 2")
        e("s_add_u32 s40, s40, s14          ; wid 0..127")
        e("s_cmp_ge_u32 s40, 120")
        e("s_cbranch_scc1 L_pf_done")
        e("s_cmp_ge_u32 s40, 48")
        e("s_cbranch_scc1 L_pf_w")
        e("s_lshl_b32 s41, s40, 6")
        e("v_add_u32 v40, s41, v2")
        e("v_mul_u32_u24 v41, 0xaaab, v40")
        e("v_lshrrev_b32 v41, 18, v41       ; /6")
        e("v_mul_u32_u24 v42, 6, v41")
        e("v_sub_u32 v42, v40, v42")
        e("v_lshlrev_b32 v41, 10, v41")
        e("v_lshl_add_u32 v40, v42, 6, v41")
        e("s_lshr_b32 s41, s10, 1")
        e("s_lshl_b32 s41, s41, 19")
        e(f"s_sleep {PFD0}")
        e("buffer_load_dword v41, v40, s[16:19], s41 offen offset:256")
        e(f"s_sleep {PFD}")
        e("buffer_load_dword v42, v40, s[16:19], s41 offen offset:640")
        e("s_branch L_pf_done")
        e("L_pf_w:")
        e("s_sub_u32 s41, s40, 48")
        e("s_lshl_b32 s41, s41, 6")
        e("v_add_u32 v40, s41, v2")
        e("v_mul_u32_u24 v41, 0xaaab, v40")
        e("v_lshrrev_b32 v41, 20, v41       ; /24")
        e("v_mul_u32_u24 v42, 24, v41")
        e("v_sub_u32 v42, v40, v42")
        e("v_mul_u32_u24 v41, 0xc00, v41")
        e("v_lshrrev_b32 v43, 3, v42")
        e("v_lshl_add_u32 v41, v43, 10, v41")
        e("v_and_b32 v42, 7, v42")
        e("v_lshl_add_u32 v40, v42, 6, v41")
        e("s_and_b32 s42, s10, 1")
        e("s_lshl_b32 s42, s42, 9")
        e(f"s_add_u32 s41, s42, {128*3072}")
        e(f"s_add_u32 s42, s42, {320*3072}")
        e(f"s_sleep {PFD0}")
        e("buffer_load_dword v41, v40, s[20:23], s41 offen")
        e(f"s_sleep {PFD}")
        e("buffer_load_dword v42, v40, s[20:23], s42 offen")
        e("L_pf_done:")
    ACC = 64
    FR = 112
    AD = 26
    def setaddr(c):
        sl = (c % K1_NSLOT) * K1_SLOT
        for i in range(5):
            e(f"v_add_u32 v{AD+5*(c&1)+i}, {sl}, v{20+i}")
    def read_list(kk):
        b = FR + 16*(kk % 3)
        k2 = kk & 3
        ad = AD + 5*((kk//4) & 1)
        if EXP >= 2: return []
        L = [f"ds_read_b128 {vr(b,4)}, v{ad+1+k2}"]
        for j in range(3):
            for ee in range(2):
                L.append(f"ds_read_b64_tr_b16 {vr(b+4+4*j+2*ee,2)}, v{ad} offset:{k2*6144+ee*1536+j*128}")
        return L
    setaddr(0)
    e("s_barrier")
    stamp()
    for r in read_list(0): e(r)
    for r in read_list(1): e(r)
    for kk in range(32):
        nxt = []
        if kk+2 < 32:
            if (kk+2) % 4 == 0:
                c = (kk+2)//4
                setaddr(c)
                e("s_barrier")
                if c == 6: stamp()
            nxt = read_list(kk+2)
        e(f"s_waitcnt lgkmcnt({7 if kk+1 < 32 else 0})")
        b = FR + 16*(kk % 3)
        xf = vr(b, 4)
        for j in range(3):
            acc = vr(ACC+16*j, 16)
            cin = "0" if kk == 0 else acc
            wf = vr(b+4+4*j, 4)
            if EXP >= 2: pass
            elif j < 2:
                e(f"v_mfma_f32_32x32x16_bf16 {acc}, {wf}, {xf}, {cin}")
            else:
                e(f"v_mfma_f32_32x32x16_bf16 {acc}, {xf}, {wf}, {cin}")
            part = nxt[[0,3,5][j]:[3,5,7][j]]
            for r in part: e(r)
    stamp()
    e("v_lshlrev_b32 v5, 4, v2")
    e("s_lshl_b32 s30, s12, 1")
    e("s_add_u32 s30, s30, s29")
    e("s_lshl_b32 s30, s30, 17          ; head0*65536")
    e("s_lshl_b32 s31, s13, 1")
    e("s_add_u32 s31, s31, s28")
    e("s_lshl_b32 s31, s31, 10          ; tile*1024")
    e("s_add_u32 s30, s30, s31")
    e("s_add_u32 s31, s30, 0x10000")
    e(f"s_add_u32 s32, s30, {hex(KB)}")
    e(f"s_add_u32 s33, s31, {hex(KB)}")
    e("v_lshrrev_b32 v9, 4, v3")
    e("v_lshlrev_b32 v6, 16, v9")
    e("v_lshl_add_u32 v6, v4, 8, v6")
    e("v_and_b32 v9, 15, v3")
    e("v_lshl_add_u32 v6, v9, 4, v6")
    e(f"s_add_u32 s34, s30, {hex(VB)}")
    e("s_nop 7")
    P = 8
    for j in range(3):
        for r in range(8):
            e(f"v_cvt_pk_bf16_f32 v{P+8*j+r}, v{ACC+16*j+2*r}, v{ACC+16*j+2*r+1}")
    e(f"buffer_store_dwordx4 {vr(P,4)}, v5, s[24:27], s30 offen {STM}")
    e(f"buffer_store_dwordx4 {vr(P+4,4)}, v5, s[24:27], s31 offen {STM}")
    e(f"buffer_store_dwordx4 {vr(P+8,4)}, v5, s[24:27], s32 offen {STM}")
    e(f"buffer_store_dwordx4 {vr(P+12,4)}, v5, s[24:27], s33 offen {STM}")
    e(f"buffer_store_dwordx4 {vr(P+16,4)}, v6, s[24:27], s34 offen {STM}")
    e(f"buffer_store_dwordx4 {vr(P+20,4)}, v6, s[24:27], s34 offen offset:512 {STM}")
    stamp_flush(0, 14, 4)
    dbg_end(0)
    e("s_endpgm")
    e("L_k1_loader:")
    RPL = 64 // NL
    NX = RPL // 8
    NP = RPL // 8
    e("s_sub_u32 s14, s39, 4            ; L")
    e(f"s_mul_i32 s28, s14, {RPL}")
    e("s_add_u32 s30, s15, s28")
    e("v_lshrrev_b32 v9, 3, v2")
    e("v_add_u32 v9, s30, v9")
    e("v_lshlrev_b32 v9, 10, v9")
    e("v_and_b32 v10, 7, v2             ; pos")
    e("v_lshrrev_b32 v11, 4, v2")
    e("s_lshr_b32 s30, s28, 1")
    e("v_add_u32 v11, s30, v11")
    for a_ in range(NX):
        e(f"v_add_u32 v12, {4*a_}, v11")
        e("v_and_b32 v12, 7, v12")
        e("v_xor_b32 v12, v12, v10")
        e("v_lshl_add_u32 v12, v12, 4, v9")
        e(f"v_add_u32 v{16+a_}, {8*a_*1024 - a_*1024}, v12")
    e("s_lshl_b32 s29, s12, 7           ; 128*nt")
    for j in range(3):
        e(f"v_add_u32 v9, {64*j}, v2")
        e("v_mul_u32_u24 v10, 0xaaab, v9")
        e("v_lshrrev_b32 v10, 20, v10       ; row")
        e("v_mul_u32_u24 v11, 24, v10")
        e("v_sub_u32 v11, v9, v11           ; pos")
        e("v_lshrrev_b32 v12, 3, v11        ; seg")
        e("v_and_b32 v11, 7, v11")
        e("v_bfe_u32 v13, v10, 1, 1")
        e("v_lshlrev_b32 v13, 2, v13")
        e("v_xor_b32 v11, v11, v13")
        e("v_mul_u32_u24 v10, 0xc00, v10    ; row*3072")
        e("v_lshl_add_u32 v10, v12, 10, v10")
        e("v_lshl_add_u32 v10, v11, 4, v10")
        e("v_add_u32 v10, s29, v10")
        if j:
            e(f"v_subrev_u32 v{6+j}, {1024*j}, v10")
        else:
            e(f"v_mov_b32 v6, v10")
    e("s_waitcnt lgkmcnt(0)")
    srd(16, 4, 5, 0x200000)
    srd(20, 6, 7, 0x180000)
    e("s_lshl_b32 s36, s28, 7")
    e("s_mul_i32 s37, s28, 384")
    e("s_add_u32 s37, s37, 0x2000")
    e("s_mul_i32 s38, s28, 0xc00        ; W global")
    if ROT:
        e("s_lshl_b32 s43, s12, 1")
        e("s_add_u32 s43, s43, s13")
    else:
        e("s_mov_b32 s43, 0")
    def issue(c):
        if EXP == 1: return
        sl = (c % K1_NSLOT) * K1_SLOT
        e(f"s_add_u32 s30, s36, {sl}")
        e("s_mov_b32 m0, s30")
        e(f"s_add_u32 s44, s43, {c}")
        e("s_and_b32 s44, s44, 7")
        e("s_lshl_b32 s31, s44, 7")
        for a_ in range(NX):
            e(f"buffer_load_dwordx4 v{16+a_}, s[16:19], s31 offen offset:{1024*a_} lds")
        e(f"s_mul_i32 s44, s44, {64*3072}")
        e("s_add_u32 s44, s44, s38")
        for pp in range(NP):
            e(f"s_add_u32 s30, s37, {sl + pp*3072}")
            e("s_mov_b32 m0, s30")
            e(f"s_add_u32 s31, s44, {pp*8*3072}")
            for j in range(3):
                e(f"buffer_load_dwordx4 v{6+j}, s[20:23], s31 offen offset:{1024*j} lds")
    per = NX + 3*NP
    for c in range(LA):
        issue(c)
    for c in range(8):
        nout = min(c+LA-1, 7) - c
        e(f"s_waitcnt vmcnt({per*nout})")
        e("s_barrier")
        if c+LA <= 7:
            issue(c+LA)
    e("L_k1_end:")
    e("s_endpgm")
    out.append("")

def gen_k2():
    kernel_begin("attn_kernel")
    e("s_cmp_ge_u32 s2, 256")
    e("s_cbranch_scc1 L_k2_end")
    e("s_load_dwordx2 s[8:9], s[0:1], 40")
    e("s_load_dwordx2 s[4:5], s[0:1], 16")
    e("s_and_b32 s10, s2, 7")
    e("s_lshr_b32 s11, s2, 3")
    e("s_mov_b32 s64, s11")
    if MAP2:
        e("s_and_b32 s12, s10, 1")
        e("s_lshl_b32 s12, s12, 4")
        e("s_and_b32 s13, s11, 15")
        e("s_add_u32 s12, s12, s13          ; head")
        e("s_lshr_b32 s11, s11, 4")
        e("s_and_b32 s13, s10, 6")
        e("s_add_u32 s11, s11, s13          ; j")
    else:
        e("s_lshl_b32 s12, s10, 2")
        e("s_and_b32 s13, s11, 3")
        e("s_add_u32 s12, s12, s13          ; head")
        e("s_lshr_b32 s11, s11, 2           ; j")
    e("v_lshrrev_b32 v1, 6, v0")
    e("v_and_b32 v2, 63, v0             ; lane")
    e("v_readfirstlane_b32 s14, v1      ; wave")
    e("v_and_b32 v3, 31, v2             ; l&31")
    e("v_lshrrev_b32 v4, 5, v2          ; h")
    e("s_lshl_b32 s13, s11, 3")
    e("s_add_u32 s13, s13, s14          ; b")
    e("v_lshlrev_b32 v5, 4, v2          ; lane*16")
    e("s_lshl_b32 s15, s12, 16          ; head*65536")
    e("s_lshl_b32 s16, s13, 10          ; b*1024")
    e("s_add_u32 s16, s16, s15")
    e("s_lshl_b32 s17, s11, 3")
    e("s_lshl_b32 s18, s14, 1")
    e("s_add_u32 s17, s17, s18")
    e("s_sub_u32 s17, s17, 8")
    e("s_max_i32 s17, s17, 0")
    e("s_lshl_b32 s19, s17, 10")
    e("s_add_u32 s19, s19, s15")
    e(f"s_add_u32 s20, s19, {hex(KB)}")
    e(f"s_add_u32 s21, s19, {hex(VB)}")
    e("s_lshl_b32 s22, s14, 11")
    e("s_add_u32 s23, s22, 0x4000")
    e("s_waitcnt lgkmcnt(0)")
    srd(24, 8, 9, WS_SIZE)
    S = 16
    KF = 160
    VF = 196
    QF = 212
    OA = 216
    stamp()
    e(f"buffer_load_dwordx4 {vr(QF,4)}, v5, s[24:27], s16 offen")
    e("s_mov_b32 m0, s22")
    e("s_nop 0")
    e("buffer_load_dwordx4 v5, s[24:27], s20 offen lds")
    e("buffer_load_dwordx4 v5, s[24:27], s20 offen offset:1024 lds")
    e("s_mov_b32 m0, s23")
    e("s_nop 0")
    e("buffer_load_dwordx4 v5, s[24:27], s21 offen lds")
    e("buffer_load_dwordx4 v5, s[24:27], s21 offen offset:1024 lds")
    e("v_mov_b32 v8, 0x3f803f80")
    e("v_mov_b32 v9, 0x3f803f80")
    e("v_mov_b32 v10, 0x8000")
    e("ds_write_b64 v10, v[8:9]")
    e("ds_write_b64 v10, v[8:9] offset:8")
    e("s_lshl_b32 s18, s14, 10")
    e("v_add_u32 v6, s18, v5")
    e("v_lshlrev_b32 v7, 8, v4")
    e("v_lshl_add_u32 v7, v3, 4, v7")
    e("v_add_u32 v7, s18, v7")
    e("v_add_u32 v7, 0x4000, v7")
    e("v_cmp_gt_u32 vcc, 16, v3")
    e("v_mov_b32 v11, 0x200")
    e("s_nop 0")
    e("v_cndmask_b32 v7, v10, v7, vcc")
    e("v_cndmask_b32 v14, 0, v11, vcc   ; step")
    e(f"s_add_u32 s17, s16, {hex(OB)}    ; O soffset")
    e("v_lshlrev_b32 v8, 2, v4")
    e("v_sub_u32 v8, v3, v8")
    for i in range(16):
        ci = (i & 3) + 8*(i >> 2)
        e(f"v_cmp_le_i32 s[{32+2*i}:{33+2*i}], {ci}, v8")
    e("v_mov_b32 v15, 0x3eb8aa3b        ; 0.25*log2(e)")
    e("v_mov_b32 v240, 0x3eb8aa3b")
    e("v_mov_b32 v241, 0x3eb8aa3b")
    e("v_mov_b32 v8, 0xffff")
    e("v_mov_b32 v9, 0xffff0000")
    for r in range(8):
        e(f"v_cndmask_b32 v{232+r}, 0, v8, s[{32+4*r}:{33+4*r}]")
        e(f"v_cndmask_b32 v11, 0, v9, s[{34+4*r}:{35+4*r}]")
        e(f"v_or_b32 v{232+r}, v{232+r}, v11")
    if PF3:
        srd(28, 4, 5, 0x80000)
        e("s_lshl_b32 s64, s64, 3")
        e("s_add_u32 s64, s64, s14")
        e("s_lshl_b32 s64, s64, 11")
        e("v_lshlrev_b32 v253, 5, v2")
    e(f"s_waitcnt vmcnt(0) lgkmcnt(0)")
    e("s_barrier")
    stamp()
    if PF3:
        e("buffer_load_dword v252, v253, s[28:31], s64 offen")
    for t in range(9):
        e(f"ds_read_b128 {vr(KF+4*t,4)}, v6 offset:{1024*t}")
    for t in range(9):
        e(f"s_waitcnt lgkmcnt({8-t})")
        e(f"v_mfma_f32_32x32x16_bf16 {vr(S+16*t,16)}, {vr(KF+4*t,4)}, {vr(QF,4)}, 0")
    e("s_nop 7")
    e("s_nop 4")
    e("s_cmp_ge_u32 s13, 8")
    e("s_cbranch_scc1 L_k2_fix_done")
    e("v_mov_b32 v9, 0xcf800000")
    for t in range(8):
        for i in range(16):
            e(f"v_mov_b32 v{S+16*t+i}, v9")
        if t < 7:
            e(f"s_cmp_ge_u32 s13, {7-t}")
            e("s_cbranch_scc1 L_k2_fix_done")
    e("L_k2_fix_done:")
    for i in range(16):
        e(f"v_cndmask_b32 v{S+128+i}, v{S+i}, v{S+128+i}, s[{32+2*i}:{33+2*i}]")
    vals = [S+16+i for i in range(128)]
    ch = [10, 11, 12, 13]
    for c in range(4):
        sub = vals[32*c:32*c+32]
        e(f"v_max3_f32 v{ch[c]}, v{sub[0]}, v{sub[1]}, v{sub[2]}")
    for step in range(14):
        for c in range(4):
            sub = vals[32*c:32*c+32]
            e(f"v_max3_f32 v{ch[c]}, v{sub[3+2*step]}, v{sub[4+2*step]}, v{ch[c]}")
    for c in range(4):
        sub = vals[32*c:32*c+32]
        e(f"v_max_f32 v{ch[c]}, v{sub[31]}, v{ch[c]}")
    e("v_max3_f32 v10, v10, v11, v12")
    e("v_max_f32 v10, v10, v13")
    e("v_mov_b32 v11, v10")
    e("s_nop 1")
    e("v_permlane32_swap_b32 v10, v11")
    e("v_max_f32 v10, v10, v11")
    e("v_mul_f32 v10, v15, v10          ; m*c")
    e("v_mov_b32 v242, v10")
    e("v_mov_b32 v243, v10")
    stamp()
    def softmax(t):
        base = S+16*t
        if PK:
            for i in range(0, 16, 2):
                e(f"v_pk_fma_f32 {vr(base+i,2)}, {vr(base+i,2)}, v[240:241], v[242:243] neg_lo:[0,0,1] neg_hi:[0,0,1]")
        else:
            for i in range(16):
                e(f"v_fma_f32 v{base+i}, v{base+i}, v15, -v10")
        for i in range(16):
            e(f"v_exp_f32 v{base+i}, v{base+i}")
        for r in range(8):
            e(f"v_cvt_pk_bf16_f32 v{base+r}, v{base+2*r}, v{base+2*r+1}")
        if t == 8:
            for r in range(8):
                e(f"v_and_b32 v{S+8+r}, v{base+r}, v{232+r}")
            for r in range(8):
                e(f"v_xor_b32 v{S+r}, v{base+r}, v{S+8+r}")
            for r in range(8):
                e(f"v_mov_b32 v{base+r}, v{S+8+r}")
    def vread(t):
        b = VF + 8*(t & 1)
        for m in range(2):
            e(f"ds_read_b128 {vr(b+4*m,4)}, v7")
            e("v_add_u32 v7, v7, v14")
    vread(0)
    softmax(8)
    for t in range(9):
        if t+1 < 9:
            vread(t+1)
        if 1 <= t+1 <= 7:
            softmax(t+1)
        e(f"s_waitcnt lgkmcnt({2 if t+1 < 9 else 0})")
        b = VF + 8*(t & 1)
        base = S+16*t
        for m in range(2):
            cin = "0" if (t == 0 and m == 0) else vr(OA, 16)
            e(f"v_mfma_f32_32x32x16_bf16 {vr(OA,16)}, {vr(b+4*m,4)}, {vr(base+4*m,4)}, {cin}")
    stamp()
    e("s_nop 7")
    e("s_nop 7")
    e(f"v_rcp_f32 v10, v{OA+8}")
    e("s_nop 0")
    for i in range(8):
        e(f"v_mul_f32 v{OA+i}, v10, v{OA+i}")
    for r in range(4):
        e(f"v_cvt_pk_bf16_f32 v{16+r}, v{OA+2*r}, v{OA+2*r+1}")
    e(f"buffer_store_dwordx4 v[16:19], v5, s[24:27], s17 offen {STM2}")
    stamp_flush(1, 14, 8)
    dbg_end(1)
    e("L_k2_end:")
    e("s_endpgm")
    out.append("")

def gen_k3():
    kernel_begin("oproj_kernel")
    e("s_cmp_ge_u32 s2, 256")
    e("s_cbranch_scc1 L_k3_end")
    e("s_load_dwordx4 s[4:7], s[0:1], 16")
    e("s_load_dwordx2 s[8:9], s[0:1], 40")
    e("s_and_b32 s10, s2, 7")
    e("s_lshr_b32 s11, s2, 3")
    if MAP2:
        e("s_lshr_b32 s13, s10, 1")
        e("s_lshl_b32 s13, s13, 3")
        e("s_and_b32 s12, s11, 7")
        e("s_add_u32 s13, s13, s12          ; mt (0..31)")
        e("s_lshr_b32 s12, s11, 3")
        e("s_and_b32 s11, s10, 1")
        e("s_lshl_b32 s11, s11, 2")
        e("s_add_u32 s12, s12, s11          ; nt (0..7)")
    else:
        e("s_lshl_b32 s13, s10, 2")
        e("s_and_b32 s12, s11, 3")
        e("s_add_u32 s13, s13, s12          ; mt (0..31)")
        e("s_lshr_b32 s12, s11, 2           ; nt (0..7)")
    e("v_lshrrev_b32 v1, 6, v0")
    e("v_and_b32 v2, 63, v0             ; lane")
    e("v_readfirstlane_b32 s39, v1      ; wave")
    e("v_and_b32 v3, 31, v2             ; l&31")
    e("v_lshrrev_b32 v4, 5, v2          ; h")
    e("s_and_b32 s14, s39, 3")
    e("v_lshlrev_b32 v5, 4, v2          ; lane*16")
    e("s_cmp_ge_u32 s39, 4")
    e("s_cbranch_scc1 L_k3_loader")
    e("s_lshr_b32 s28, s14, 1           ; a")
    e("s_and_b32 s29, s14, 1            ; b")
    e("s_lshl_b32 s30, s28, 10")
    e("v_add_u32 v12, s30, v5")
    e("v_bfe_u32 v9, v2, 2, 2           ; r")
    e("v_lshl_add_u32 v10, v4, 2, v9    ; 4h+r")
    e("v_lshlrev_b32 v10, 7, v10")
    e("v_lshrrev_b32 v9, 1, v9")
    e("v_xor_b32 v9, s29, v9")
    e("v_lshl_add_u32 v10, v9, 6, v10")
    e("v_bfe_u32 v9, v2, 4, 1           ; g'")
    e("v_lshl_add_u32 v10, v9, 5, v10")
    e("v_and_b32 v9, 3, v2")
    e("v_lshl_add_u32 v13, v9, 3, v10")
    e("v_add_u32 v13, 0x10000, v13")
    e("v_add_u32 v14, 0x8000, v13")
    e("v_add_u32 v15, 0x8000, v12")
    e("s_waitcnt lgkmcnt(0)")
    srd(16, 6, 7, 0x200000)
    srd(24, 8, 9, WS_SIZE)
    ACC = 64
    FR = 32
    def read_list(kk):
        b = FR + 8*(kk % 3)
        k2 = kk & 15
        L = [f"ds_read_b128 {vr(b,4)}, {'v12' if kk < 16 else 'v15'} offset:{k2*2048}"]
        for ee in range(2):
            L.append(f"ds_read_b64_tr_b16 {vr(b+4+2*ee,2)}, {'v13' if kk < 16 else 'v14'} offset:{k2*2048+ee*1024}")
        return L
    stamp()
    e("s_barrier")
    stamp()
    for r in read_list(0): e(r)
    for r in read_list(1): e(r)
    for kk in range(32):
        nxt = []
        if kk+2 < 32:
            if (kk+2) % 4 == 0:
                e("s_barrier")
                if kk+2 == 24: stamp()
            nxt = read_list(kk+2)
        e(f"s_waitcnt lgkmcnt({3 if kk+1 < 32 else 0})")
        b = FR + 8*(kk % 3)
        acc = vr(ACC, 16)
        cin = "0" if kk == 0 else acc
        e(f"v_mfma_f32_32x32x16_bf16 {acc}, {vr(b+4,4)}, {vr(b,4)}, {cin}")
        for r in nxt: e(r)
    stamp()
    if WIDE3 == 2:
        e("s_nop 7")
        e("s_nop 7")
        for r in range(8):
            e(f"v_cvt_pk_bf16_f32 v{16+r}, v{ACC+2*r}, v{ACC+2*r+1}")
        e("s_nop 1")
        for p in range(2):
            e(f"v_permlane32_swap_b32 v{16+4*p}, v{18+4*p}")
            e(f"v_permlane32_swap_b32 v{17+4*p}, v{19+4*p}")
        e("s_lshl_b32 s30, s28, 5")
        e("v_add_u32 v6, s30, v3")
        e("v_mul_u32_u24 v6, 144, v6")
        e("v_lshl_add_u32 v6, v4, 4, v6")
        e("s_lshl_b32 s30, s29, 6")
        e("v_add_u32 v6, s30, v6")
        e("s_barrier")
        e("ds_write_b128 v6, v[16:19]")
        e("ds_write_b128 v6, v[20:23] offset:32")
        e("v_lshrrev_b32 v7, 3, v2")
        e("s_lshl_b32 s30, s14, 4")
        e("v_add_u32 v7, s30, v7")
        e("v_and_b32 v8, 7, v2")
        e("v_mul_u32_u24 v9, 144, v7")
        e("v_lshl_add_u32 v9, v8, 4, v9")
        e("s_lshl_b32 s30, s13, 6")
        e("v_add_u32 v7, s30, v7")
        e("v_lshlrev_b32 v7, 10, v7")
        e("v_lshl_add_u32 v7, v8, 4, v7")
        e("s_lshl_b32 s30, s12, 7")
        e("s_add_u32 s31, s30, 0x2000")
        e("s_waitcnt lgkmcnt(0)")
        e("s_barrier")
        e("ds_read_b128 v[24:27], v9")
        e(f"ds_read_b128 v[28:31], v9 offset:{8*144}")
        e("s_waitcnt lgkmcnt(1)")
        e(f"buffer_store_dwordx4 v[24:27], v7, s[16:19], s30 offen {STM3}")
        e("s_waitcnt lgkmcnt(0)")
        e(f"buffer_store_dwordx4 v[28:31], v7, s[16:19], s31 offen {STM3}")
    else:
        e("s_lshl_b32 s30, s13, 1")
        e("s_add_u32 s30, s30, s28")
        e("s_lshl_b32 s30, s30, 5")
        e("v_add_u32 v5, s30, v3")
        e("v_lshlrev_b32 v5, 10, v5")
        e(f"v_lshl_add_u32 v5, v4, {4 if WIDE3 else 3}, v5")
        e("s_lshl_b32 s30, s12, 1")
        e("s_add_u32 s30, s30, s29")
        e("s_lshl_b32 s30, s30, 6")
        e("v_add_u32 v5, s30, v5")
        e("s_nop 7")
        e("s_nop 3")
        for r in range(8):
            e(f"v_cvt_pk_bf16_f32 v{16+r}, v{ACC+2*r}, v{ACC+2*r+1}")
        if WIDE3:
            e("s_nop 1")
            for p in range(2):
                e(f"v_permlane32_swap_b32 v{16+4*p}, v{18+4*p}")
                e(f"v_permlane32_swap_b32 v{17+4*p}, v{19+4*p}")
            for p in range(2):
                e(f"buffer_store_dwordx4 {vr(16+4*p,4)}, v5, s[16:19], 0 offen offset:{32*p} {STM3}")
        else:
            for g in range(4):
                e(f"buffer_store_dwordx2 {vr(16+2*g,2)}, v5, s[16:19], 0 offen offset:{16*g} {STM3}")
    stamp_flush(2, 14, 4)
    dbg_end(2)
    e("s_endpgm")
    e("L_k3_loader:")
    e("v_lshrrev_b32 v9, 3, v2")
    e("v_and_b32 v10, 7, v2")
    e("v_bfe_u32 v11, v2, 4, 1")
    e("v_lshlrev_b32 v11, 2, v11")
    e("v_xor_b32 v10, v10, v11")
    e("v_lshlrev_b32 v9, 10, v9")
    e("v_lshl_add_u32 v9, v10, 4, v9")
    e("s_lshl_b32 s29, s12, 7")
    e("v_add_u32 v6, s29, v9")
    e(f"v_add_u32 v7, {8*1024-1024}, v6")
    e("s_waitcnt lgkmcnt(0)")
    srd(20, 4, 5, 0x80000)
    srd(24, 8, 9, WS_SIZE)
    e("s_lshl_b32 s36, s14, 11")
    e("s_lshl_b32 s37, s14, 16")
    e("s_lshl_b32 s30, s13, 11")
    e("s_add_u32 s37, s37, s30")
    e(f"s_add_u32 s37, s37, {hex(OB)}")
    e("s_lshl_b32 s38, s14, 14          ; W global w*16*1024")
    def issue(c):
        e(f"s_add_u32 s30, s36, {c*8192}")
        e("s_mov_b32 m0, s30")
        e(f"s_add_u32 s31, s37, {c*4*65536}")
        e("buffer_load_dwordx4 v5, s[24:27], s31 offen lds")
        e("buffer_load_dwordx4 v5, s[24:27], s31 offen offset:1024 lds")
        e(f"s_add_u32 s30, s36, {65536 + c*8192}")
        e("s_mov_b32 m0, s30")
        e(f"s_add_u32 s31, s38, {c*65536}")
        e("buffer_load_dwordx4 v6, s[20:23], s31 offen lds")
        e("buffer_load_dwordx4 v7, s[20:23], s31 offen offset:1024 lds")
    LA3 = int(os.environ.get('LA3', '4'))
    for c in range(LA3):
        issue(c)
    for c in range(8):
        nout = min(c+LA3-1, 7) - c
        e(f"s_waitcnt vmcnt({4*nout})")
        e("s_barrier")
        if c+LA3 <= 7:
            issue(c+LA3)
    e("L_k3_end:")
    e("s_endpgm")
    out.append("")

gen_k1()
gen_k2()
gen_k3()
txt = HEADER + "\n".join(out) + "\n" + '.section .rodata,"a"\n'
for n, v in (("qkv_kernel", 160), ("attn_kernel", 256), ("oproj_kernel", 80)):
    txt += ".p2align 6\n" + kd(n, v)
dst = sys.argv[1] if len(sys.argv) > 1 else "standalone__sliding_block__prompt.s"
open(dst, "w").write(txt)
```

```python
import sys, os

K2_LDS = 32768 + 64 + 1536
K1_SLOT = 32768
K1_NSLOT = 5
PF3 = int(os.environ.get('PF3', '0'))
PF1 = int(os.environ.get('PF1', '0'))
MAP2 = int(os.environ.get('MAP2', '0'))
NL = int(os.environ.get('NL', '4'))
PK = int(os.environ.get('PK', '1'))
PFD = int(os.environ.get('PFD', '8'))
PFD0 = int(os.environ.get('PFD0', '2'))
STM = os.environ.get('STM', '')
STM2 = os.environ.get('STM2', '')
STM3 = os.environ.get('STM3', '')
ROT = int(os.environ.get('ROT', '1'))
MAP1 = int(os.environ.get('MAP1', '0'))
WIDE3 = int(os.environ.get('WIDE3', '1'))
INJ = os.environ.get('INJ', '')
INJALL = os.environ.get('INJALL', '')
LA = int(os.environ.get('LA', '3'))
HEADER = f"""; Kernarg layout for this problem (48 bytes, ptrs only, base s[0:1]):
; @launch kernel=qkv_kernel grid=(256,1,1) block=({256+64*NL},1,1) lds={K1_SLOT*K1_NSLOT}
; @launch kernel=attn_kernel grid=(256,1,1) block=(512,1,1) lds={K2_LDS}
; @launch kernel=oproj_kernel grid=(256,1,1) block=(512,1,1) lds=131072
.amdgcn_target "amdgcn-amd-amdhsa--gfx950"
.text
"""
QB = 0
KB = 0x200000
VB = 0x400000
OB = 0x800000
WS_SIZE = 0x1000000

out = []
def e(s=""):
    out.append("    " + s if s and not s.endswith(":") else s)

DBG = int(os.environ.get("DBG", "0"))
def kernel_begin(name):
    out.append(f".globl {name}")
    out.append(".p2align 8")
    out.append(f".type {name},@function")
    out.append(f"{name}:")
    if DBG:
        e("s_memrealtime s[96:97]")
        e("s_load_dwordx2 s[98:99], s[0:1], 32")
def dbg_end(kid):
    if not DBG: return
    e("s_waitcnt vmcnt(0)")
    e("s_memrealtime s[100:101]")
    e("s_waitcnt lgkmcnt(0)")
    e("s_cmp_lg_u32 s14, 0")
    e(f"s_cbranch_scc1 L_dbg_done{kid}")
    e("s_mov_b32 s92, 0")
    e("s_cmp_eq_u32 s2, 0")
    e(f"s_cbranch_scc1 L_dbg_go{kid}")
    e("s_mov_b32 s92, 8")
    e("s_cmp_lg_u32 s2, 200")
    e(f"s_cbranch_scc1 L_dbg_done{kid}")
    e(f"L_dbg_go{kid}:")
    e(f"s_add_u32 s92, s92, {0xE00000 + kid*16}")
    e("s_mov_b64 exec, 1")
    e("v_mov_b32 v1, 0")
    e("v_mov_b32 v2, s96")
    e("v_mov_b32 v3, s100")
    e(f"buffer_store_dwordx2 v[2:3], v1, s[24:27], s92 offen")
    if kid == 2:
        e("s_cmp_lg_u32 s2, 0")
        e(f"s_cbranch_scc1 L_dbg_done{kid}")
        e("s_mov_b64 exec, 0xffff")
        e("v_lshlrev_b32 v1, 2, v0")
        e("s_mov_b32 s92, 0xE00000")
        e("s_waitcnt vmcnt(0)")
        e("buffer_load_dword v2, v1, s[24:27], s92 offen sc0 sc1")
        e("s_mov_b32 s92, s98")
        e("s_and_b32 s93, s99, 0xffff")
        e("s_mov_b32 s94, 256")
        e("s_mov_b32 s95, 0x20000")
        e("s_waitcnt vmcnt(0)")
        e("buffer_store_dword v2, v1, s[92:95], 0 offen")
    e(f"L_dbg_done{kid}:")
    e("s_mov_b64 exec, -1")

def kd(name, vgpr, sgpr=102):
    return f""".amdhsa_kernel {name}
  .amdhsa_next_free_vgpr {vgpr}
  .amdhsa_next_free_sgpr {sgpr}
  .amdhsa_accum_offset {((vgpr+3)//4)*4}
  .amdhsa_group_segment_fixed_size 0
  .amdhsa_kernarg_size 48
  .amdhsa_user_sgpr_count 2
  .amdhsa_user_sgpr_kernarg_segment_ptr 1
  .amdhsa_system_sgpr_workgroup_id_x 1
.end_amdhsa_kernel
"""

STAMP = int(os.environ.get("STAMP", "0"))
EXP = int(os.environ.get("EXP", "0"))
STAMP_BASE = 0xC00000
STAMP_S = 90
stamp_n = [0]
def stamp():
    if not STAMP: return
    i = stamp_n[0]; stamp_n[0] += 1
    assert i < 6
    e(f"{'s_memrealtime' if STAMP==2 else 's_memtime'} s[{STAMP_S+2*i}:{STAMP_S+2*i+1}]")
def stamp_flush(kid, wave_sgpr, nw):
    if not STAMP: return
    e("s_waitcnt vmcnt(0)")
    stamp()
    n = stamp_n[0]; stamp_n[0] = 0
    e("s_waitcnt lgkmcnt(0)")
    e(f"s_mul_i32 s3, s2, {nw}")
    e(f"s_add_u32 s3, s3, s{wave_sgpr}")
    e("s_lshl_b32 s3, s3, 6")
    e(f"s_add_u32 s3, s3, {hex(STAMP_BASE + kid*0x40000)}")
    e("s_mov_b64 exec, 1")
    e("v_mov_b32 v1, 0")
    for i in range(n):
        e(f"v_mov_b32 v2, s{STAMP_S+2*i}")
        e(f"buffer_store_dword v2, v1, s[24:27], s3 offen offset:{4*i}")
    e("s_mov_b64 exec, -1")

def vr(a, n):
    return f"v[{a}:{a+n-1}]"

def srd(d, lo, hi, size):
    e(f"s_mov_b32 s{d}, s{lo}")
    e(f"s_and_b32 s{d+1}, s{hi}, 0xffff")
    e(f"s_mov_b32 s{d+2}, {hex(size)}")
    e(f"s_mov_b32 s{d+3}, 0x00020000")

def gen_k1():
    kernel_begin("qkv_kernel")
    e("s_cmp_ge_u32 s2, 256")
    e("s_cbranch_scc1 L_k1_end")
    e("s_load_dwordx4 s[4:7], s[0:1], 0")
    e("s_load_dwordx2 s[8:9], s[0:1], 40")
    e("s_and_b32 s10, s2, 7")
    e("s_lshr_b32 s11, s2, 3")
    if MAP1 == 0:
        e("s_and_b32 s12, s10, 1")
        e("s_lshl_b32 s12, s12, 2")
        e("s_and_b32 s13, s11, 3")
        e("s_add_u32 s12, s12, s13          ; nt (0..7)")
        e("s_lshr_b32 s13, s10, 1")
        e("s_lshl_b32 s13, s13, 3")
        e("s_lshr_b32 s14, s11, 2")
        e("s_add_u32 s13, s13, s14          ; mt (0..31)")
    elif MAP1 == 1:
        e("s_mov_b32 s12, s10")
        e("s_mov_b32 s13, s11")
    elif MAP1 == 2:
        e("s_and_b32 s12, s11, 7")
        e("s_lshr_b32 s13, s11, 3")
        e("s_lshl_b32 s13, s13, 3")
        e("s_add_u32 s13, s13, s10")
    e("v_lshrrev_b32 v1, 6, v0")
    e("v_and_b32 v2, 63, v0             ; lane")
    e("v_readfirstlane_b32 s39, v1      ; wave")
    e("v_and_b32 v3, 31, v2             ; l&31")
    e("v_lshrrev_b32 v4, 5, v2          ; h")
    e("s_and_b32 s14, s39, 3            ; w")
    e("s_lshl_b32 s15, s13, 6")
    e("s_cmp_ge_u32 s39, 4")
    e("s_cbranch_scc1 L_k1_loader")
    e("s_lshr_b32 s28, s14, 1           ; a")
    e("s_and_b32 s29, s14, 1            ; b")
    e("v_bfe_u32 v9, v2, 2, 2           ; r")
    e("v_lshl_add_u32 v10, v4, 3, v9    ; 8h+r")
    e("v_mul_u32_u24 v10, 384, v10")
    e("v_lshrrev_b32 v9, 1, v9")
    e("v_xor_b32 v9, s29, v9")
    e("v_lshl_add_u32 v10, v9, 6, v10")
    e("v_bfe_u32 v9, v2, 4, 1           ; g'")
    e("v_lshl_add_u32 v10, v9, 5, v10")
    e("v_and_b32 v9, 3, v2")
    e("v_lshl_add_u32 v20, v9, 3, v10")
    e("v_add_u32 v20, 0x2000, v20")
    e("v_bfe_u32 v9, v3, 1, 3           ; f")
    e("v_lshlrev_b32 v10, 7, v3")
    e("s_lshl_b32 s30, s28, 12")
    e("v_add_u32 v10, s30, v10")
    for k2 in range(4):
        e(f"v_add_u32 v11, {2*k2}, v4")
        e("v_xor_b32 v11, v11, v9")
        e(f"v_lshl_add_u32 v{21+k2}, v11, 4, v10")
    e("s_waitcnt lgkmcnt(0)")
    srd(24, 8, 9, WS_SIZE)
    stamp()
    if PF1 == 1:
        srd(16, 4, 5, 0x200000)
        srd(20, 6, 7, 0x180000)
        e("s_lshl_b32 s40, s11, 2")
        e("s_add_u32 s40, s40, s14          ; wid 0..127")
        e("s_lshr_b32 s41, s10, 1")
        e("s_lshl_b32 s41, s41, 19")
        e("s_lshl_b32 s42, s40, 12")
        e("s_add_u32 s41, s41, s42")
        e("v_lshlrev_b32 v40, 6, v2")
        e("buffer_load_dword v41, v40, s[16:19], s41 offen")
        e("v_lshrrev_b32 v40, 4, v2")
        e("v_mul_u32_u24 v40, 0xc00, v40")
        e("v_and_b32 v42, 7, v2")
        e("v_lshl_add_u32 v40, v42, 6, v40")
        e("v_bfe_u32 v42, v2, 3, 1")
        e("v_lshl_add_u32 v43, v42, 10, v40")
        e("s_mul_i32 s41, s40, 0x3000")
        e("s_and_b32 s42, s10, 1")
        e("s_lshl_b32 s42, s42, 9")
        e("s_add_u32 s41, s41, s42")
        e("buffer_load_dword v44, v43, s[20:23], s41 offen")
        e("buffer_load_dword v45, v40, s[20:23], s41 offen offset:2048")
    if PF1 == 2:
        srd(16, 4, 5, 0x200000)
        srd(20, 6, 7, 0x180000)
        e("s_lshl_b32 s40, s11, 2")
        e("s_add_u32 s40, s40, s14          ; wid 0..127")
        e("s_cmp_ge_u32 s40, 120")
        e("s_cbranch_scc1 L_pf_done")
        e("s_cmp_ge_u32 s40, 48")
        e("s_cbranch_scc1 L_pf_w")
        e("s_lshl_b32 s41, s40, 6")
        e("v_add_u32 v40, s41, v2")
        e("v_mul_u32_u24 v41, 0xaaab, v40")
        e("v_lshrrev_b32 v41, 18, v41       ; /6")
        e("v_mul_u32_u24 v42, 6, v41")
        e("v_sub_u32 v42, v40, v42")
        e("v_lshlrev_b32 v41, 10, v41")
        e("v_lshl_add_u32 v40, v42, 6, v41")
        e("s_lshr_b32 s41, s10, 1")
        e("s_lshl_b32 s41, s41, 19")
        e(f"s_sleep {PFD0}")
        e("buffer_load_dword v41, v40, s[16:19], s41 offen offset:256")
        e(f"s_sleep {PFD}")
        e("buffer_load_dword v42, v40, s[16:19], s41 offen offset:640")
        e("s_branch L_pf_done")
        e("L_pf_w:")
        e("s_sub_u32 s41, s40, 48")
        e("s_lshl_b32 s41, s41, 6")
        e("v_add_u32 v40, s41, v2")
        e("v_mul_u32_u24 v41, 0xaaab, v40")
        e("v_lshrrev_b32 v41, 20, v41       ; /24")
        e("v_mul_u32_u24 v42, 24, v41")
        e("v_sub_u32 v42, v40, v42")
        e("v_mul_u32_u24 v41, 0xc00, v41")
        e("v_lshrrev_b32 v43, 3, v42")
        e("v_lshl_add_u32 v41, v43, 10, v41")
        e("v_and_b32 v42, 7, v42")
        e("v_lshl_add_u32 v40, v42, 6, v41")
        e("s_and_b32 s42, s10, 1")
        e("s_lshl_b32 s42, s42, 9")
        e(f"s_add_u32 s41, s42, {128*3072}")
        e(f"s_add_u32 s42, s42, {320*3072}")
        e(f"s_sleep {PFD0}")
        e("buffer_load_dword v41, v40, s[20:23], s41 offen")
        e(f"s_sleep {PFD}")
        e("buffer_load_dword v42, v40, s[20:23], s42 offen")
        e("L_pf_done:")
    ACC = 64
    FR = 112
    AD = 26
    def setaddr(c):
        sl = (c % K1_NSLOT) * K1_SLOT
        for i in range(5):
            e(f"v_add_u32 v{AD+5*(c&1)+i}, {sl}, v{20+i}")
    def read_list(kk):
        b = FR + 16*(kk % 3)
        k2 = kk & 3
        ad = AD + 5*((kk//4) & 1)
        if EXP >= 2: return []
        L = [f"ds_read_b128 {vr(b,4)}, v{ad+1+k2}"]
        for j in range(3):
            for ee in range(2):
                L.append(f"ds_read_b64_tr_b16 {vr(b+4+4*j+2*ee,2)}, v{ad} offset:{k2*6144+ee*1536+j*128}")
        return L
    setaddr(0)
    e("s_barrier")
    stamp()
    for r in read_list(0): e(r)
    for r in read_list(1): e(r)
    for kk in range(32):
        nxt = []
        if kk+2 < 32:
            if (kk+2) % 4 == 0:
                c = (kk+2)//4
                setaddr(c)
                e("s_barrier")
                if c == 6: stamp()
            nxt = read_list(kk+2)
        e(f"s_waitcnt lgkmcnt({7 if kk+1 < 32 else 0})")
        b = FR + 16*(kk % 3)
        xf = vr(b, 4)
        for j in range(3):
            acc = vr(ACC+16*j, 16)
            cin = "0" if kk == 0 else acc
            wf = vr(b+4+4*j, 4)
            if EXP >= 2: pass
            elif j < 2:
                e(f"v_mfma_f32_32x32x16_bf16 {acc}, {wf}, {xf}, {cin}")
            else:
                e(f"v_mfma_f32_32x32x16_bf16 {acc}, {xf}, {wf}, {cin}")
            part = nxt[[0,3,5][j]:[3,5,7][j]]
            for r in part: e(r)
    stamp()
    e("v_lshlrev_b32 v5, 4, v2")
    e("s_lshl_b32 s30, s12, 1")
    e("s_add_u32 s30, s30, s29")
    e("s_lshl_b32 s30, s30, 17          ; head0*65536")
    e("s_lshl_b32 s31, s13, 1")
    e("s_add_u32 s31, s31, s28")
    e("s_lshl_b32 s31, s31, 10          ; tile*1024")
    e("s_add_u32 s30, s30, s31")
    e("s_add_u32 s31, s30, 0x10000")
    e(f"s_add_u32 s32, s30, {hex(KB)}")
    e(f"s_add_u32 s33, s31, {hex(KB)}")
    e("v_lshrrev_b32 v9, 4, v3")
    e("v_lshlrev_b32 v6, 16, v9")
    e("v_lshl_add_u32 v6, v4, 8, v6")
    e("v_and_b32 v9, 15, v3")
    e("v_lshl_add_u32 v6, v9, 4, v6")
    e(f"s_add_u32 s34, s30, {hex(VB)}")
    e("s_nop 7")
    P = 8
    for j in range(3):
        for r in range(8):
            e(f"v_cvt_pk_bf16_f32 v{P+8*j+r}, v{ACC+16*j+2*r}, v{ACC+16*j+2*r+1}")
    e(f"buffer_store_dwordx4 {vr(P,4)}, v5, s[24:27], s30 offen {STM}")
    e(f"buffer_store_dwordx4 {vr(P+4,4)}, v5, s[24:27], s31 offen {STM}")
    e(f"buffer_store_dwordx4 {vr(P+8,4)}, v5, s[24:27], s32 offen {STM}")
    e(f"buffer_store_dwordx4 {vr(P+12,4)}, v5, s[24:27], s33 offen {STM}")
    e(f"buffer_store_dwordx4 {vr(P+16,4)}, v6, s[24:27], s34 offen {STM}")
    e(f"buffer_store_dwordx4 {vr(P+20,4)}, v6, s[24:27], s34 offen offset:512 {STM}")
    stamp_flush(0, 14, 4)
    dbg_end(0)
    e("s_endpgm")
    e("L_k1_loader:")
    RPL = 64 // NL
    NX = RPL // 8
    NP = RPL // 8
    e("s_sub_u32 s14, s39, 4            ; L")
    e(f"s_mul_i32 s28, s14, {RPL}")
    e("s_add_u32 s30, s15, s28")
    e("v_lshrrev_b32 v9, 3, v2")
    e("v_add_u32 v9, s30, v9")
    e("v_lshlrev_b32 v9, 10, v9")
    e("v_and_b32 v10, 7, v2             ; pos")
    e("v_lshrrev_b32 v11, 4, v2")
    e("s_lshr_b32 s30, s28, 1")
    e("v_add_u32 v11, s30, v11")
    for a_ in range(NX):
        e(f"v_add_u32 v12, {4*a_}, v11")
        e("v_and_b32 v12, 7, v12")
        e("v_xor_b32 v12, v12, v10")
        e("v_lshl_add_u32 v12, v12, 4, v9")
        e(f"v_add_u32 v{16+a_}, {8*a_*1024 - a_*1024}, v12")
    e("s_lshl_b32 s29, s12, 7           ; 128*nt")
    for j in range(3):
        e(f"v_add_u32 v9, {64*j}, v2")
        e("v_mul_u32_u24 v10, 0xaaab, v9")
        e("v_lshrrev_b32 v10, 20, v10       ; row")
        e("v_mul_u32_u24 v11, 24, v10")
        e("v_sub_u32 v11, v9, v11           ; pos")
        e("v_lshrrev_b32 v12, 3, v11        ; seg")
        e("v_and_b32 v11, 7, v11")
        e("v_bfe_u32 v13, v10, 1, 1")
        e("v_lshlrev_b32 v13, 2, v13")
        e("v_xor_b32 v11, v11, v13")
        e("v_mul_u32_u24 v10, 0xc00, v10    ; row*3072")
        e("v_lshl_add_u32 v10, v12, 10, v10")
        e("v_lshl_add_u32 v10, v11, 4, v10")
        e("v_add_u32 v10, s29, v10")
        if j:
            e(f"v_subrev_u32 v{6+j}, {1024*j}, v10")
        else:
            e(f"v_mov_b32 v6, v10")
    e("s_waitcnt lgkmcnt(0)")
    srd(16, 4, 5, 0x200000)
    srd(20, 6, 7, 0x180000)
    e("s_lshl_b32 s36, s28, 7")
    e("s_mul_i32 s37, s28, 384")
    e("s_add_u32 s37, s37, 0x2000")
    e("s_mul_i32 s38, s28, 0xc00        ; W global")
    if ROT:
        e("s_lshl_b32 s43, s12, 1")
        e("s_add_u32 s43, s43, s13")
    else:
        e("s_mov_b32 s43, 0")
    def issue(c):
        if EXP == 1: return
        sl = (c % K1_NSLOT) * K1_SLOT
        e(f"s_add_u32 s30, s36, {sl}")
        e("s_mov_b32 m0, s30")
        e(f"s_add_u32 s44, s43, {c}")
        e("s_and_b32 s44, s44, 7")
        e("s_lshl_b32 s31, s44, 7")
        for a_ in range(NX):
            e(f"buffer_load_dwordx4 v{16+a_}, s[16:19], s31 offen offset:{1024*a_} lds")
        e(f"s_mul_i32 s44, s44, {64*3072}")
        e("s_add_u32 s44, s44, s38")
        for pp in range(NP):
            e(f"s_add_u32 s30, s37, {sl + pp*3072}")
            e("s_mov_b32 m0, s30")
            e(f"s_add_u32 s31, s44, {pp*8*3072}")
            for j in range(3):
                e(f"buffer_load_dwordx4 v{6+j}, s[20:23], s31 offen offset:{1024*j} lds")
    per = NX + 3*NP
    for c in range(LA):
        issue(c)
    for c in range(8):
        nout = min(c+LA-1, 7) - c
        e(f"s_waitcnt vmcnt({per*nout})")
        e("s_barrier")
        if c+LA <= 7:
            issue(c+LA)
    e("L_k1_end:")
    e("s_endpgm")
    out.append("")

def gen_k2():
    kernel_begin("attn_kernel")
    e("s_cmp_ge_u32 s2, 256")
    e("s_cbranch_scc1 L_k2_end")
    e("s_load_dwordx2 s[8:9], s[0:1], 40")
    e("s_load_dwordx2 s[4:5], s[0:1], 16")
    e("s_and_b32 s10, s2, 7")
    e("s_lshr_b32 s11, s2, 3")
    e("s_mov_b32 s64, s11")
    e("s_and_b32 s12, s10, 1")
    e("s_lshl_b32 s12, s12, 4")
    e("s_and_b32 s13, s11, 15")
    e("s_add_u32 s12, s12, s13          ; head")
    e("s_lshr_b32 s11, s11, 4")
    e("s_and_b32 s13, s10, 6")
    e("s_add_u32 s11, s11, s13          ; j")
    e("v_lshrrev_b32 v1, 6, v0")
    e("v_and_b32 v2, 63, v0             ; lane")
    e("v_readfirstlane_b32 s14, v1      ; wave")
    e("v_and_b32 v3, 31, v2             ; l&31")
    e("v_lshrrev_b32 v4, 5, v2          ; h")
    e("s_lshl_b32 s13, s11, 3")
    e("s_add_u32 s13, s13, s14          ; b")
    e("v_lshlrev_b32 v5, 4, v2          ; lane*16")
    e("s_lshl_b32 s15, s12, 16          ; head*65536")
    e("s_lshl_b32 s16, s13, 10          ; b*1024")
    e("s_add_u32 s16, s16, s15")
    e("s_lshl_b32 s17, s11, 3")
    e("s_lshl_b32 s18, s14, 1")
    e("s_add_u32 s17, s17, s18")
    e("s_sub_u32 s17, s17, 8")
    e("s_max_i32 s17, s17, 0")
    e("s_lshl_b32 s19, s17, 10")
    e("s_add_u32 s19, s19, s15")
    e(f"s_add_u32 s20, s19, {hex(KB)}")
    e(f"s_add_u32 s21, s19, {hex(VB)}")
    e("s_lshl_b32 s22, s14, 11")
    e("s_add_u32 s23, s22, 0x4000")
    e("s_waitcnt lgkmcnt(0)")
    srd(24, 8, 9, WS_SIZE)
    S = 16
    KF = 160
    DB = 160
    VF = 192
    QF = 196
    AO = 200
    OA = 216
    PM = 232
    CB = 240
    stamp()
    e(f"buffer_load_dwordx4 {vr(QF,4)}, v5, s[24:27], s16 offen")
    e("s_mov_b32 m0, s22")
    e("s_nop 0")
    e("buffer_load_dwordx4 v5, s[24:27], s20 offen lds")
    e("buffer_load_dwordx4 v5, s[24:27], s20 offen offset:1024 lds")
    e("s_mov_b32 m0, s23")
    e("s_nop 0")
    e("buffer_load_dwordx4 v5, s[24:27], s21 offen lds")
    e("buffer_load_dwordx4 v5, s[24:27], s21 offen offset:1024 lds")
    e("v_mov_b32 v8, 0x3f803f80")
    e("v_mov_b32 v9, 0x3f803f80")
    e("v_mov_b32 v10, 0x8000")
    e("ds_write_b64 v10, v[8:9]")
    e("ds_write_b64 v10, v[8:9] offset:8")
    e("s_lshl_b32 s18, s14, 10")
    e("v_add_u32 v6, s18, v5")
    e("v_lshlrev_b32 v7, 8, v4")
    e("v_lshl_add_u32 v7, v3, 4, v7")
    e("v_add_u32 v7, s18, v7")
    e("v_add_u32 v7, 0x4000, v7")
    e("v_cmp_gt_u32 vcc, 16, v3")
    e("v_mov_b32 v11, 0x200")
    e("s_nop 0")
    e("v_cndmask_b32 v7, v10, v7, vcc")
    e("v_cndmask_b32 v14, 0, v11, vcc   ; step")
    e(f"s_add_u32 s17, s16, {hex(OB)}    ; O soffset")
    e("v_lshlrev_b32 v8, 2, v4")
    e("v_sub_u32 v8, v3, v8")
    for i in range(16):
        ci = (i & 3) + 8*(i >> 2)
        e(f"v_cmp_le_i32 s[{32+2*i}:{33+2*i}], {ci}, v8")
    e("v_mov_b32 v15, 0x3eb8aa00")
    e("v_mov_b32 v8, 0xffff")
    e("v_mov_b32 v9, 0xffff0000")
    for r in range(8):
        e(f"v_cndmask_b32 v{PM+r}, 0, v8, s[{32+4*r}:{33+4*r}]")
        e(f"v_cndmask_b32 v11, 0, v9, s[{34+4*r}:{35+4*r}]")
        e(f"v_or_b32 v{PM+r}, v{PM+r}, v11")
    e("v_bfe_u32 v8, v3, 1, 1")
    e("v_bfe_u32 v9, v3, 3, 2")
    e("v_lshl_add_u32 v8, v9, 1, v8")
    e("v_bfe_u32 v9, v3, 2, 1")
    e("v_xor_b32 v9, v9, v4")
    e("v_lshl_add_u32 v8, v9, 3, v8     ; key8")
    e("v_and_b32 v9, 1, v3")
    e("v_lshlrev_b32 v9, 4, v9          ; shift 0/16")
    e("v_mov_b32 v11, 0x3eb9")
    e("v_lshlrev_b32 v11, v9, v11       ; w_hi")
    e("v_mov_b32 v12, 0xba2c")
    e("v_lshlrev_b32 v12, v9, v12       ; w_lo")
    for g in range(2):
        for r in range(4):
            e(f"v_cmp_eq_u32 s[66:67], {r+4*g}, v8")
            e("s_nop 1")
            e(f"v_cndmask_b32 v{AO+4*g+r}, 0, v11, s[66:67]")
            e(f"v_cndmask_b32 v{AO+8+4*g+r}, 0, v12, s[66:67]")
    if PF3:
        srd(28, 4, 5, 0x80000)
        e("s_lshl_b32 s64, s64, 3")
        e("s_add_u32 s64, s64, s14")
        e("s_lshl_b32 s64, s64, 11")
    e(f"s_waitcnt vmcnt(0) lgkmcnt(0)")
    e("s_barrier")
    stamp()
    if PF3:
        e(f"s_mov_b32 m0, {32768+64}")
        e("s_nop 0")
        e("buffer_load_dword v5, s[28:31], s64 offen lds")
        e("buffer_load_dword v5, s[28:31], s64 offen offset:1024 lds")
    for t in range(9):
        e(f"ds_read_b128 {vr(KF+4*t,4)}, v6 offset:{1024*t}")
    for t in range(9):
        e(f"s_waitcnt lgkmcnt({8-t})")
        e(f"v_mfma_f32_32x32x16_bf16 {vr(S+16*t,16)}, {vr(KF+4*t,4)}, {vr(QF,4)}, 0")
    e("s_nop 7")
    e("s_nop 4")
    e("s_cmp_ge_u32 s13, 8")
    e("s_cbranch_scc1 L_k2_fix_done")
    e("v_mov_b32 v9, 0xcf800000")
    for t in range(8):
        for i in range(16):
            e(f"v_mov_b32 v{S+16*t+i}, v9")
        if t < 7:
            e(f"s_cmp_ge_u32 s13, {7-t}")
            e("s_cbranch_scc1 L_k2_fix_done")
    e("L_k2_fix_done:")
    for i in range(16):
        e(f"v_cndmask_b32 v{S+128+i}, v{S+i}, v{S+128+i}, s[{32+2*i}:{33+2*i}]")
    vals = [S+16+i for i in range(128)]
    ch = [10, 11, 12, 13]
    for c in range(4):
        sub = vals[32*c:32*c+32]
        e(f"v_max3_f32 v{ch[c]}, v{sub[0]}, v{sub[1]}, v{sub[2]}")
    for step in range(14):
        for c in range(4):
            sub = vals[32*c:32*c+32]
            e(f"v_max3_f32 v{ch[c]}, v{sub[3+2*step]}, v{sub[4+2*step]}, v{ch[c]}")
    for c in range(4):
        sub = vals[32*c:32*c+32]
        e(f"v_max_f32 v{ch[c]}, v{sub[31]}, v{ch[c]}")
    e("v_max3_f32 v10, v10, v11, v12")
    e("v_max_f32 v10, v10, v13")
    e("v_mov_b32 v11, v10")
    e("s_nop 1")
    e("v_permlane32_swap_b32 v10, v11")
    e("v_max_f32 v10, v10, v11")
    e("v_cvt_pk_bf16_f32 v10, v10, v10")
    e("v_and_b32 v10, 0xffff0000, v10")
    e("v_mul_f32 v10, v15, v10          ; m*c'")
    e("v_sub_f32 v10, 0, v10")
    for i in range(16):
        e(f"v_mov_b32 v{CB+i}, v10")
    stamp()
    def cvtS(t):
        base = S+16*t
        for r in range(8):
            e(f"v_cvt_pk_bf16_f32 v{base+r}, v{base+2*r}, v{base+2*r+1}")
    def xmfma(t, n):
        base = S+16*t
        d = vr(DB+16*(n & 1), 16)
        e("s_nop 1")
        e(f"v_mfma_f32_32x32x16_bf16 {d}, {vr(AO,4)}, {vr(base,4)}, {vr(CB,16)}")
        e(f"v_mfma_f32_32x32x16_bf16 {d}, {vr(AO+4,4)}, {vr(base+4,4)}, {d}")
        e(f"v_mfma_f32_32x32x16_bf16 {d}, {vr(AO+8,4)}, {vr(base,4)}, {d}")
        e(f"v_mfma_f32_32x32x16_bf16 {d}, {vr(AO+12,4)}, {vr(base+4,4)}, {d}")
    def expP(t, n):
        base = S+16*t
        d = DB+16*(n & 1)
        for i in range(16):
            e(f"v_exp_f32 v{d+i}, v{d+i}")
        for r in range(8):
            e(f"v_cvt_pk_bf16_f32 v{base+r}, v{d+2*r}, v{d+2*r+1}")
        if t == 8:
            for r in range(8):
                e(f"v_and_b32 v{S+8+r}, v{base+r}, v{PM+r}")
            for r in range(8):
                e(f"v_xor_b32 v{S+r}, v{base+r}, v{S+8+r}")
            for r in range(8):
                e(f"v_mov_b32 v{base+r}, v{S+8+r}")
    def vread():
        for m in range(2):
            e(f"ds_read_b128 {vr(VF+4*m,4)}, v7")
            e("v_add_u32 v7, v7, v14")
    first = [True]
    def pv(t):
        base = S+16*t
        e("s_waitcnt lgkmcnt(0)")
        e("s_nop 0")
        for m in range(2):
            cin = "0" if first[0] else vr(OA, 16)
            first[0] = False
            e(f"v_mfma_f32_32x32x16_bf16 {vr(OA,16)}, {vr(VF+4*m,4)}, {vr(base+4*m,4)}, {cin}")
    E = [8, 1, 2, 3, 4, 5, 6, 7]
    vread()
    cvtS(E[0]); xmfma(E[0], 0)
    for n in range(8):
        if n+1 < 8:
            cvtS(E[n+1]); xmfma(E[n+1], n+1)
        expP(E[n], n)
        pv(0 if n == 0 else E[n])
        vread()
    pv(8)
    stamp()
    e("s_nop 7")
    e("s_nop 7")
    e(f"v_rcp_f32 v10, v{OA+8}")
    e("s_nop 0")
    for i in range(8):
        e(f"v_mul_f32 v{OA+i}, v10, v{OA+i}")
    for r in range(4):
        e(f"v_cvt_pk_bf16_f32 v{16+r}, v{OA+2*r}, v{OA+2*r+1}")
    e(f"buffer_store_dwordx4 v[16:19], v5, s[24:27], s17 offen {STM2}")
    stamp_flush(1, 14, 8)
    dbg_end(1)
    e("L_k2_end:")
    e("s_endpgm")
    out.append("")

def gen_k3():
    kernel_begin("oproj_kernel")
    e("s_cmp_ge_u32 s2, 256")
    e("s_cbranch_scc1 L_k3_end")
    e("s_load_dwordx4 s[4:7], s[0:1], 16")
    e("s_load_dwordx2 s[8:9], s[0:1], 40")
    e("s_and_b32 s10, s2, 7")
    e("s_lshr_b32 s11, s2, 3")
    if MAP2:
        e("s_lshr_b32 s13, s10, 1")
        e("s_lshl_b32 s13, s13, 3")
        e("s_and_b32 s12, s11, 7")
        e("s_add_u32 s13, s13, s12          ; mt (0..31)")
        e("s_lshr_b32 s12, s11, 3")
        e("s_and_b32 s11, s10, 1")
        e("s_lshl_b32 s11, s11, 2")
        e("s_add_u32 s12, s12, s11          ; nt (0..7)")
    else:
        e("s_lshl_b32 s13, s10, 2")
        e("s_and_b32 s12, s11, 3")
        e("s_add_u32 s13, s13, s12          ; mt (0..31)")
        e("s_lshr_b32 s12, s11, 2           ; nt (0..7)")
    e("v_lshrrev_b32 v1, 6, v0")
    e("v_and_b32 v2, 63, v0             ; lane")
    e("v_readfirstlane_b32 s39, v1      ; wave")
    e("v_and_b32 v3, 31, v2             ; l&31")
    e("v_lshrrev_b32 v4, 5, v2          ; h")
    e("s_and_b32 s14, s39, 3")
    e("v_lshlrev_b32 v5, 4, v2          ; lane*16")
    e("s_cmp_ge_u32 s39, 4")
    e("s_cbranch_scc1 L_k3_loader")
    e("s_lshr_b32 s28, s14, 1           ; a")
    e("s_and_b32 s29, s14, 1            ; b")
    e("s_lshl_b32 s30, s28, 10")
    e("v_add_u32 v12, s30, v5")
    e("v_bfe_u32 v9, v2, 2, 2           ; r")
    e("v_lshl_add_u32 v10, v4, 2, v9    ; 4h+r")
    e("v_lshlrev_b32 v10, 7, v10")
    e("v_lshrrev_b32 v9, 1, v9")
    e("v_xor_b32 v9, s29, v9")
    e("v_lshl_add_u32 v10, v9, 6, v10")
    e("v_bfe_u32 v9, v2, 4, 1           ; g'")
    e("v_lshl_add_u32 v10, v9, 5, v10")
    e("v_and_b32 v9, 3, v2")
    e("v_lshl_add_u32 v13, v9, 3, v10")
    e("v_add_u32 v13, 0x10000, v13")
    e("v_add_u32 v14, 0x8000, v13")
    e("v_add_u32 v15, 0x8000, v12")
    e("s_waitcnt lgkmcnt(0)")
    srd(16, 6, 7, 0x200000)
    srd(24, 8, 9, WS_SIZE)
    ACC = 64
    FR = 32
    def read_list(kk):
        b = FR + 8*(kk % 3)
        k2 = kk & 15
        L = [f"ds_read_b128 {vr(b,4)}, {'v12' if kk < 16 else 'v15'} offset:{k2*2048}"]
        for ee in range(2):
            L.append(f"ds_read_b64_tr_b16 {vr(b+4+2*ee,2)}, {'v13' if kk < 16 else 'v14'} offset:{k2*2048+ee*1024}")
        return L
    stamp()
    e("s_barrier")
    stamp()
    for r in read_list(0): e(r)
    for r in read_list(1): e(r)
    for kk in range(32):
        nxt = []
        if kk+2 < 32:
            if (kk+2) % 4 == 0:
                e("s_barrier")
                if kk+2 == 24: stamp()
            nxt = read_list(kk+2)
        e(f"s_waitcnt lgkmcnt({3 if kk+1 < 32 else 0})")
        b = FR + 8*(kk % 3)
        acc = vr(ACC, 16)
        cin = "0" if kk == 0 else acc
        e(f"v_mfma_f32_32x32x16_bf16 {acc}, {vr(b+4,4)}, {vr(b,4)}, {cin}")
        for r in nxt: e(r)
    stamp()
    if WIDE3 == 2:
        e("s_nop 7")
        e("s_nop 7")
        for r in range(8):
            e(f"v_cvt_pk_bf16_f32 v{16+r}, v{ACC+2*r}, v{ACC+2*r+1}")
        e("s_nop 1")
        for p in range(2):
            e(f"v_permlane32_swap_b32 v{16+4*p}, v{18+4*p}")
            e(f"v_permlane32_swap_b32 v{17+4*p}, v{19+4*p}")
        e("s_lshl_b32 s30, s28, 5")
        e("v_add_u32 v6, s30, v3")
        e("v_mul_u32_u24 v6, 144, v6")
        e("v_lshl_add_u32 v6, v4, 4, v6")
        e("s_lshl_b32 s30, s29, 6")
        e("v_add_u32 v6, s30, v6")
        e("s_barrier")
        e("ds_write_b128 v6, v[16:19]")
        e("ds_write_b128 v6, v[20:23] offset:32")
        e("v_lshrrev_b32 v7, 3, v2")
        e("s_lshl_b32 s30, s14, 4")
        e("v_add_u32 v7, s30, v7")
        e("v_and_b32 v8, 7, v2")
        e("v_mul_u32_u24 v9, 144, v7")
        e("v_lshl_add_u32 v9, v8, 4, v9")
        e("s_lshl_b32 s30, s13, 6")
        e("v_add_u32 v7, s30, v7")
        e("v_lshlrev_b32 v7, 10, v7")
        e("v_lshl_add_u32 v7, v8, 4, v7")
        e("s_lshl_b32 s30, s12, 7")
        e("s_add_u32 s31, s30, 0x2000")
        e("s_waitcnt lgkmcnt(0)")
        e("s_barrier")
        e("ds_read_b128 v[24:27], v9")
        e(f"ds_read_b128 v[28:31], v9 offset:{8*144}")
        e("s_waitcnt lgkmcnt(1)")
        e(f"buffer_store_dwordx4 v[24:27], v7, s[16:19], s30 offen {STM3}")
        e("s_waitcnt lgkmcnt(0)")
        e(f"buffer_store_dwordx4 v[28:31], v7, s[16:19], s31 offen {STM3}")
    else:
        e("s_lshl_b32 s30, s13, 1")
        e("s_add_u32 s30, s30, s28")
        e("s_lshl_b32 s30, s30, 5")
        e("v_add_u32 v5, s30, v3")
        e("v_lshlrev_b32 v5, 10, v5")
        e(f"v_lshl_add_u32 v5, v4, {4 if WIDE3 else 3}, v5")
        e("s_lshl_b32 s30, s12, 1")
        e("s_add_u32 s30, s30, s29")
        e("s_lshl_b32 s30, s30, 6")
        e("v_add_u32 v5, s30, v5")
        e("s_nop 7")
        e("s_nop 3")
        if INJ:
            e("s_or_b32 s30, s2, s14")
            e("s_cmp_lg_u32 s30, 0")
            e("s_cbranch_scc1 L_noinj")
            e("s_mov_b64 exec, 1")
            e(f"v_add_f32 v{ACC}, {INJ}, v{ACC}")
            e("s_mov_b64 exec, -1")
            e("L_noinj:")
        if INJALL:
            for i in range(16):
                e(f"v_add_f32 v{ACC+i}, {INJALL}, v{ACC+i}")
        for r in range(8):
            e(f"v_cvt_pk_bf16_f32 v{16+r}, v{ACC+2*r}, v{ACC+2*r+1}")
        if WIDE3:
            e("s_nop 1")
            for p in range(2):
                e(f"v_permlane32_swap_b32 v{16+4*p}, v{18+4*p}")
                e(f"v_permlane32_swap_b32 v{17+4*p}, v{19+4*p}")
            for p in range(2):
                e(f"buffer_store_dwordx4 {vr(16+4*p,4)}, v5, s[16:19], 0 offen offset:{32*p} {STM3}")
        else:
            for g in range(4):
                e(f"buffer_store_dwordx2 {vr(16+2*g,2)}, v5, s[16:19], 0 offen offset:{16*g} {STM3}")
    stamp_flush(2, 14, 4)
    dbg_end(2)
    e("s_endpgm")
    e("L_k3_loader:")
    e("v_lshrrev_b32 v9, 3, v2")
    e("v_and_b32 v10, 7, v2")
    e("v_bfe_u32 v11, v2, 4, 1")
    e("v_lshlrev_b32 v11, 2, v11")
    e("v_xor_b32 v10, v10, v11")
    e("v_lshlrev_b32 v9, 10, v9")
    e("v_lshl_add_u32 v9, v10, 4, v9")
    e("s_lshl_b32 s29, s12, 7")
    e("v_add_u32 v6, s29, v9")
    e(f"v_add_u32 v7, {8*1024-1024}, v6")
    e("s_waitcnt lgkmcnt(0)")
    srd(20, 4, 5, 0x80000)
    srd(24, 8, 9, WS_SIZE)
    e("s_lshl_b32 s36, s14, 11")
    e("s_lshl_b32 s37, s14, 16")
    e("s_lshl_b32 s30, s13, 11")
    e("s_add_u32 s37, s37, s30")
    e(f"s_add_u32 s37, s37, {hex(OB)}")
    e("s_lshl_b32 s38, s14, 14          ; W global w*16*1024")
    def issue(c):
        e(f"s_add_u32 s30, s36, {c*8192}")
        e("s_mov_b32 m0, s30")
        e(f"s_add_u32 s31, s37, {c*4*65536}")
        e("buffer_load_dwordx4 v5, s[24:27], s31 offen lds")
        e("buffer_load_dwordx4 v5, s[24:27], s31 offen offset:1024 lds")
        e(f"s_add_u32 s30, s36, {65536 + c*8192}")
        e("s_mov_b32 m0, s30")
        e(f"s_add_u32 s31, s38, {c*65536}")
        e("buffer_load_dwordx4 v6, s[20:23], s31 offen lds")
        e("buffer_load_dwordx4 v7, s[20:23], s31 offen offset:1024 lds")
    LA3 = int(os.environ.get('LA3', '4'))
    for c in range(LA3):
        issue(c)
    for c in range(8):
        nout = min(c+LA3-1, 7) - c
        e(f"s_waitcnt vmcnt({4*nout})")
        e("s_barrier")
        if c+LA3 <= 7:
            issue(c+LA3)
    e("L_k3_end:")
    e("s_endpgm")
    out.append("")

gen_k1()
gen_k2()
gen_k3()
txt = HEADER + "\n".join(out) + "\n" + '.section .rodata,"a"\n'
for n, v in (("qkv_kernel", 160), ("attn_kernel", 256), ("oproj_kernel", 80)):
    txt += ".p2align 6\n" + kd(n, v)
dst = sys.argv[1] if len(sys.argv) > 1 else "standalone__sliding_block__prompt.s"
open(dst, "w").write(txt)
```

```python
import sys, os

K2_LDS = 32768 + 64
K1_SLOT = 32768
K1_NSLOT = 5
PF3 = int(os.environ.get('PF3', '0'))
PF1 = int(os.environ.get('PF1', '0'))
MAP2 = int(os.environ.get('MAP2', '0'))
NL = int(os.environ.get('NL', '4'))
PK = int(os.environ.get('PK', '1'))
PFD = int(os.environ.get('PFD', '8'))
PFD0 = int(os.environ.get('PFD0', '2'))
STM = os.environ.get('STM', '')
STM2 = os.environ.get('STM2', '')
STM3 = os.environ.get('STM3', '')
ROT = int(os.environ.get('ROT', '1'))
MAP1 = int(os.environ.get('MAP1', '0'))
WIDE3 = int(os.environ.get('WIDE3', '1'))
CPF = int(os.environ.get('CPF', '0'))
LA = int(os.environ.get('LA', '3'))
HEADER = f"""; Kernarg layout for this problem (48 bytes, ptrs only, base s[0:1]):
; @launch kernel=qkv_kernel grid=(256,1,1) block=({256+64*NL},1,1) lds={K1_SLOT*K1_NSLOT}
; @launch kernel=attn_kernel grid=(256,1,1) block=(512,1,1) lds={K2_LDS}
; @launch kernel=oproj_kernel grid=(256,1,1) block=(512,1,1) lds=131072
.amdgcn_target "amdgcn-amd-amdhsa--gfx950"
.text
"""
QB = 0
KB = 0x200000
VB = 0x400000
OB = 0x800000
WS_SIZE = 0x1000000

out = []
def e(s=""):
    out.append("    " + s if s and not s.endswith(":") else s)

DBG = int(os.environ.get("DBG", "0"))
def kernel_begin(name):
    out.append(f".globl {name}")
    out.append(".p2align 8")
    out.append(f".type {name},@function")
    out.append(f"{name}:")
    if DBG:
        e("s_memrealtime s[96:97]")
        e("s_load_dwordx2 s[98:99], s[0:1], 32")
def dbg_end(kid):
    if not DBG: return
    e("s_waitcnt vmcnt(0)")
    e("s_memrealtime s[100:101]")
    e("s_waitcnt lgkmcnt(0)")
    e("s_cmp_lg_u32 s14, 0")
    e(f"s_cbranch_scc1 L_dbg_done{kid}")
    e("s_mov_b32 s92, 0")
    e("s_cmp_eq_u32 s2, 0")
    e(f"s_cbranch_scc1 L_dbg_go{kid}")
    e("s_mov_b32 s92, 8")
    e("s_cmp_lg_u32 s2, 200")
    e(f"s_cbranch_scc1 L_dbg_done{kid}")
    e(f"L_dbg_go{kid}:")
    e(f"s_add_u32 s92, s92, {0xE00000 + kid*16}")
    e("s_mov_b64 exec, 1")
    e("v_mov_b32 v1, 0")
    e("v_mov_b32 v2, s96")
    e("v_mov_b32 v3, s100")
    e(f"buffer_store_dwordx2 v[2:3], v1, s[24:27], s92 offen")
    if kid == 2:
        e("s_cmp_lg_u32 s2, 0")
        e(f"s_cbranch_scc1 L_dbg_done{kid}")
        e("s_mov_b64 exec, 0xffff")
        e("v_lshlrev_b32 v1, 2, v0")
        e("s_mov_b32 s92, 0xE00000")
        e("s_waitcnt vmcnt(0)")
        e("buffer_load_dword v2, v1, s[24:27], s92 offen sc0 sc1")
        e("s_mov_b32 s92, s98")
        e("s_and_b32 s93, s99, 0xffff")
        e("s_mov_b32 s94, 256")
        e("s_mov_b32 s95, 0x20000")
        e("s_waitcnt vmcnt(0)")
        e("buffer_store_dword v2, v1, s[92:95], 0 offen")
    e(f"L_dbg_done{kid}:")
    e("s_mov_b64 exec, -1")

def kd(name, vgpr, sgpr=102):
    return f""".amdhsa_kernel {name}
  .amdhsa_next_free_vgpr {vgpr}
  .amdhsa_next_free_sgpr {sgpr}
  .amdhsa_accum_offset {((vgpr+3)//4)*4}
  .amdhsa_group_segment_fixed_size 0
  .amdhsa_kernarg_size 48
  .amdhsa_user_sgpr_count 2
  .amdhsa_user_sgpr_kernarg_segment_ptr 1
  .amdhsa_system_sgpr_workgroup_id_x 1
.end_amdhsa_kernel
"""

STAMP = int(os.environ.get("STAMP", "0"))
EXP = int(os.environ.get("EXP", "0"))
STAMP_BASE = 0xC00000
STAMP_S = 90
stamp_n = [0]
def stamp():
    if not STAMP: return
    i = stamp_n[0]; stamp_n[0] += 1
    assert i < 6
    e(f"{'s_memrealtime' if STAMP==2 else 's_memtime'} s[{STAMP_S+2*i}:{STAMP_S+2*i+1}]")
def stamp_flush(kid, wave_sgpr, nw):
    if not STAMP: return
    e("s_waitcnt vmcnt(0)")
    stamp()
    n = stamp_n[0]; stamp_n[0] = 0
    e("s_waitcnt lgkmcnt(0)")
    e(f"s_mul_i32 s3, s2, {nw}")
    e(f"s_add_u32 s3, s3, s{wave_sgpr}")
    e("s_lshl_b32 s3, s3, 6")
    e(f"s_add_u32 s3, s3, {hex(STAMP_BASE + kid*0x40000)}")
    e("s_mov_b64 exec, 1")
    e("v_mov_b32 v1, 0")
    for i in range(n):
        e(f"v_mov_b32 v2, s{STAMP_S+2*i}")
        e(f"buffer_store_dword v2, v1, s[24:27], s3 offen offset:{4*i}")
    e("s_mov_b64 exec, -1")

def vr(a, n):
    return f"v[{a}:{a+n-1}]"

def srd(d, lo, hi, size):
    e(f"s_mov_b32 s{d}, s{lo}")
    e(f"s_and_b32 s{d+1}, s{hi}, 0xffff")
    e(f"s_mov_b32 s{d+2}, {hex(size)}")
    e(f"s_mov_b32 s{d+3}, 0x00020000")

def gen_k1():
    kernel_begin("qkv_kernel")
    e("s_cmp_ge_u32 s2, 256")
    e("s_cbranch_scc1 L_k1_end")
    e("s_load_dwordx4 s[4:7], s[0:1], 0")
    e("s_load_dwordx2 s[8:9], s[0:1], 40")
    e("s_and_b32 s10, s2, 7")
    e("s_lshr_b32 s11, s2, 3")
    if MAP1 == 0:
        e("s_and_b32 s12, s10, 1")
        e("s_lshl_b32 s12, s12, 2")
        e("s_and_b32 s13, s11, 3")
        e("s_add_u32 s12, s12, s13          ; nt (0..7)")
        e("s_lshr_b32 s13, s10, 1")
        e("s_lshl_b32 s13, s13, 3")
        e("s_lshr_b32 s14, s11, 2")
        e("s_add_u32 s13, s13, s14          ; mt (0..31)")
    elif MAP1 == 1:
        e("s_mov_b32 s12, s10")
        e("s_mov_b32 s13, s11")
    elif MAP1 == 2:
        e("s_and_b32 s12, s11, 7")
        e("s_lshr_b32 s13, s11, 3")
        e("s_lshl_b32 s13, s13, 3")
        e("s_add_u32 s13, s13, s10")
    e("v_lshrrev_b32 v1, 6, v0")
    e("v_and_b32 v2, 63, v0             ; lane")
    e("v_readfirstlane_b32 s39, v1      ; wave")
    e("v_and_b32 v3, 31, v2             ; l&31")
    e("v_lshrrev_b32 v4, 5, v2          ; h")
    e("s_and_b32 s14, s39, 3            ; w")
    e("s_lshl_b32 s15, s13, 6")
    e("s_cmp_ge_u32 s39, 4")
    e("s_cbranch_scc1 L_k1_loader")
    e("s_lshr_b32 s28, s14, 1           ; a")
    e("s_and_b32 s29, s14, 1            ; b")
    e("v_bfe_u32 v9, v2, 2, 2           ; r")
    e("v_lshl_add_u32 v10, v4, 3, v9    ; 8h+r")
    e("v_mul_u32_u24 v10, 384, v10")
    e("v_lshrrev_b32 v9, 1, v9")
    e("v_xor_b32 v9, s29, v9")
    e("v_lshl_add_u32 v10, v9, 6, v10")
    e("v_bfe_u32 v9, v2, 4, 1           ; g'")
    e("v_lshl_add_u32 v10, v9, 5, v10")
    e("v_and_b32 v9, 3, v2")
    e("v_lshl_add_u32 v20, v9, 3, v10")
    e("v_add_u32 v20, 0x2000, v20")
    e("v_bfe_u32 v9, v3, 1, 3           ; f")
    e("v_lshlrev_b32 v10, 7, v3")
    e("s_lshl_b32 s30, s28, 12")
    e("v_add_u32 v10, s30, v10")
    for k2 in range(4):
        e(f"v_add_u32 v11, {2*k2}, v4")
        e("v_xor_b32 v11, v11, v9")
        e(f"v_lshl_add_u32 v{21+k2}, v11, 4, v10")
    e("s_waitcnt lgkmcnt(0)")
    srd(24, 8, 9, WS_SIZE)
    stamp()
    if PF1 == 1:
        srd(16, 4, 5, 0x200000)
        srd(20, 6, 7, 0x180000)
        e("s_lshl_b32 s40, s11, 2")
        e("s_add_u32 s40, s40, s14          ; wid 0..127")
        e("s_lshr_b32 s41, s10, 1")
        e("s_lshl_b32 s41, s41, 19")
        e("s_lshl_b32 s42, s40, 12")
        e("s_add_u32 s41, s41, s42")
        e("v_lshlrev_b32 v40, 6, v2")
        e("buffer_load_dword v41, v40, s[16:19], s41 offen")
        e("v_lshrrev_b32 v40, 4, v2")
        e("v_mul_u32_u24 v40, 0xc00, v40")
        e("v_and_b32 v42, 7, v2")
        e("v_lshl_add_u32 v40, v42, 6, v40")
        e("v_bfe_u32 v42, v2, 3, 1")
        e("v_lshl_add_u32 v43, v42, 10, v40")
        e("s_mul_i32 s41, s40, 0x3000")
        e("s_and_b32 s42, s10, 1")
        e("s_lshl_b32 s42, s42, 9")
        e("s_add_u32 s41, s41, s42")
        e("buffer_load_dword v44, v43, s[20:23], s41 offen")
        e("buffer_load_dword v45, v40, s[20:23], s41 offen offset:2048")
    if PF1 == 2:
        srd(16, 4, 5, 0x200000)
        srd(20, 6, 7, 0x180000)
        e("s_lshl_b32 s40, s11, 2")
        e("s_add_u32 s40, s40, s14          ; wid 0..127")
        e("s_cmp_ge_u32 s40, 120")
        e("s_cbranch_scc1 L_pf_done")
        e("s_cmp_ge_u32 s40, 48")
        e("s_cbranch_scc1 L_pf_w")
        e("s_lshl_b32 s41, s40, 6")
        e("v_add_u32 v40, s41, v2")
        e("v_mul_u32_u24 v41, 0xaaab, v40")
        e("v_lshrrev_b32 v41, 18, v41       ; /6")
        e("v_mul_u32_u24 v42, 6, v41")
        e("v_sub_u32 v42, v40, v42")
        e("v_lshlrev_b32 v41, 10, v41")
        e("v_lshl_add_u32 v40, v42, 6, v41")
        e("s_lshr_b32 s41, s10, 1")
        e("s_lshl_b32 s41, s41, 19")
        e(f"s_sleep {PFD0}")
        e("buffer_load_dword v41, v40, s[16:19], s41 offen offset:256")
        e(f"s_sleep {PFD}")
        e("buffer_load_dword v42, v40, s[16:19], s41 offen offset:640")
        e("s_branch L_pf_done")
        e("L_pf_w:")
        e("s_sub_u32 s41, s40, 48")
        e("s_lshl_b32 s41, s41, 6")
        e("v_add_u32 v40, s41, v2")
        e("v_mul_u32_u24 v41, 0xaaab, v40")
        e("v_lshrrev_b32 v41, 20, v41       ; /24")
        e("v_mul_u32_u24 v42, 24, v41")
        e("v_sub_u32 v42, v40, v42")
        e("v_mul_u32_u24 v41, 0xc00, v41")
        e("v_lshrrev_b32 v43, 3, v42")
        e("v_lshl_add_u32 v41, v43, 10, v41")
        e("v_and_b32 v42, 7, v42")
        e("v_lshl_add_u32 v40, v42, 6, v41")
        e("s_and_b32 s42, s10, 1")
        e("s_lshl_b32 s42, s42, 9")
        e(f"s_add_u32 s41, s42, {128*3072}")
        e(f"s_add_u32 s42, s42, {320*3072}")
        e(f"s_sleep {PFD0}")
        e("buffer_load_dword v41, v40, s[20:23], s41 offen")
        e(f"s_sleep {PFD}")
        e("buffer_load_dword v42, v40, s[20:23], s42 offen")
        e("L_pf_done:")
    ACC = 64
    FR = 112
    AD = 26
    def setaddr(c):
        sl = (c % K1_NSLOT) * K1_SLOT
        for i in range(5):
            e(f"v_add_u32 v{AD+5*(c&1)+i}, {sl}, v{20+i}")
    def read_list(kk):
        b = FR + 16*(kk % 3)
        k2 = kk & 3
        ad = AD + 5*((kk//4) & 1)
        if EXP >= 2: return []
        L = [f"ds_read_b128 {vr(b,4)}, v{ad+1+k2}"]
        for j in range(3):
            for ee in range(2):
                L.append(f"ds_read_b64_tr_b16 {vr(b+4+4*j+2*ee,2)}, v{ad} offset:{k2*6144+ee*1536+j*128}")
        return L
    setaddr(0)
    e("s_barrier")
    stamp()
    for r in read_list(0): e(r)
    for r in read_list(1): e(r)
    for kk in range(32):
        nxt = []
        if kk+2 < 32:
            if (kk+2) % 4 == 0:
                c = (kk+2)//4
                setaddr(c)
                e("s_barrier")
                if c == 6: stamp()
            nxt = read_list(kk+2)
        e(f"s_waitcnt lgkmcnt({7 if kk+1 < 32 else 0})")
        b = FR + 16*(kk % 3)
        xf = vr(b, 4)
        for j in range(3):
            acc = vr(ACC+16*j, 16)
            cin = "0" if kk == 0 else acc
            wf = vr(b+4+4*j, 4)
            if EXP >= 2: pass
            elif j < 2:
                e(f"v_mfma_f32_32x32x16_bf16 {acc}, {wf}, {xf}, {cin}")
            else:
                e(f"v_mfma_f32_32x32x16_bf16 {acc}, {xf}, {wf}, {cin}")
            part = nxt[[0,3,5][j]:[3,5,7][j]]
            for r in part: e(r)
    stamp()
    e("v_lshlrev_b32 v5, 4, v2")
    e("s_lshl_b32 s30, s12, 1")
    e("s_add_u32 s30, s30, s29")
    e("s_lshl_b32 s30, s30, 17          ; head0*65536")
    e("s_lshl_b32 s31, s13, 1")
    e("s_add_u32 s31, s31, s28")
    e("s_lshl_b32 s31, s31, 10          ; tile*1024")
    e("s_add_u32 s30, s30, s31")
    e("s_add_u32 s31, s30, 0x10000")
    e(f"s_add_u32 s32, s30, {hex(KB)}")
    e(f"s_add_u32 s33, s31, {hex(KB)}")
    e("v_lshrrev_b32 v9, 4, v3")
    e("v_lshlrev_b32 v6, 16, v9")
    e("v_lshl_add_u32 v6, v4, 8, v6")
    e("v_and_b32 v9, 15, v3")
    e("v_lshl_add_u32 v6, v9, 4, v6")
    e(f"s_add_u32 s34, s30, {hex(VB)}")
    e("s_nop 7")
    P = 8
    for j in range(3):
        for r in range(8):
            e(f"v_cvt_pk_bf16_f32 v{P+8*j+r}, v{ACC+16*j+2*r}, v{ACC+16*j+2*r+1}")
    e(f"buffer_store_dwordx4 {vr(P,4)}, v5, s[24:27], s30 offen {STM}")
    e(f"buffer_store_dwordx4 {vr(P+4,4)}, v5, s[24:27], s31 offen {STM}")
    e(f"buffer_store_dwordx4 {vr(P+8,4)}, v5, s[24:27], s32 offen {STM}")
    e(f"buffer_store_dwordx4 {vr(P+12,4)}, v5, s[24:27], s33 offen {STM}")
    e(f"buffer_store_dwordx4 {vr(P+16,4)}, v6, s[24:27], s34 offen {STM}")
    e(f"buffer_store_dwordx4 {vr(P+20,4)}, v6, s[24:27], s34 offen offset:512 {STM}")
    stamp_flush(0, 14, 4)
    dbg_end(0)
    e("s_endpgm")
    e("L_k1_loader:")
    RPL = 64 // NL
    NX = RPL // 8
    NP = RPL // 8
    e("s_sub_u32 s14, s39, 4            ; L")
    e(f"s_mul_i32 s28, s14, {RPL}")
    e("s_add_u32 s30, s15, s28")
    e("v_lshrrev_b32 v9, 3, v2")
    e("v_add_u32 v9, s30, v9")
    e("v_lshlrev_b32 v9, 10, v9")
    e("v_and_b32 v10, 7, v2             ; pos")
    e("v_lshrrev_b32 v11, 4, v2")
    e("s_lshr_b32 s30, s28, 1")
    e("v_add_u32 v11, s30, v11")
    for a_ in range(NX):
        e(f"v_add_u32 v12, {4*a_}, v11")
        e("v_and_b32 v12, 7, v12")
        e("v_xor_b32 v12, v12, v10")
        e("v_lshl_add_u32 v12, v12, 4, v9")
        e(f"v_add_u32 v{16+a_}, {8*a_*1024 - a_*1024}, v12")
    e("s_lshl_b32 s29, s12, 7           ; 128*nt")
    for j in range(3):
        e(f"v_add_u32 v9, {64*j}, v2")
        e("v_mul_u32_u24 v10, 0xaaab, v9")
        e("v_lshrrev_b32 v10, 20, v10       ; row")
        e("v_mul_u32_u24 v11, 24, v10")
        e("v_sub_u32 v11, v9, v11           ; pos")
        e("v_lshrrev_b32 v12, 3, v11        ; seg")
        e("v_and_b32 v11, 7, v11")
        e("v_bfe_u32 v13, v10, 1, 1")
        e("v_lshlrev_b32 v13, 2, v13")
        e("v_xor_b32 v11, v11, v13")
        e("v_mul_u32_u24 v10, 0xc00, v10    ; row*3072")
        e("v_lshl_add_u32 v10, v12, 10, v10")
        e("v_lshl_add_u32 v10, v11, 4, v10")
        e("v_add_u32 v10, s29, v10")
        if j:
            e(f"v_subrev_u32 v{6+j}, {1024*j}, v10")
        else:
            e(f"v_mov_b32 v6, v10")
    e("s_waitcnt lgkmcnt(0)")
    srd(16, 4, 5, 0x200000)
    srd(20, 6, 7, 0x180000)
    e("s_lshl_b32 s36, s28, 7")
    e("s_mul_i32 s37, s28, 384")
    e("s_add_u32 s37, s37, 0x2000")
    e("s_mul_i32 s38, s28, 0xc00        ; W global")
    if ROT:
        e("s_lshl_b32 s43, s12, 1")
        e("s_add_u32 s43, s43, s13")
    else:
        e("s_mov_b32 s43, 0")
    def issue(c):
        if EXP == 1: return
        sl = (c % K1_NSLOT) * K1_SLOT
        e(f"s_add_u32 s30, s36, {sl}")
        e("s_mov_b32 m0, s30")
        e(f"s_add_u32 s44, s43, {c}")
        e("s_and_b32 s44, s44, 7")
        e("s_lshl_b32 s31, s44, 7")
        for a_ in range(NX):
            e(f"buffer_load_dwordx4 v{16+a_}, s[16:19], s31 offen offset:{1024*a_} lds")
        e(f"s_mul_i32 s44, s44, {64*3072}")
        e("s_add_u32 s44, s44, s38")
        for pp in range(NP):
            e(f"s_add_u32 s30, s37, {sl + pp*3072}")
            e("s_mov_b32 m0, s30")
            e(f"s_add_u32 s31, s44, {pp*8*3072}")
            for j in range(3):
                e(f"buffer_load_dwordx4 v{6+j}, s[20:23], s31 offen offset:{1024*j} lds")
    per = NX + 3*NP
    for c in range(LA):
        issue(c)
    for c in range(8):
        nout = min(c+LA-1, 7) - c
        e(f"s_waitcnt vmcnt({per*nout})")
        e("s_barrier")
        if c+LA <= 7:
            issue(c+LA)
    if CPF:
        e("s_cmp_ge_u32 s2, 16")
        e("s_cbranch_scc1 L_k1_end")
        e("s_getpc_b64 s[50:51]")
        e("L_pc_here:")
        e("s_add_u32 s50, s50, attn_kernel - L_pc_here")
        e("s_addc_u32 s51, s51, 0")
        e("s_lshl_b32 s52, s14, 12")
        e("v_lshlrev_b32 v30, 6, v2")
        e("v_add_u32 v30, s52, v30")
        e("v_cmp_gt_u32 vcc, L_k3_end - attn_kernel, v30")
        e("s_and_saveexec_b64 s[54:55], vcc")
        e("s_cbranch_execz L_k1_end")
        e("global_load_dword v31, v30, s[50:51]")
    e("L_k1_end:")
    e("s_endpgm")
    out.append("")

def gen_k2():
    kernel_begin("attn_kernel")
    e("s_cmp_ge_u32 s2, 256")
    e("s_cbranch_scc1 L_k2_end")
    e("s_load_dwordx2 s[8:9], s[0:1], 40")
    e("s_load_dwordx2 s[4:5], s[0:1], 16")
    e("s_and_b32 s10, s2, 7")
    e("s_lshr_b32 s11, s2, 3")
    e("s_mov_b32 s64, s11")
    if MAP2:
        e("s_and_b32 s12, s10, 1")
        e("s_lshl_b32 s12, s12, 4")
        e("s_and_b32 s13, s11, 15")
        e("s_add_u32 s12, s12, s13          ; head")
        e("s_lshr_b32 s11, s11, 4")
        e("s_and_b32 s13, s10, 6")
        e("s_add_u32 s11, s11, s13          ; j")
    else:
        e("s_lshl_b32 s12, s10, 2")
        e("s_and_b32 s13, s11, 3")
        e("s_add_u32 s12, s12, s13          ; head")
        e("s_lshr_b32 s11, s11, 2           ; j")
    e("v_lshrrev_b32 v1, 6, v0")
    e("v_and_b32 v2, 63, v0             ; lane")
    e("v_readfirstlane_b32 s14, v1      ; wave")
    e("v_and_b32 v3, 31, v2             ; l&31")
    e("v_lshrrev_b32 v4, 5, v2          ; h")
    e("s_lshl_b32 s13, s11, 3")
    e("s_add_u32 s13, s13, s14          ; b")
    e("v_lshlrev_b32 v5, 4, v2          ; lane*16")
    e("s_lshl_b32 s15, s12, 16          ; head*65536")
    e("s_lshl_b32 s16, s13, 10          ; b*1024")
    e("s_add_u32 s16, s16, s15")
    e("s_lshl_b32 s17, s11, 3")
    e("s_lshl_b32 s18, s14, 1")
    e("s_add_u32 s17, s17, s18")
    e("s_sub_u32 s17, s17, 8")
    e("s_max_i32 s17, s17, 0")
    e("s_lshl_b32 s19, s17, 10")
    e("s_add_u32 s19, s19, s15")
    e(f"s_add_u32 s20, s19, {hex(KB)}")
    e(f"s_add_u32 s21, s19, {hex(VB)}")
    e("s_lshl_b32 s22, s14, 11")
    e("s_add_u32 s23, s22, 0x4000")
    e("s_waitcnt lgkmcnt(0)")
    srd(24, 8, 9, WS_SIZE)
    S = 16
    KF = 160
    VF = 196
    QF = 212
    OA = 216
    stamp()
    e(f"buffer_load_dwordx4 {vr(QF,4)}, v5, s[24:27], s16 offen")
    e("s_mov_b32 m0, s22")
    e("s_nop 0")
    e("buffer_load_dwordx4 v5, s[24:27], s20 offen lds")
    e("buffer_load_dwordx4 v5, s[24:27], s20 offen offset:1024 lds")
    e("s_mov_b32 m0, s23")
    e("s_nop 0")
    e("buffer_load_dwordx4 v5, s[24:27], s21 offen lds")
    e("buffer_load_dwordx4 v5, s[24:27], s21 offen offset:1024 lds")
    e("v_mov_b32 v8, 0x3f803f80")
    e("v_mov_b32 v9, 0x3f803f80")
    e("v_mov_b32 v10, 0x8000")
    e("ds_write_b64 v10, v[8:9]")
    e("ds_write_b64 v10, v[8:9] offset:8")
    e("s_lshl_b32 s18, s14, 10")
    e("v_add_u32 v6, s18, v5")
    e("v_lshlrev_b32 v7, 8, v4")
    e("v_lshl_add_u32 v7, v3, 4, v7")
    e("v_add_u32 v7, s18, v7")
    e("v_add_u32 v7, 0x4000, v7")
    e("v_cmp_gt_u32 vcc, 16, v3")
    e("v_mov_b32 v11, 0x200")
    e("s_nop 0")
    e("v_cndmask_b32 v7, v10, v7, vcc")
    e("v_cndmask_b32 v14, 0, v11, vcc   ; step")
    e(f"s_add_u32 s17, s16, {hex(OB)}    ; O soffset")
    e("v_lshlrev_b32 v8, 2, v4")
    e("v_sub_u32 v8, v3, v8")
    for i in range(16):
        ci = (i & 3) + 8*(i >> 2)
        e(f"v_cmp_le_i32 s[{32+2*i}:{33+2*i}], {ci}, v8")
    e("v_mov_b32 v15, 0x3eb8aa3b        ; 0.25*log2(e)")
    e("v_mov_b32 v240, 0x3eb8aa3b")
    e("v_mov_b32 v241, 0x3eb8aa3b")
    e("v_mov_b32 v8, 0xffff")
    e("v_mov_b32 v9, 0xffff0000")
    for r in range(8):
        e(f"v_cndmask_b32 v{232+r}, 0, v8, s[{32+4*r}:{33+4*r}]")
        e(f"v_cndmask_b32 v11, 0, v9, s[{34+4*r}:{35+4*r}]")
        e(f"v_or_b32 v{232+r}, v{232+r}, v11")
    if PF3:
        srd(28, 4, 5, 0x80000)
        e("s_lshl_b32 s64, s64, 3")
        e("s_add_u32 s64, s64, s14")
        e("s_lshl_b32 s64, s64, 11")
        e("v_lshlrev_b32 v253, 5, v2")
    e(f"s_waitcnt vmcnt(0) lgkmcnt(0)")
    e("s_barrier")
    stamp()
    if PF3:
        e("buffer_load_dword v252, v253, s[28:31], s64 offen")
    for t in range(9):
        e(f"ds_read_b128 {vr(KF+4*t,4)}, v6 offset:{1024*t}")
    for t in range(9):
        e(f"s_waitcnt lgkmcnt({8-t})")
        e(f"v_mfma_f32_32x32x16_bf16 {vr(S+16*t,16)}, {vr(KF+4*t,4)}, {vr(QF,4)}, 0")
    e("s_nop 7")
    e("s_nop 4")
    e("s_cmp_ge_u32 s13, 8")
    e("s_cbranch_scc1 L_k2_fix_done")
    e("v_mov_b32 v9, 0xcf800000")
    for t in range(8):
        for i in range(16):
            e(f"v_mov_b32 v{S+16*t+i}, v9")
        if t < 7:
            e(f"s_cmp_ge_u32 s13, {7-t}")
            e("s_cbranch_scc1 L_k2_fix_done")
    e("L_k2_fix_done:")
    for i in range(16):
        e(f"v_cndmask_b32 v{S+128+i}, v{S+i}, v{S+128+i}, s[{32+2*i}:{33+2*i}]")
    vals = [S+16+i for i in range(128)]
    ch = [10, 11, 12, 13]
    for c in range(4):
        sub = vals[32*c:32*c+32]
        e(f"v_max3_f32 v{ch[c]}, v{sub[0]}, v{sub[1]}, v{sub[2]}")
    for step in range(14):
        for c in range(4):
            sub = vals[32*c:32*c+32]
            e(f"v_max3_f32 v{ch[c]}, v{sub[3+2*step]}, v{sub[4+2*step]}, v{ch[c]}")
    for c in range(4):
        sub = vals[32*c:32*c+32]
        e(f"v_max_f32 v{ch[c]}, v{sub[31]}, v{ch[c]}")
    e("v_max3_f32 v10, v10, v11, v12")
    e("v_max_f32 v10, v10, v13")
    e("v_mov_b32 v11, v10")
    e("s_nop 1")
    e("v_permlane32_swap_b32 v10, v11")
    e("v_max_f32 v10, v10, v11")
    e("v_mul_f32 v10, v15, v10          ; m*c")
    e("v_mov_b32 v242, v10")
    e("v_mov_b32 v243, v10")
    stamp()
    def softmax(t):
        base = S+16*t
        if PK:
            for i in range(0, 16, 2):
                e(f"v_pk_fma_f32 {vr(base+i,2)}, {vr(base+i,2)}, v[240:241], v[242:243] neg_lo:[0,0,1] neg_hi:[0,0,1]")
        else:
            for i in range(16):
                e(f"v_fma_f32 v{base+i}, v{base+i}, v15, -v10")
        for i in range(16):
            e(f"v_exp_f32 v{base+i}, v{base+i}")
        for r in range(8):
            e(f"v_cvt_pk_bf16_f32 v{base+r}, v{base+2*r}, v{base+2*r+1}")
        if t == 8:
            for r in range(8):
                e(f"v_and_b32 v{S+8+r}, v{base+r}, v{232+r}")
            for r in range(8):
                e(f"v_xor_b32 v{S+r}, v{base+r}, v{S+8+r}")
            for r in range(8):
                e(f"v_mov_b32 v{base+r}, v{S+8+r}")
    def vread(t):
        b = VF + 8*(t & 1)
        for m in range(2):
            e(f"ds_read_b128 {vr(b+4*m,4)}, v7")
            e("v_add_u32 v7, v7, v14")
    vread(0)
    softmax(8)
    for t in range(9):
        if t+1 < 9:
            vread(t+1)
        if 1 <= t+1 <= 7:
            softmax(t+1)
        e(f"s_waitcnt lgkmcnt({2 if t+1 < 9 else 0})")
        b = VF + 8*(t & 1)
        base = S+16*t
        for m in range(2):
            cin = "0" if (t == 0 and m == 0) else vr(OA, 16)
            e(f"v_mfma_f32_32x32x16_bf16 {vr(OA,16)}, {vr(b+4*m,4)}, {vr(base+4*m,4)}, {cin}")
    stamp()
    e("s_nop 7")
    e("s_nop 7")
    e(f"v_rcp_f32 v10, v{OA+8}")
    e("s_nop 0")
    for i in range(8):
        e(f"v_mul_f32 v{OA+i}, v10, v{OA+i}")
    for r in range(4):
        e(f"v_cvt_pk_bf16_f32 v{16+r}, v{OA+2*r}, v{OA+2*r+1}")
    e(f"buffer_store_dwordx4 v[16:19], v5, s[24:27], s17 offen {STM2}")
    stamp_flush(1, 14, 8)
    dbg_end(1)
    e("L_k2_end:")
    e("s_endpgm")
    out.append("")

def gen_k3():
    kernel_begin("oproj_kernel")
    e("s_cmp_ge_u32 s2, 256")
    e("s_cbranch_scc1 L_k3_end")
    e("s_load_dwordx4 s[4:7], s[0:1], 16")
    e("s_load_dwordx2 s[8:9], s[0:1], 40")
    e("s_and_b32 s10, s2, 7")
    e("s_lshr_b32 s11, s2, 3")
    if MAP2:
        e("s_lshr_b32 s13, s10, 1")
        e("s_lshl_b32 s13, s13, 3")
        e("s_and_b32 s12, s11, 7")
        e("s_add_u32 s13, s13, s12          ; mt (0..31)")
        e("s_lshr_b32 s12, s11, 3")
        e("s_and_b32 s11, s10, 1")
        e("s_lshl_b32 s11, s11, 2")
        e("s_add_u32 s12, s12, s11          ; nt (0..7)")
    else:
        e("s_lshl_b32 s13, s10, 2")
        e("s_and_b32 s12, s11, 3")
        e("s_add_u32 s13, s13, s12          ; mt (0..31)")
        e("s_lshr_b32 s12, s11, 2           ; nt (0..7)")
    e("v_lshrrev_b32 v1, 6, v0")
    e("v_and_b32 v2, 63, v0             ; lane")
    e("v_readfirstlane_b32 s39, v1      ; wave")
    e("v_and_b32 v3, 31, v2             ; l&31")
    e("v_lshrrev_b32 v4, 5, v2          ; h")
    e("s_and_b32 s14, s39, 3")
    e("v_lshlrev_b32 v5, 4, v2          ; lane*16")
    e("s_cmp_ge_u32 s39, 4")
    e("s_cbranch_scc1 L_k3_loader")
    e("s_lshr_b32 s28, s14, 1           ; a")
    e("s_and_b32 s29, s14, 1            ; b")
    e("s_lshl_b32 s30, s28, 10")
    e("v_add_u32 v12, s30, v5")
    e("v_bfe_u32 v9, v2, 2, 2           ; r")
    e("v_lshl_add_u32 v10, v4, 2, v9    ; 4h+r")
    e("v_lshlrev_b32 v10, 7, v10")
    e("v_lshrrev_b32 v9, 1, v9")
    e("v_xor_b32 v9, s29, v9")
    e("v_lshl_add_u32 v10, v9, 6, v10")
    e("v_bfe_u32 v9, v2, 4, 1           ; g'")
    e("v_lshl_add_u32 v10, v9, 5, v10")
    e("v_and_b32 v9, 3, v2")
    e("v_lshl_add_u32 v13, v9, 3, v10")
    e("v_add_u32 v13, 0x10000, v13")
    e("v_add_u32 v14, 0x8000, v13")
    e("v_add_u32 v15, 0x8000, v12")
    e("s_waitcnt lgkmcnt(0)")
    srd(16, 6, 7, 0x200000)
    srd(24, 8, 9, WS_SIZE)
    ACC = 64
    FR = 32
    def read_list(kk):
        b = FR + 8*(kk % 3)
        k2 = kk & 15
        L = [f"ds_read_b128 {vr(b,4)}, {'v12' if kk < 16 else 'v15'} offset:{k2*2048}"]
        for ee in range(2):
            L.append(f"ds_read_b64_tr_b16 {vr(b+4+2*ee,2)}, {'v13' if kk < 16 else 'v14'} offset:{k2*2048+ee*1024}")
        return L
    stamp()
    e("s_barrier")
    stamp()
    for r in read_list(0): e(r)
    for r in read_list(1): e(r)
    for kk in range(32):
        nxt = []
        if kk+2 < 32:
            if (kk+2) % 4 == 0:
                e("s_barrier")
                if kk+2 == 24: stamp()
            nxt = read_list(kk+2)
        e(f"s_waitcnt lgkmcnt({3 if kk+1 < 32 else 0})")
        b = FR + 8*(kk % 3)
        acc = vr(ACC, 16)
        cin = "0" if kk == 0 else acc
        e(f"v_mfma_f32_32x32x16_bf16 {acc}, {vr(b+4,4)}, {vr(b,4)}, {cin}")
        for r in nxt: e(r)
    stamp()
    if WIDE3 == 2:
        e("s_nop 7")
        e("s_nop 7")
        for r in range(8):
            e(f"v_cvt_pk_bf16_f32 v{16+r}, v{ACC+2*r}, v{ACC+2*r+1}")
        e("s_nop 1")
        for p in range(2):
            e(f"v_permlane32_swap_b32 v{16+4*p}, v{18+4*p}")
            e(f"v_permlane32_swap_b32 v{17+4*p}, v{19+4*p}")
        e("s_lshl_b32 s30, s28, 5")
        e("v_add_u32 v6, s30, v3")
        e("v_mul_u32_u24 v6, 144, v6")
        e("v_lshl_add_u32 v6, v4, 4, v6")
        e("s_lshl_b32 s30, s29, 6")
        e("v_add_u32 v6, s30, v6")
        e("s_barrier")
        e("ds_write_b128 v6, v[16:19]")
        e("ds_write_b128 v6, v[20:23] offset:32")
        e("v_lshrrev_b32 v7, 3, v2")
        e("s_lshl_b32 s30, s14, 4")
        e("v_add_u32 v7, s30, v7")
        e("v_and_b32 v8, 7, v2")
        e("v_mul_u32_u24 v9, 144, v7")
        e("v_lshl_add_u32 v9, v8, 4, v9")
        e("s_lshl_b32 s30, s13, 6")
        e("v_add_u32 v7, s30, v7")
        e("v_lshlrev_b32 v7, 10, v7")
        e("v_lshl_add_u32 v7, v8, 4, v7")
        e("s_lshl_b32 s30, s12, 7")
        e("s_add_u32 s31, s30, 0x2000")
        e("s_waitcnt lgkmcnt(0)")
        e("s_barrier")
        e("ds_read_b128 v[24:27], v9")
        e(f"ds_read_b128 v[28:31], v9 offset:{8*144}")
        e("s_waitcnt lgkmcnt(1)")
        e(f"buffer_store_dwordx4 v[24:27], v7, s[16:19], s30 offen {STM3}")
        e("s_waitcnt lgkmcnt(0)")
        e(f"buffer_store_dwordx4 v[28:31], v7, s[16:19], s31 offen {STM3}")
    else:
        e("s_lshl_b32 s30, s13, 1")
        e("s_add_u32 s30, s30, s28")
        e("s_lshl_b32 s30, s30, 5")
        e("v_add_u32 v5, s30, v3")
        e("v_lshlrev_b32 v5, 10, v5")
        e(f"v_lshl_add_u32 v5, v4, {4 if WIDE3 else 3}, v5")
        e("s_lshl_b32 s30, s12, 1")
        e("s_add_u32 s30, s30, s29")
        e("s_lshl_b32 s30, s30, 6")
        e("v_add_u32 v5, s30, v5")
        e("s_nop 7")
        e("s_nop 3")
        for r in range(8):
            e(f"v_cvt_pk_bf16_f32 v{16+r}, v{ACC+2*r}, v{ACC+2*r+1}")
        if WIDE3:
            e("s_nop 1")
            for p in range(2):
                e(f"v_permlane32_swap_b32 v{16+4*p}, v{18+4*p}")
                e(f"v_permlane32_swap_b32 v{17+4*p}, v{19+4*p}")
            for p in range(2):
                e(f"buffer_store_dwordx4 {vr(16+4*p,4)}, v5, s[16:19], 0 offen offset:{32*p} {STM3}")
        else:
            for g in range(4):
                e(f"buffer_store_dwordx2 {vr(16+2*g,2)}, v5, s[16:19], 0 offen offset:{16*g} {STM3}")
    stamp_flush(2, 14, 4)
    dbg_end(2)
    e("s_endpgm")
    e("L_k3_loader:")
    e("v_lshrrev_b32 v9, 3, v2")
    e("v_and_b32 v10, 7, v2")
    e("v_bfe_u32 v11, v2, 4, 1")
    e("v_lshlrev_b32 v11, 2, v11")
    e("v_xor_b32 v10, v10, v11")
    e("v_lshlrev_b32 v9, 10, v9")
    e("v_lshl_add_u32 v9, v10, 4, v9")
    e("s_lshl_b32 s29, s12, 7")
    e("v_add_u32 v6, s29, v9")
    e(f"v_add_u32 v7, {8*1024-1024}, v6")
    e("s_waitcnt lgkmcnt(0)")
    srd(20, 4, 5, 0x80000)
    srd(24, 8, 9, WS_SIZE)
    e("s_lshl_b32 s36, s14, 11")
    e("s_lshl_b32 s37, s14, 16")
    e("s_lshl_b32 s30, s13, 11")
    e("s_add_u32 s37, s37, s30")
    e(f"s_add_u32 s37, s37, {hex(OB)}")
    e("s_lshl_b32 s38, s14, 14          ; W global w*16*1024")
    def issue(c):
        e(f"s_add_u32 s30, s36, {c*8192}")
        e("s_mov_b32 m0, s30")
        e(f"s_add_u32 s31, s37, {c*4*65536}")
        e("buffer_load_dwordx4 v5, s[24:27], s31 offen lds")
        e("buffer_load_dwordx4 v5, s[24:27], s31 offen offset:1024 lds")
        e(f"s_add_u32 s30, s36, {65536 + c*8192}")
        e("s_mov_b32 m0, s30")
        e(f"s_add_u32 s31, s38, {c*65536}")
        e("buffer_load_dwordx4 v6, s[20:23], s31 offen lds")
        e("buffer_load_dwordx4 v7, s[20:23], s31 offen offset:1024 lds")
    LA3 = int(os.environ.get('LA3', '4'))
    for c in range(LA3):
        issue(c)
    for c in range(8):
        nout = min(c+LA3-1, 7) - c
        e(f"s_waitcnt vmcnt({4*nout})")
        e("s_barrier")
        if c+LA3 <= 7:
            issue(c+LA3)
    e("L_k3_end:")
    e("s_endpgm")
    out.append("")

gen_k1()
gen_k2()
gen_k3()
txt = HEADER + "\n".join(out) + "\n" + '.section .rodata,"a"\n'
for n, v in (("qkv_kernel", 160), ("attn_kernel", 256), ("oproj_kernel", 80)):
    txt += ".p2align 6\n" + kd(n, v)
dst = sys.argv[1] if len(sys.argv) > 1 else "standalone__sliding_block__prompt.s"
open(dst, "w").write(txt)
```
